```python
import torch

def _softmax(x, axis=-1):
    return torch.softmax(x, dim=axis)
def _gelu(x):
    return torch.nn.functional.gelu(x, approximate="tanh")
def _silu(x):
    return torch.nn.functional.silu(x)
def _sigmoid(x):
    return torch.sigmoid(x)
def _layernorm(x, axis=-1, eps=1e-5):
    m = x.mean(dim=axis, keepdim=True)
    v = x.var(dim=axis, keepdim=True, unbiased=False)
    return (x - m) / torch.sqrt(v + eps)
def _scatter_add(tgt, idx, src, axis=0):
    return tgt.clone().index_add_(axis, idx, src)
def _segment_sum(src, seg, n):
    out = torch.zeros((n,) + src.shape[1:], dtype=src.dtype)
    return out.index_add_(0, seg, src)
def _pad(x, pw):
    flat = tuple(v for pair in reversed(pw) for v in pair)
    return torch.nn.functional.pad(x, flat)

kernel_name = 'standalone__gqa_block_cached__near_ridge'

def setup_inputs():

    _w = (lambda a: (lambda t: t.to(torch.bfloat16) if t.is_floating_point() else t)(torch.as_tensor(a)))
    B, Sq, D = 8, 96, 512
    Hq, Hkv, Sk, Dh = 32, 32, 512, 128
    assert Hq % Hkv == 0, (Hq, Hkv)
    return {
        "x": _w((lambda *s: torch.randn(*s, dtype=torch.bfloat16) * 0.8)(B, Sq, D)),
        "k_cache": _w((lambda *s: torch.randn(*s, dtype=torch.bfloat16) * 0.8)(B, Hkv, Sk, Dh)),
        "v_cache": _w((lambda *s: torch.randn(*s, dtype=torch.bfloat16) * 0.05)(B, Hkv, Sk, Dh)),
        "wq": _w((lambda *s: torch.randn(*s, dtype=torch.bfloat16) * 0.8)(D, Hq * Dh) * (D ** -0.5)),
        "wo": _w((lambda *s: torch.randn(*s, dtype=torch.bfloat16) * 0.05)(Hq * Dh, D) * ((Hq * Dh) ** -0.5)),
    }

def reference(x, k_cache, v_cache, wq, wo):
    B, Sq, D = x.shape
    Hq, Dh = 32, 128
    Hkv = k_cache.shape[1]
    rep = Hq // Hkv
    q = (lambda x, *d: x.permute(*d))((x @ wq).reshape(B, Sq, Hq, Dh), 0, 2, 1, 3)
    k = (lambda x, n, axis: torch.repeat_interleave(x, n, dim=axis))(k_cache, rep, axis=1)
    v = (lambda x, n, axis: torch.repeat_interleave(x, n, dim=axis))(v_cache, rep, axis=1)
    scores = torch.einsum("bhqd,bhkd->bhqk", q, k) * (Dh ** -0.5)
    p = _softmax(scores, axis=-1)
    o = torch.einsum("bhqk,bhkd->bhqd", p, v)
    return (lambda x, *d: x.permute(*d))(o, 0, 2, 1, 3).reshape(B, Sq, Hq * Dh) @ wo
```

```python
import sys, math, struct

NAME = "standalone__gqa_block_cached__near_ridge"
K1 = NAME + "_kernel"
K2 = "oproj_kernel"
WS_W = 8 * 1024 * 1024

def f32bits(x):
    return struct.unpack("<I", struct.pack("<f", x))[0]

class Asm:
    def __init__(self):
        self.L = []
        self.vm = []
        self.lg = []
    def e(self, s):
        self.L.append("    " + s)
    def lab(self, s):
        self.L.append(s + ":")
    def c(self, s):
        self.L.append("    ; " + s)
    def vmem(self, s, tag):
        self.e(s); self.vm.append(tag)
    def ds(self, s, tag):
        self.e(s); self.lg.append(tag)
    def wait_vm(self, tag):
        idx = max(i for i, t in enumerate(self.vm) if t == tag)
        n = min(len(self.vm) - 1 - idx, 63)
        self.e(f"s_waitcnt vmcnt({n})")
    def wait_lg(self, tag):
        idx = max(i for i, t in enumerate(self.lg) if t == tag)
        n = min(len(self.lg) - 1 - idx, 15)
        self.e(f"s_waitcnt lgkmcnt({n})")
    def wait_lg0(self):
        self.e("s_waitcnt lgkmcnt(0)")
    def nop(self, n):
        while n > 0:
            k = min(n, 16)
            self.e(f"s_nop {k-1}")
            n -= k

def R(kind, b, n=4):
    return f"{kind}[{b}:{b+n-1}]" if n > 1 else f"{kind}{b}"

def srd(a, d, p, nbytes):
    a.e(f"s_mov_b32 s{d}, s{p}")
    a.e(f"s_and_b32 s{d+1}, s{p+1}, 0xffff")
    a.e(f"s_mov_b32 s{d+2}, {nbytes}")
    a.e(f"s_mov_b32 s{d+3}, 0x00020000")

def interleave(a, mf, va, maxper=2, lastfree=2):
    va = list(va)
    n = len(mf)
    slots = max(n - lastfree, 1)
    per = -(-len(va) // slots) if va else 0
    for i, m in enumerate(mf):
        a.e(m)
        if i < slots:
            for _ in range(per):
                if va: a.e(va.pop(0))
    assert not va

def kernel1():
    a = Asm()
    SX, SK, SV, SWQ, SWO, SWS = 20, 24, 28, 32, 36, 40
    sB, sH, sW = 44, 45, 46
    selLo, selHi = 48, 49
    vL16 = 255
    vL16b = 254
    vL16c = 253
    vK, vV = 252, 251
    vQW = 250
    vST = 249
    vSR = 248
    vX, vWQ, vWO, vWS = 247, 246, 245, 244
    vINV = 238
    T0 = 222
    a.e("s_cmp_ge_u32 s2, 256")
    a.e("s_cbranch_scc1 K1_END")
    a.e("s_load_dwordx16 s[4:19], s[0:1], 0")
    a.e("v_lshrrev_b32 v1, 6, v0")
    a.e("v_and_b32 v2, 63, v0")
    a.e("v_readfirstlane_b32 s46, v1")
    a.e("v_and_b32 v3, 15, v2")
    a.e("v_lshrrev_b32 v4, 4, v2")
    a.e("s_lshr_b32 s44, s2, 5")
    a.e("s_and_b32 s50, s2, 7")
    a.e("s_lshl_b32 s50, s50, 2")
    a.e("s_lshr_b32 s51, s2, 3")
    a.e("s_and_b32 s51, s51, 3")
    a.e("s_add_u32 s45, s50, s51")
    a.e(f"s_mov_b32 s{selLo}, 0x05040100")
    a.e(f"s_mov_b32 s{selHi}, 0x07060302")
    a.e(f"v_lshlrev_b32 v{vL16}, 4, v2")
    a.e(f"v_add_u32 v{vL16b}, 49152, v{vL16}")
    a.e(f"v_add_u32 v{vL16c}, 98304, v{vL16}")
    a.e("v_lshlrev_b32 v5, 4, v4")
    a.e(f"v_lshl_add_u32 v{vX}, v3, 10, v5")
    a.e("v_lshlrev_b32 v6, 4, v3")
    a.e(f"v_lshl_add_u32 v{vWQ}, v4, 16, v6")
    a.e("v_lshrrev_b32 v7, 2, v3")
    a.e("v_and_b32 v8, 3, v3")
    a.e("v_lshl_add_u32 v7, v7, 3, v8")
    a.e(f"v_lshl_add_u32 v{vK}, v7, 8, v5")
    a.e(f"v_lshl_add_u32 v{vV}, v4, 11, v6")
    a.e("v_and_b32 v7, 1, v4")
    a.e("v_lshrrev_b32 v8, 1, v4")
    a.e("v_lshlrev_b32 v7, 14, v7")
    a.e("v_lshl_add_u32 v7, v8, 12, v7")
    a.e(f"v_lshl_add_u32 v{vWO}, v3, 3, v7")
    a.e("v_lshrrev_b32 v7, 3, v3")
    a.e("v_lshlrev_b32 v7, 18, v7")
    a.e("v_lshl_add_u32 v7, v4, 11, v7")
    a.e("v_and_b32 v8, 1, v3")
    a.e("v_lshl_add_u32 v7, v8, 10, v7")
    a.e("v_bfe_u32 v8, v3, 1, 2")
    a.e(f"v_lshl_add_u32 v{vWS}, v8, 6, v7")
    a.e(f"v_lshl_add_u32 v{vQW}, v4, 10, v6")
    a.e("v_lshlrev_b32 v7, 6, v3")
    a.e(f"v_add_u32 v{vSR}, 147456, v7")
    a.e("v_lshl_add_u32 v8, v1, 2, v4")
    a.e(f"v_lshl_add_u32 v{vST}, v8, 2, v{vSR}")
    a.e("s_waitcnt lgkmcnt(0)")
    srd(a, SX, 4, 786432)
    srd(a, SK, 6, 33554432)
    srd(a, SV, 8, 33554432)
    srd(a, SWQ, 10, 4194304)
    srd(a, SWO, 12, 4194304)
    srd(a, SWS, 18, 268435456)
    a.e("s_lshl_b32 s50, s45, 17")
    a.e("s_lshl_b32 s51, s46, 15")
    a.e("s_add_u32 s50, s50, s51")
    a.e("s_lshl_b32 s51, s44, 7")
    a.e("s_add_u32 s50, s50, s51")
    a.e("s_add_u32 s51, s50, 8192")
    for i in range(8):
        so = 50 if i < 4 else 51
        a.vmem(f"buffer_load_dwordx2 v[{2*i}:{2*i+1}], v{vWO}, s[{SWO}:{SWO+3}], s{so} offen offset:{(i%4)*1024}", "wo")
    a.e("s_mul_i32 s52, s44, 98304")
    a.e("s_lshl_b32 s53, s46, 8")
    a.e("s_add_u32 s52, s52, s53")
    for t in range(1, 6):
        a.e(f"s_add_u32 s{52+t}, s52, {16384*t}")
    a.e("s_lshl_b32 s58, s46, 20")
    a.e("s_lshl_b32 s59, s45, 8")
    a.e("s_add_u32 s58, s58, s59")
    a.e("s_lshl_b32 s60, s44, 5")
    a.e("s_add_u32 s60, s60, s45")
    a.e("s_lshl_b32 s60, s60, 17")
    a.e("s_lshl_b32 s59, s46, 15")
    a.e("s_add_u32 s60, s60, s59")
    for p in range(1, 4):
        a.e(f"s_add_u32 s{60+p}, s60, {8192*p}")
    WQ = lambda s, i: 96 + 32 * s + 4 * i
    XA = lambda s, t: 64 + 24 * s + 4 * t
    for s in range(4):
        for i in range(8):
            a.vmem(f"buffer_load_dwordx4 {R('v', WQ(s,i))}, v{vWQ}, s[{SWQ}:{SWQ+3}], s58 offen", f"a{s}")
            a.e(f"s_add_u32 s58, s58, {8192 if i < 7 else 8192*25}")
        for t in range(6):
            a.vmem(f"buffer_load_dwordx4 {R('a', XA(s,t))}, v{vX}, s[{SX}:{SX+3}], s{52+t} offen offset:{64*s}", f"a{s}")
    KA = lambda kt, u: 16 * kt + 4 * u
    def loadK(kts):
        for kt in kts:
            for u in range(4):
                a.vmem(f"buffer_load_dwordx4 {R('a', KA(kt,u))}, v{vK}, s[{SK}:{SK+3}], s{60+kt//2} offen offset:{64*u+1024*(kt%2)}", f"k{kt}")
    loadK(range(4))
    a.e("s_lshl_b32 s50, s44, 6")
    a.e("s_add_u32 s50, s50, s45")
    a.e("s_lshl_b32 s50, s50, 13")
    a.e("s_lshl_b32 s51, s46, 8")
    a.e("s_add_u32 s50, s50, s51")
    a.e(f"s_add_u32 s50, s50, {WS_W}")
    a.wait_vm("wo")
    for e in range(4):
        for z in range(4):
            sel = selLo if e % 2 == 0 else selHi
            a.e(f"v_perm_b32 v{16+4*e+z}, v{2*(2*z+1)+e//2}, v{2*(2*z)+e//2}, s{sel}")
    for e in range(4):
        a.vmem(f"buffer_store_dwordx4 {R('v', 16+4*e)}, v{vWS}, s[{SWS}:{SWS+3}], s50 offen offset:{16*e}", "wst")
    def Qacc(t, j):
        return ('v', (t*4 + j)*4) if j < 4 else ('a', 160 + (t*4 + j - 4)*4)
    TB = [224, 232]
    def perms(raw, tb):
        out = []
        for e in range(2):
            for z in range(4):
                out.append(f"v_perm_b32 v{tb+4*e+z}, v{raw(2*z+1)}, v{raw(2*z)}, s{selHi if e else selLo}")
        return out
    for s in range(4):
        a.wait_vm(f"a{s}")
        for x in perms(lambda i: WQ(s, i) + 0, TB[0]): a.e(x)
        a.nop(2)
        for w in range(4):
            tb = TB[w % 2]
            mf = []
            for e in range(2):
                j = 2*w + e
                for t in range(6):
                    k, b = Qacc(t, j)
                    cin = "0" if s == 0 else R(k, b)
                    mf.append(f"v_mfma_f32_16x16x32_bf16 {R(k,b)}, {R('v', tb+4*e)}, {R('a', XA(s,t))}, {cin}")
            va = perms(lambda i: WQ(s, i) + w + 1, TB[(w+1) % 2]) if w < 3 else []
            interleave(a, mf, va)
        if s == 2:
            loadK(range(4, 8))
    a.nop(8)
    def ldsaddr(off):
        base = [vL16, vL16b, vL16c][off // 49152]
        return base, off % 49152
    def reduce_(tagp, acc, work, inbox, after_writes, finish):
        a.e("s_cmp_eq_u32 s46, 1"); a.e(f"s_cbranch_scc1 {tagp}_W1")
        a.e("s_cmp_eq_u32 s46, 2"); a.e(f"s_cbranch_scc1 {tagp}_W2")
        a.e("s_cmp_eq_u32 s46, 3"); a.e(f"s_cbranch_scc1 {tagp}_W3")
        vm0, lg0 = list(a.vm), list(a.lg)
        for w in range(4):
            a.vm, a.lg = list(vm0), list(lg0)
            a.lab(f"{tagp}_W{w}")
            for dd in range(1, 4):
                o = (w + dd) % 4
                k = (w - o - 1) % 4
                for uu in range(3):
                    hu = 3*o + uu
                    t, jh = hu // 2, hu % 2
                    for jj in range(4):
                        kind, b = acc(t, 4*jh + jj)
                        base, off = ldsaddr(((o*3 + k)*3 + uu)*4096 + jj*1024)
                        a.ds(f"ds_write_b128 v{base}, {R(kind,b)} offset:{off}", "w")
            own = {}
            wi = 0
            for uu in range(3):
                hu = 3*w + uu
                t, jh = hu // 2, hu % 2
                for jj in range(4):
                    kind, b = acc(t, 4*jh + jj)
                    if kind == 'a':
                        for r in range(4):
                            a.e(f"v_accvgpr_read_b32 v{work+wi+r}, a{b+r}")
                        own[(uu, jj)] = work + wi
                        wi += 4
                    else:
                        own[(uu, jj)] = b
            a.wait_lg0()
            after_writes()
            a.e("s_barrier")
            def rd(uu):
                ib = inbox + 48*(uu % 2)
                for k in range(3):
                    for jj in range(4):
                        base, off = ldsaddr(((w*3 + k)*3 + uu)*4096 + jj*1024)
                        a.ds(f"ds_read_b128 {R('v', ib + 16*k + 4*jj)}, v{base} offset:{off}", f"r{uu}")
            rd(0); rd(1)
            for uu in range(3):
                ib = inbox + 48*(uu % 2)
                a.wait_lg(f"r{uu}")
                for jj in range(4):
                    for r in range(4):
                        o_ = own[(uu, jj)] + r
                        a.e(f"v_add_f32 v{ib+4*jj+r}, v{ib+4*jj+r}, v{ib+16+4*jj+r}")
                        a.e(f"v_add_f32 v{o_}, v{o_}, v{ib+32+4*jj+r}")
                        a.e(f"v_add_f32 v{o_}, v{o_}, v{ib+4*jj+r}")
                if uu == 0:
                    rd(2)
            finish(w, own)
            a.e(f"s_branch {tagp}_DONE")
        a.lab(f"{tagp}_DONE")
    VA = lambda p, i: 128 + 32*p + 4*i
    def loadV():
        for p in range(4):
            for i in range(8):
                a.vmem(f"buffer_load_dwordx4 {R('a', VA(p,i))}, v{vV}, s[{SV}:{SV+3}], s{60+p} offen offset:{256*i}", f"v{p}")
    def finishQ(w, own):
        a.e("s_barrier")
        pk = 128
        for uu in range(3):
            hu = 3*w + uu
            t, jh = hu // 2, hu % 2
            for r in range(4):
                d = pk + (uu*4 + r)*2
                a.e(f"v_cvt_pk_bf16_f32 v{d}, v{own[(uu,0)]+r}, v{own[(uu,1)]+r}")
                a.e(f"v_cvt_pk_bf16_f32 v{d+1}, v{own[(uu,2)]+r}, v{own[(uu,3)]+r}")
                a.ds(f"ds_write_b64 v{vQW}, v[{d}:{d+1}] offset:{t*4096 + r*256 + 8*jh}", "qw")
        a.wait_lg0()
        a.e("s_barrier")
    reduce_("RQ", Qacc, 96, 128, loadV, finishQ)
    SB = lambda kt, t: ((kt % 2)*4 + kt//2)*24 + 4*t
    QF = [192, 208]
    def rdQ(t, buf, tag):
        for u in range(4):
            a.ds(f"ds_read_b128 {R('v', QF[buf]+4*u)}, v{vL16} offset:{(t*4+u)*1024}", tag)
    step = 0
    rdQ(0, 0, "q0")
    for G in range(2):
        a.wait_vm(f"k{4*G+3}")
        for t in range(6):
            nt_ = (step + 1)
            if nt_ < 12:
                rdQ(nt_ % 6, nt_ % 2, f"q{nt_}")
            a.wait_lg(f"q{step}")
            for kt in range(4*G, 4*G+4):
                for u in range(4):
                    cin = "0" if u == 0 else R('v', SB(kt, t))
                    a.e(f"v_mfma_f32_16x16x32_bf16 {R('v', SB(kt,t))}, {R('a', KA(kt,u))}, {R('v', QF[step%2]+4*u)}, {cin}")
            step += 1
    a.nop(8)
    cs = math.log2(math.e) / math.sqrt(128.0)
    a.e(f"s_mov_b32 s50, 0x{f32bits(cs):08x}")
    vM = 224
    for t in range(6):
        vals = [SB(kt, t) + r for kt in range(8) for r in range(4)]
        a.e(f"v_max3_f32 v{vM+t}, v{vals[0]}, v{vals[1]}, v{vals[2]}")
        for i in range(3, 31, 2):
            a.e(f"v_max3_f32 v{vM+t}, v{vM+t}, v{vals[i]}, v{vals[i+1]}")
        a.e(f"v_max_f32 v{vM+t}, v{vM+t}, v{vals[31]}")
        a.ds(f"ds_write_b32 v{vST}, v{vM+t} offset:{t*1024}", "mw")
    a.wait_lg0()
    a.e("s_barrier")
    def gather(off, dst, op3, op2):
        for t0 in range(0, 6, 2):
            for tt in range(2):
                for x in range(4):
                    a.ds(f"ds_read_b128 {R('v', 192+16*tt+4*x)}, v{vSR} offset:{off + (t0+tt)*1024 + 16*x}", f"g{t0+tt}")
            for tt in range(2):
                a.wait_lg(f"g{t0+tt}")
                b = 192 + 16*tt
                d = dst + t0 + tt
                if op3:
                    a.e(f"{op3} v{d}, v{b}, v{b+1}, v{b+2}")
                    for i in range(3, 15, 2):
                        a.e(f"{op3} v{d}, v{d}, v{b+i}, v{b+i+1}")
                    a.e(f"{op2} v{d}, v{d}, v{b+15}")
                else:
                    for i in range(8): a.e(f"{op2} v{b+i}, v{b+i}, v{b+8+i}")
                    for i in range(4): a.e(f"{op2} v{b+i}, v{b+i}, v{b+4+i}")
                    for i in range(2): a.e(f"{op2} v{b+i}, v{b+i}, v{b+2+i}")
                    a.e(f"{op2} v{d}, v{b}, v{b+1}")
    gather(0, vM, "v_max3_f32", "v_max_f32")
    for t in range(6):
        a.e(f"v_mul_f32 v{vM+t}, s50, v{vM+t}")
    vS = 230
    for t in range(6):
        vals = [SB(kt, t) + r for kt in range(8) for r in range(4)]
        for x in vals:
            a.e(f"v_fma_f32 v{x}, v{x}, s50, -v{vM+t}")
        for x in vals:
            a.e(f"v_exp_f32 v{x}, v{x}")
        a.e(f"v_add_f32 v{vS+t}, v{vals[0]}, v{vals[1]}")
        a.e(f"v_add_f32 v236, v{vals[2]}, v{vals[3]}")
        for i in range(4, 32, 2):
            a.e(f"v_add_f32 v{vS+t}, v{vS+t}, v{vals[i]}")
            a.e(f"v_add_f32 v236, v236, v{vals[i+1]}")
        a.e(f"v_add_f32 v{vS+t}, v{vS+t}, v236")
        a.ds(f"ds_write_b32 v{vST}, v{vS+t} offset:{6144 + t*1024}", "sw")
        for p in range(4):
            e0, e1 = SB(2*p, t), SB(2*p+1, t)
            a.e(f"v_cvt_pk_bf16_f32 v{e0}, v{e0}, v{e0+1}")
            a.e(f"v_cvt_pk_bf16_f32 v{e0+1}, v{e0+2}, v{e0+3}")
            a.e(f"v_cvt_pk_bf16_f32 v{e0+2}, v{e1}, v{e1+1}")
            a.e(f"v_cvt_pk_bf16_f32 v{e0+3}, v{e1+2}, v{e1+3}")
    a.wait_lg0()
    a.e("s_barrier")
    gather(6144, vINV, None, "v_add_f32")
    for t in range(6):
        a.e(f"v_rcp_f32 v{vINV+t}, v{vINV+t}")
    PB = lambda t, p: 24*p + 4*t
    def Oacc(t, j):
        idx = t*8 + j
        return ('a', 4*idx) if idx < 32 else ('v', 96 + 4*(idx - 32))
    RW = 160
    TC = [168, 176]
    def vstage(p, w, tb):
        out = [f"v_accvgpr_read_b32 v{RW+i}, a{VA(p,i)+w}" for i in range(8)]
        return out + perms(lambda i: RW + i, tb)
    for p in range(4):
        a.wait_vm(f"v{p}")
        for x in vstage(p, 0, TC[0]): a.e(x)
        a.nop(2)
        for w in range(4):
            tb = TC[w % 2]
            mf = []
            for e in range(2):
                j = 2*w + e
                for t in range(6):
                    k, b = Oacc(t, j)
                    cin = "0" if p == 0 else R(k, b)
                    mf.append(f"v_mfma_f32_16x16x32_bf16 {R(k,b)}, {R('v', tb+4*e)}, {R('v', PB(t,p))}, {cin}")
            va = vstage(p, w+1, TC[(w+1) % 2]) if w < 3 else []
            interleave(a, mf, va)
    a.e("s_lshl_b32 s50, s44, 6")
    a.e("s_add_u32 s50, s50, s45")
    a.e("s_mul_i32 s50, s50, 12288")
    a.nop(8)
    def finishO(w, own):
        pk = 0
        for uu in range(3):
            hu = 3*w + uu
            t, jh = hu // 2, hu % 2
            for jj in range(4):
                for r in range(4):
                    a.e(f"v_mul_f32 v{own[(uu,jj)]+r}, v{own[(uu,jj)]+r}, v{vINV+t}")
            for rp in range(2):
                d = pk + (uu*2 + rp)*4
                for rr in range(2):
                    r = 2*rp + rr
                    a.e(f"v_cvt_pk_bf16_f32 v{d+2*rr}, v{own[(uu,0)]+r}, v{own[(uu,1)]+r}")
                    a.e(f"v_cvt_pk_bf16_f32 v{d+2*rr+1}, v{own[(uu,2)]+r}, v{own[(uu,3)]+r}")
                off = (t//3)*393216 + (2*jh + rp)*3072 + (t % 3)*1024
                a.e(f"s_add_u32 s51, s50, {off}")
                a.vmem(f"buffer_store_dwordx4 {R('v', d)}, v{vL16}, s[{SWS}:{SWS+3}], s51 offen", "ost")
    reduce_("RO", Oacc, 160, 0, lambda: None, finishO)
    a.lab("K1_END")
    a.e("s_endpgm")
    return a

def kernel2(D=12):
    a = Asm()
    SWS, SO = 20, 24
    a.e("s_cmp_ge_u32 s2, 256")
    a.e("s_cbranch_scc1 K2_END")
    a.e("s_load_dwordx2 s[4:5], s[0:1], 40")
    a.e("s_load_dwordx2 s[6:7], s[0:1], 56")
    a.e("v_lshrrev_b32 v1, 6, v0")
    a.e("v_and_b32 v2, 63, v0")
    a.e("v_readfirstlane_b32 s46, v1")
    a.e("v_lshlrev_b32 v255, 4, v2")
    a.e("s_and_b32 s50, s2, 7")
    a.e("s_lshr_b32 s51, s2, 3")
    a.e("s_lshr_b32 s44, s50, 1")
    a.e("s_lshl_b32 s44, s44, 2")
    a.e("s_lshr_b32 s52, s51, 3")
    a.e("s_add_u32 s44, s44, s52")
    a.e("s_and_b32 s45, s50, 1")
    a.e("s_lshl_b32 s45, s45, 3")
    a.e("s_and_b32 s52, s51, 7")
    a.e("s_add_u32 s45, s45, s52")
    a.e("s_lshl_b32 s52, s46, 5")
    a.e("s_lshl_b32 s53, s44, 7")
    a.e("s_add_u32 s53, s53, s52")
    a.e("s_mul_i32 s53, s53, 3072")
    a.e("s_lshl_b32 s54, s45, 7")
    a.e("s_add_u32 s54, s54, s52")
    a.e("s_lshl_b32 s54, s54, 11")
    a.e(f"s_add_u32 s54, s54, {WS_W}")
    a.e("v_and_b32 v3, 15, v2")
    a.e("v_lshrrev_b32 v4, 4, v2")
    a.e("v_lshlrev_b32 v4, 4, v4")
    a.e("v_lshl_add_u32 v254, v3, 10, v4")
    a.e("s_waitcnt lgkmcnt(0)")
    srd(a, SWS, 6, 268435456)
    srd(a, SO, 4, 786432)
    def ld(ks):
        b = 20*(ks % D)
        for x in range(2):
            a.vmem(f"buffer_load_dwordx4 {R('v', b+4*x)}, v255, s[{SWS}:{SWS+3}], s54 offen offset:{1024*x}", f"k{ks}")
        for x in range(3):
            a.vmem(f"buffer_load_dwordx4 {R('v', b+8+4*x)}, v255, s[{SWS}:{SWS+3}], s53 offen offset:{1024*x}", f"k{ks}")
        a.e("s_add_u32 s54, s54, 2048")
        a.e("s_add_u32 s53, s53, 3072")
    for ks in range(D): ld(ks)
    for ks in range(32):
        b = 20*(ks % D)
        a.wait_vm(f"k{ks}")
        for x in range(2):
            for tt in range(3):
                acc = R('a', 4*(tt*2 + x))
                cin = "0" if ks == 0 else acc
                a.e(f"v_mfma_f32_16x16x32_bf16 {acc}, {R('v', b+4*x)}, {R('v', b+8+4*tt)}, {cin}")
        if ks + D < 32:
            ld(ks + D)
    a.e("s_mul_i32 s52, s46, 6144")
    a.e("v_add_u32 v253, s52, v255")
    a.e("s_lshl_b32 s52, s46, 11")
    a.e("v_add_u32 v252, s52, v255")
    a.nop(8)
    for u in range(6):
        a.ds(f"ds_write_b128 v253, {R('a', 4*u)} offset:{1024*u}", "w")
    a.wait_lg0()
    a.e("s_barrier")
    a.e("s_cmp_eq_u32 s46, 3")
    a.e("s_cbranch_scc1 K2_END")
    for s in range(4):
        for x in range(2):
            a.ds(f"ds_read_b128 {R('v', 8*s+4*x)}, v252 offset:{6144*s + 1024*x}", "r")
    a.e("s_mul_i32 s52, s44, 49152")
    a.e("s_lshl_b32 s53, s46, 14")
    a.e("s_add_u32 s52, s52, s53")
    a.e("s_lshl_b32 s53, s45, 6")
    a.e("s_add_u32 s52, s52, s53")
    a.wait_lg0()
    for i in range(8):
        a.e(f"v_add_f32 v{i}, v{i}, v{8+i}")
        a.e(f"v_add_f32 v{16+i}, v{16+i}, v{24+i}")
    for i in range(8):
        a.e(f"v_add_f32 v{i}, v{i}, v{16+i}")
    for i in range(4):
        a.e(f"v_cvt_pk_bf16_f32 v{32+i}, v{2*i}, v{2*i+1}")
    a.vmem(f"buffer_store_dwordx4 v[32:35], v254, s[{SO}:{SO+3}], s52 offen", "o")
    a.lab("K2_END")
    a.e("s_endpgm")
    return a

def desc(name, nfv, acc):
    return f""".amdhsa_kernel {name}
  .amdhsa_next_free_vgpr {nfv}
  .amdhsa_next_free_sgpr 96
  .amdhsa_accum_offset {acc}
  .amdhsa_group_segment_fixed_size 0
  .amdhsa_kernarg_size 64
  .amdhsa_user_sgpr_count 2
  .amdhsa_user_sgpr_kernarg_segment_ptr 1
  .amdhsa_system_sgpr_workgroup_id_x 1
.end_amdhsa_kernel"""

def main():
    hdr = open("cdna_kernels/" + NAME + ".s.ref").read().split("\n")
    top = [l for l in hdr if l.startswith(";") and "@launch" not in l and "Override" not in l and "grid=ceil" not in l]
    out = list(top)
    out.append(f"; @launch kernel={K1} grid=(256,1,1) block=(256,1,1) lds=159744")
    out.append(f"; @launch kernel={K2} grid=(256,1,1) block=(256,1,1) lds=24576")
    out.append('.amdgcn_target "amdgcn-amd-amdhsa--gfx950"')
    out.append(".text")
    for name, k in ((K1, kernel1()), (K2, kernel2())):
        out += [f".globl {name}", ".p2align 8", f".type {name},@function", f"{name}:"]
        out += k.L
    out += ['.section .rodata,"a"', ".p2align 6", desc(K1, 512, 256), ".p2align 6", desc(K2, 280, 256)]
    path = sys.argv[1] if len(sys.argv) > 1 else "cdna_kernels/" + NAME + ".s"
    open(path, "w").write("\n".join(out) + "\n")

main()
```

```python
import sys, math, struct

NAME = "standalone__gqa_block_cached__near_ridge"
K1 = NAME + "_kernel"
K2 = "oproj_kernel"
import os
STAMP = bool(os.environ.get("STAMP"))
STAMP_OFF = 0
WS_W = 8 * 1024 * 1024

def f32bits(x):
    return struct.unpack("<I", struct.pack("<f", x))[0]

class Asm:
    def __init__(self):
        self.L = []
        self.vm = []
        self.lg = []
        self.ns = 0
    def e(self, s):
        self.L.append("    " + s)
    def lab(self, s):
        self.L.append(s + ":")
    def c(self, s):
        self.L.append("    ; " + s)
    def vmem(self, s, tag):
        self.e(s); self.vm.append(tag)
    def ds(self, s, tag):
        self.e(s); self.lg.append(tag)
    def wait_vm(self, tag):
        idx = max(i for i, t in enumerate(self.vm) if t == tag)
        n = min(len(self.vm) - 1 - idx, 63)
        self.e(f"s_waitcnt vmcnt({n})")
    def wait_lg(self, tag):
        idx = max(i for i, t in enumerate(self.lg) if t == tag)
        n = min(len(self.lg) - 1 - idx, 15)
        self.e(f"s_waitcnt lgkmcnt({n})")
    def wait_lg0(self):
        self.e("s_waitcnt lgkmcnt(0)")
    def stamp(self):
        if not STAMP: return
        k = self.ns; self.ns += 1
        self.e(f"s_memtime s[{64+2*k}:{65+2*k}]")
        self.e("s_waitcnt lgkmcnt(0)")
    def dump_stamps(self, srd_, wave_s):
        if not STAMP: return
        self.e("s_lshl_b32 s50, s2, 2")
        self.e(f"s_add_u32 s50, s50, s{wave_s}")
        self.e("s_lshl_b32 s50, s50, 7")
        self.e(f"s_add_u32 s50, s50, {16*1024*1024 + STAMP_OFF}")
        self.e("v_mov_b32 v1, 0")
        for k in range(self.ns):
            self.e(f"v_mov_b32 v2, s{64+2*k}")
            self.e(f"buffer_store_dword v2, v1, s[{srd_}:{srd_+3}], s50 offen offset:{4*k}")
            self.e("s_nop 1")
    def nop(self, n):
        while n > 0:
            k = min(n, 16)
            self.e(f"s_nop {k-1}")
            n -= k

def R(kind, b, n=4):
    return f"{kind}[{b}:{b+n-1}]" if n > 1 else f"{kind}{b}"

def srd(a, d, p, nbytes):
    a.e(f"s_mov_b32 s{d}, s{p}")
    a.e(f"s_and_b32 s{d+1}, s{p+1}, 0xffff")
    a.e(f"s_mov_b32 s{d+2}, {nbytes}")
    a.e(f"s_mov_b32 s{d+3}, 0x00020000")

def interleave(a, mf, va, maxper=2, lastfree=2):
    va = list(va)
    n = len(mf)
    slots = max(n - lastfree, 1)
    per = -(-len(va) // slots) if va else 0
    for i, m in enumerate(mf):
        a.e(m)
        if i < slots:
            for _ in range(per):
                if va: a.e(va.pop(0))
    assert not va

def interleave2(a, mf, va, ld, lastfree=2):
    va = list(va); ld = list(ld)
    n = len(mf)
    slots = max(n - lastfree, 1)
    per = -(-len(va) // slots) if va else 0
    nl = len(ld)
    done = 0
    for i, m in enumerate(mf):
        if callable(m): m()
        else: a.e(m)
        if i < slots:
            for _ in range(per):
                if va: a.e(va.pop(0))
        while done < nl and (done + 0.5) * n <= (i + 1) * nl:
            ld[done](); done += 1
    while done < nl:
        ld[done](); done += 1
    assert not va

def kernel1():
    a = Asm()
    SX, SK, SV, SWQ, SWO, SWS = 20, 24, 28, 32, 36, 40
    selLo, selHi = 48, 49
    NT = " nt" if os.environ.get("NT", "1") == "1" else ""
    vL16, vL16b, vL16c = 255, 254, 253
    vK, vV = 252, 251
    vQW, vST, vSR = 250, 249, 248
    vWQ = 247
    vXR = 240
    vWO, vWS = 40, 41
    vXD = 44
    a.e("s_cmp_ge_u32 s2, 256")
    a.e("s_cbranch_scc1 K1_END")
    a.e("s_load_dwordx16 s[4:19], s[0:1], 0")
    a.e("v_lshrrev_b32 v33, 6, v0")
    a.e("v_and_b32 v34, 63, v0")
    a.e("v_readfirstlane_b32 s46, v33")
    a.e("v_and_b32 v35, 15, v34")
    a.e("v_lshrrev_b32 v36, 4, v34")
    a.e("s_lshr_b32 s44, s2, 5")
    a.e("s_and_b32 s50, s2, 7")
    a.e("s_lshl_b32 s50, s50, 2")
    a.e("s_lshr_b32 s51, s2, 3")
    a.e("s_and_b32 s51, s51, 3")
    a.e("s_add_u32 s45, s50, s51")
    a.e(f"s_mov_b32 s{selLo}, 0x05040100")
    a.e(f"s_mov_b32 s{selHi}, 0x07060302")
    a.e(f"v_lshlrev_b32 v{vL16}, 4, v34")
    a.e(f"v_add_u32 v{vL16b}, 49152, v{vL16}")
    a.e(f"v_add_u32 v{vL16c}, 98304, v{vL16}")
    a.e("v_lshlrev_b32 v37, 4, v36")
    a.e("v_lshlrev_b32 v38, 4, v35")
    a.e(f"v_lshl_add_u32 v{vWQ}, v36, 16, v38")
    a.e("v_lshrrev_b32 v39, 2, v35")
    a.e("v_and_b32 v42, 3, v35")
    a.e("v_lshl_add_u32 v39, v39, 3, v42")
    a.e(f"v_lshl_add_u32 v{vK}, v39, 8, v37")
    a.e(f"v_lshl_add_u32 v{vV}, v36, 11, v38")
    a.e("v_and_b32 v39, 1, v36")
    a.e("v_lshrrev_b32 v42, 1, v36")
    a.e("v_lshlrev_b32 v39, 14, v39")
    a.e("v_lshl_add_u32 v39, v42, 12, v39")
    a.e(f"v_lshl_add_u32 v{vWO}, v35, 3, v39")
    a.e("v_lshrrev_b32 v39, 3, v35")
    a.e("v_lshlrev_b32 v39, 18, v39")
    a.e("v_lshl_add_u32 v39, v36, 11, v39")
    a.e("v_and_b32 v42, 1, v35")
    a.e("v_lshl_add_u32 v39, v42, 10, v39")
    a.e("v_bfe_u32 v42, v35, 1, 2")
    a.e(f"v_lshl_add_u32 v{vWS}, v42, 6, v39")
    a.e(f"v_lshl_add_u32 v{vQW}, v36, 10, v38")
    a.e("v_lshlrev_b32 v39, 6, v35")
    a.e(f"v_add_u32 v{vSR}, 147456, v39")
    a.e("v_lshl_add_u32 v42, v33, 2, v36")
    a.e(f"v_lshl_add_u32 v{vST}, v42, 2, v{vSR}")
    a.e("v_mul_u32_u24 v43, 24576, v33")
    a.e("v_lshl_add_u32 v43, v35, 8, v43")
    for n in range(4):
        a.e(f"v_add_u32 v39, {4*n}, v36")
        a.e("v_xor_b32 v42, v39, v35")
        a.e("v_lshlrev_b32 v42, 4, v42")
        a.e(f"v_lshl_add_u32 v{vXD+n}, v39, 10, v42")
        a.e(f"v_add_u32 v{vXR+n}, v43, v42")
    a.e("s_waitcnt lgkmcnt(0)")
    a.stamp()
    srd(a, SX, 4, 786432)
    srd(a, SK, 6, 33554432)
    srd(a, SWQ, 10, 4194304)
    srd(a, SWO, 12, 4194304)
    a.e("s_lshl_b32 s60, s44, 5")
    a.e("s_add_u32 s60, s60, s45")
    a.e("s_lshl_b32 s60, s60, 17")
    a.e("s_lshl_b32 s59, s46, 15")
    a.e("s_add_u32 s60, s60, s59")
    for p in range(1, 4):
        a.e(f"s_add_u32 s{60+p}, s60, {8192*p}")
    a.e("s_mul_i32 s52, s44, 98304")
    a.e("s_lshl_b32 s53, s46, 8")
    a.e("s_add_u32 s52, s52, s53")
    for t in range(1, 6):
        a.e(f"s_add_u32 s{52+t}, s52, {16384*t}")
    a.e("s_mul_i32 m0, s46, 24576")
    WQ = lambda s, i: 96 + 32 * s + 4 * i
    KA = lambda kt, u: 16 * kt + 4 * u
    VA = lambda p, i: 128 + 32*p + 4*i
    def Kld(kt, u):
        return lambda: a.vmem(f"buffer_load_dwordx4 {R('a', KA(kt,u))}, v{vK}, s[{SK}:{SK+3}], s{60+kt//2} offen offset:{64*u+1024*(kt%2)}{NT}", f"k{kt}")
    def Vld(p, i):
        return lambda: a.vmem(f"buffer_load_dwordx4 {R('a', VA(p,i))}, v{vV}, s[{SV}:{SV+3}], s{60+p} offen offset:{256*i}{NT}", f"v{p}")
    def Wld(s, i):
        def f():
            a.vmem(f"buffer_load_dwordx4 {R('v', WQ(s,i))}, v{vWQ}, s[{SWQ}:{SWQ+3}], s58 offen", f"a{s}")
            a.e(f"s_add_u32 s58, s58, {8192 if i < 7 else 8192*25}")
        return f
    def Xld(n):
        def f():
            a.vmem(f"buffer_load_dwordx4 v{vXD + n%4}, s[{SX}:{SX+3}], s{52+n//4} offen lds", "x")
            a.e("s_add_u32 m0, m0, 1024")
            a.e("s_nop 0")
        return f
    Kq = [Kld(kt, u) for kt in range(8) for u in range(4)]
    Vq = [Vld(p, i) for p in range(4) for i in range(8)]
    def take(q, n):
        r = q[:n]; del q[:n]; return r
    def mix(A, B):
        out = []; nb = 0
        for i, x in enumerate(A):
            out.append(x)
            while nb < len(B) and (nb + 1) * len(A) <= (i + 1) * (len(B)):
                out.append(B[nb]); nb += 1
        out += B[nb:]
        return out
    KS = [int(x) for x in os.environ.get("KS", "2,6,4,4,4,6,6").split(",")]
    for f in take(Kq, KS[0]): f()
    srd(a, SV, 8, 33554432)
    srd(a, SWS, 18, 268435456)
    a.e("s_lshl_b32 s58, s46, 20")
    a.e("s_lshl_b32 s59, s45, 8")
    a.e("s_add_u32 s58, s58, s59")
    a.e("s_lshl_b32 s50, s45, 17")
    a.e("s_lshl_b32 s51, s46, 15")
    a.e("s_add_u32 s50, s50, s51")
    a.e("s_lshl_b32 s51, s44, 7")
    a.e("s_add_u32 s50, s50, s51")
    a.e("s_add_u32 s51, s50, 8192")
    for f in mix([Xld(n) for n in range(24)], take(Kq, KS[1])): f()
    for f in mix([Wld(s, i) for s in range(2) for i in range(8)], take(Kq, KS[2])): f()
    for i in range(8):
        so = 50 if i < 4 else 51
        a.vmem(f"buffer_load_dwordx2 v[{2*i}:{2*i+1}], v{vWO}, s[{SWO}:{SWO+3}], s{so} offen offset:{(i%4)*1024}", "wo")
    a.e("s_lshl_b32 s50, s44, 6")
    a.e("s_add_u32 s50, s50, s45")
    a.e("s_lshl_b32 s50, s50, 13")
    a.e("s_lshl_b32 s51, s46, 8")
    a.e("s_add_u32 s50, s50, s51")
    a.e(f"s_add_u32 s50, s50, {WS_W}")
    a.stamp()
    XF = lambda t: 128 + 4*t
    def rdX(s, t):
        return lambda: a.ds(f"ds_read_b128 {R('a', XF(t))}, v{vXR+s} offset:{t*4096}", f"x{s}_{t}")
    a.wait_vm("x")
    for t in range(6): rdX(0, t)()
    a.wait_vm("wo")
    a.stamp()
    for e in range(4):
        for z in range(4):
            sel = selLo if e % 2 == 0 else selHi
            a.e(f"v_perm_b32 v{16+4*e+z}, v{2*(2*z+1)+e//2}, v{2*(2*z)+e//2}, s{sel}")
    for e in range(4):
        a.vmem(f"buffer_store_dwordx4 {R('v', 16+4*e)}, v{vWS}, s[{SWS}:{SWS+3}], s50 offen offset:{16*e}", "wst")
    def Qacc(t, j):
        return ('v', (t*4 + j)*4) if j < 4 else ('a', 160 + (t*4 + j - 4)*4)
    TB = [224, 232]
    def perms(raw, tb):
        out = []
        for e in range(2):
            for z in range(4):
                out.append(f"v_perm_b32 v{tb+4*e+z}, v{raw(2*z+1)}, v{raw(2*z)}, s{selHi if e else selLo}")
        return out
    for s in range(4):
        a.wait_vm(f"a{s}")
        for x in perms(lambda i: WQ(s, i) + 0, TB[0]): a.e(x)
        a.nop(2)
        lds_ = mix([Wld(s+2, i) for i in range(8)], take(Kq, KS[3+s])) if s < 2 else take(Kq, KS[3+s])
        for w in range(4):
            tb = TB[w % 2]
            mf = []
            for t in range(6):
                if w == 0:
                    mf.append(lambda s=s, t=t: a.wait_lg(f"x{s}_{t}"))
                for e in range(2):
                    j = 2*w + e
                    k, b = Qacc(t, j)
                    cin = "0" if s == 0 else R(k, b)
                    mf.append(f"v_mfma_f32_16x16x32_bf16 {R(k,b)}, {R('v', tb+4*e)}, {R('a', XF(t))}, {cin}")
                if w == 3 and s < 3:
                    mf.append(rdX(s+1, t))
            va = perms(lambda i: WQ(s, i) + w + 1, TB[(w+1) % 2]) if w < 3 else []
            n4 = -(-len(lds_) // (4 - w))
            interleave2(a, mf, va, take(lds_, n4), lastfree=3)
    assert not Kq
    a.e("s_barrier")
    a.nop(6)
    a.stamp()
    def ldsaddr(off):
        base = [vL16, vL16b, vL16c][off // 49152]
        return base, off % 49152
    def reduce_(tagp, acc, work, inbox, q, nq, finish, pre=None):
        a.e("s_cmp_eq_u32 s46, 1"); a.e(f"s_cbranch_scc1 {tagp}_W1")
        a.e("s_cmp_eq_u32 s46, 2"); a.e(f"s_cbranch_scc1 {tagp}_W2")
        a.e("s_cmp_eq_u32 s46, 3"); a.e(f"s_cbranch_scc1 {tagp}_W3")
        vm0, lg0 = list(a.vm), list(a.lg)
        mine0 = take(q, sum(nq))
        for w in range(4):
            a.vm, a.lg = list(vm0), list(lg0)
            mine = list(mine0)
            a.lab(f"{tagp}_W{w}")
            own = {}
            wi = 0
            mv = []
            for uu in range(3):
                hu = 3*w + uu
                t, jh = hu // 2, hu % 2
                for jj in range(4):
                    kind, b = acc(t, 4*jh + jj)
                    if kind == 'a':
                        for r in range(4):
                            mv.append(f"v_accvgpr_read_b32 v{work+wi+r}, a{b+r}")
                        own[(uu, jj)] = work + wi
                        wi += 4
                    else:
                        own[(uu, jj)] = b
            for dd in range(1, 4):
                o = (w + dd) % 4
                k = (w - o - 1) % 4
                for uu in range(3):
                    hu = 3*o + uu
                    t, jh = hu // 2, hu % 2
                    for jj in range(4):
                        kind, b = acc(t, 4*jh + jj)
                        base, off = ldsaddr(((o*3 + k)*3 + uu)*4096 + jj*1024)
                        a.ds(f"ds_write_b128 v{base}, {R(kind,b)} offset:{off}", "w")
                        for _ in range(2):
                            if mv: a.e(mv.pop(0))
            a.wait_lg0()
            for f in take(mine, nq[0]): f()
            a.e("s_barrier")
            def rd(uu):
                ib = inbox + 48*(uu % 2)
                for k in range(3):
                    for jj in range(4):
                        base, off = ldsaddr(((w*3 + k)*3 + uu)*4096 + jj*1024)
                        a.ds(f"ds_read_b128 {R('v', ib + 16*k + 4*jj)}, v{base} offset:{off}", f"r{uu}")
            if pre: pre(w)
            rd(0); rd(1)
            for uu in range(3):
                ib = inbox + 48*(uu % 2)
                a.wait_lg(f"r{uu}")
                for jj in range(4):
                    for r in range(0, 4, 2):
                        o_ = own[(uu, jj)] + r
                        a.e(f"v_pk_add_f32 {R('v',ib+4*jj+r,2)}, {R('v',ib+4*jj+r,2)}, {R('v',ib+16+4*jj+r,2)}")
                        a.e(f"v_pk_add_f32 {R('v',o_,2)}, {R('v',o_,2)}, {R('v',ib+32+4*jj+r,2)}")
                        a.e(f"v_pk_add_f32 {R('v',o_,2)}, {R('v',o_,2)}, {R('v',ib+4*jj+r,2)}")
                if uu == 0:
                    rd(2)
            for f in take(mine, nq[1]): f()
            finish(w, own)
            a.e(f"s_branch {tagp}_DONE")
        a.lab(f"{tagp}_DONE")
    def finishQ(w, own):
        a.e("s_barrier")
        pk = 128
        for uu in range(3):
            hu = 3*w + uu
            t, jh = hu // 2, hu % 2
            for r in range(4):
                d = pk + (uu*4 + r)*2
                a.e(f"v_cvt_pk_bf16_f32 v{d}, v{own[(uu,0)]+r}, v{own[(uu,1)]+r}")
                a.e(f"v_cvt_pk_bf16_f32 v{d+1}, v{own[(uu,2)]+r}, v{own[(uu,3)]+r}")
                a.ds(f"ds_write_b64 v{vQW}, v[{d}:{d+1}] offset:{t*4096 + r*256 + 8*jh}", "qw")
        a.wait_lg0()
        a.e("s_barrier")
    VS = [int(x) for x in os.environ.get("VS", "6,2,4,6,14").split(",")]
    reduce_("RQ", Qacc, 96, 128, Vq, VS[0:2], finishQ)
    a.stamp()
    SB = lambda kt, t: ((kt % 2)*4 + kt//2)*24 + 4*t
    QF = [192, 208]
    def rdQ(t, buf, tag):
        for u in range(4):
            a.ds(f"ds_read_b128 {R('v', QF[buf]+4*u)}, v{vL16} offset:{(t*4+u)*1024}", tag)
    step = 0
    rdQ(0, 0, "q0")
    for G in range(2):
        lds_ = take(Vq, VS[2+G])
        for t in range(6):
            nt_ = (step + 1)
            if nt_ < 12:
                rdQ(nt_ % 6, nt_ % 2, f"q{nt_}")
            a.wait_lg(f"q{step}")
            mf = []
            for kt in range(4*G, 4*G+4):
                if t == 0:
                    mf.append(lambda kt=kt: a.wait_vm(f"k{kt}"))
                for u in range(4):
                    cin = "0" if u == 0 else R('v', SB(kt, t))
                    mf.append(f"v_mfma_f32_16x16x32_bf16 {R('v', SB(kt,t))}, {R('a', KA(kt,u))}, {R('v', QF[step%2]+4*u)}, {cin}")
            interleave2(a, mf, [], take(lds_, -(-len(lds_) // (6 - t))))
            step += 1
    a.nop(8)
    a.stamp()
    cs = math.log2(math.e) / math.sqrt(128.0)
    a.e(f"s_mov_b32 s50, 0x{f32bits(cs):08x}")
    a.e(f"s_mov_b32 s51, 0x{f32bits(cs):08x}")
    vM = 224
    for t in range(6):
        vals = [SB(kt, t) + r for kt in range(8) for r in range(4)]
        m = vM + 2*t
        a.e(f"v_max3_f32 v{m}, v{vals[0]}, v{vals[1]}, v{vals[2]}")
        a.e(f"v_max3_f32 v{m+1}, v{vals[3]}, v{vals[4]}, v{vals[5]}")
        for i in range(6, 30, 4):
            a.e(f"v_max3_f32 v{m}, v{m}, v{vals[i]}, v{vals[i+1]}")
            a.e(f"v_max3_f32 v{m+1}, v{m+1}, v{vals[i+2]}, v{vals[i+3]}")
        a.e(f"v_max3_f32 v{m}, v{m}, v{vals[30]}, v{vals[31]}")
        a.e(f"v_max_f32 v{m}, v{m}, v{m+1}")
        a.ds(f"ds_write_b32 v{vST}, v{m} offset:{t*1024}", "mw")
    for f in take(Vq, 2): f()
    a.wait_lg0()
    a.e("s_barrier")
    for t0 in range(0, 6, 2):
        for tt in range(2):
            for x in range(4):
                a.ds(f"ds_read_b128 {R('v', 192+16*tt+4*x)}, v{vSR} offset:{(t0+tt)*1024 + 16*x}", f"g{t0+tt}")
        for tt in range(2):
            a.wait_lg(f"g{t0+tt}")
            b = 192 + 16*tt
            d = vM + 2*(t0 + tt)
            a.e(f"v_max3_f32 v{d}, v{b}, v{b+1}, v{b+2}")
            for i in range(3, 15, 2):
                a.e(f"v_max3_f32 v{d}, v{d}, v{b+i}, v{b+i+1}")
            a.e(f"v_max_f32 v{d}, v{d}, v{b+15}")
            a.e(f"v_mul_f32 v{d}, s50, v{d}")
    for r in range(4):
        a.e(f"v_mov_b32 v{192+r}, 0x3f803f80")
    PB = lambda t, p: 24*p + 4*t
    SUM = lambda t: 196 + 4*t
    for t in range(6):
        vals = [SB(kt, t) + r for kt in range(8) for r in range(4)]
        m = vM + 2*t
        for x in vals[::2]:
            a.e(f"v_pk_fma_f32 {R('v',x,2)}, {R('v',x,2)}, s[50:51], {R('v',m,2)} op_sel_hi:[1,1,0] neg_lo:[0,0,1] neg_hi:[0,0,1]")
        for i, x in enumerate(vals):
            a.e(f"v_exp_f32 v{x}, v{x}")
            if i == 16:
                for f in take(Vq, 1): f()
        for f in take(Vq, 1): f()
        a.e("s_nop 0")
        for p in range(4):
            e0, e1 = SB(2*p, t), SB(2*p+1, t)
            a.e(f"v_cvt_pk_bf16_f32 v{e0}, v{e0}, v{e0+1}")
            a.e(f"v_cvt_pk_bf16_f32 v{e0+1}, v{e0+2}, v{e0+3}")
            a.e(f"v_cvt_pk_bf16_f32 v{e0+2}, v{e1}, v{e1+1}")
            a.e(f"v_cvt_pk_bf16_f32 v{e0+3}, v{e1+2}, v{e1+3}")
        if t > 0:
            for p in range(4):
                cin = "0" if p == 0 else R('v', SUM(t-1))
                a.e(f"v_mfma_f32_16x16x32_bf16 {R('v', SUM(t-1))}, v[192:195], {R('v', PB(t-1,p))}, {cin}")
    for f in take(Vq, 99): f()
    a.nop(2)
    for p in range(4):
        cin = "0" if p == 0 else R('v', SUM(5))
        a.e(f"v_mfma_f32_16x16x32_bf16 {R('v', SUM(5))}, v[192:195], {R('v', PB(5,p))}, {cin}")
    a.nop(8)
    for t in range(6):
        a.ds(f"ds_write_b32 v{vST}, v{SUM(t)} offset:{6144 + t*1024}", "sw")
    a.stamp()
    def Oacc(t, j):
        idx = t*8 + j
        return ('a', 4*idx) if idx < 32 else ('v', 96 + 4*(idx - 32))
    RW = 160
    TC = [168, 176]
    def vstage(p, w, tb):
        out = [f"v_accvgpr_read_b32 v{RW+i}, a{VA(p,i)+w}" for i in range(8)]
        return out + perms(lambda i: RW + i, tb)
    for p in range(4):
        a.wait_vm(f"v{p}")
        for x in vstage(p, 0, TC[0]): a.e(x)
        a.nop(2)
        for w in range(4):
            tb = TC[w % 2]
            mf = []
            for e in range(2):
                j = 2*w + e
                for t in range(6):
                    k, b = Oacc(t, j)
                    cin = "0" if p == 0 else R(k, b)
                    mf.append(f"v_mfma_f32_16x16x32_bf16 {R(k,b)}, {R('v', tb+4*e)}, {R('v', PB(t,p))}, {cin}")
            va = vstage(p, w+1, TC[(w+1) % 2]) if w < 3 else []
            interleave(a, mf, va)
    a.stamp()
    a.e("s_lshl_b32 s50, s44, 6")
    a.e("s_add_u32 s50, s50, s45")
    a.e("s_mul_i32 s50, s50, 12288")
    a.nop(8)
    def preO(w):
        ts = sorted(set((3*w + uu)//2 for uu in range(3)))
        for n, t in enumerate(ts):
            for wv in range(4):
                a.ds(f"ds_read_b32 v{224+4*n+wv}, v{vSR} offset:{6144 + t*1024 + 16*wv}", "sr")
    def finishO(w, own):
        pk = 0
        ts = sorted(set((3*w + uu)//2 for uu in range(3)))
        for n, t in enumerate(ts):
            b = 224 + 4*n
            a.e(f"v_add_f32 v{b}, v{b}, v{b+1}")
            a.e(f"v_add_f32 v{b+2}, v{b+2}, v{b+3}")
            a.e(f"v_add_f32 v{b}, v{b}, v{b+2}")
            a.e(f"v_rcp_f32 v{b}, v{b}")
        a.e("s_nop 0")
        for uu in range(3):
            hu = 3*w + uu
            t, jh = hu // 2, hu % 2
            iv = 224 + 4*ts.index(t)
            for jj in range(4):
                for r in range(0, 4, 2):
                    o_ = own[(uu,jj)] + r
                    a.e(f"v_pk_mul_f32 {R('v',o_,2)}, {R('v',o_,2)}, {R('v',iv,2)} op_sel_hi:[1,0]")
            for rp in range(2):
                d = pk + (uu*2 + rp)*4
                for rr in range(2):
                    r = 2*rp + rr
                    a.e(f"v_cvt_pk_bf16_f32 v{d+2*rr}, v{own[(uu,0)]+r}, v{own[(uu,1)]+r}")
                    a.e(f"v_cvt_pk_bf16_f32 v{d+2*rr+1}, v{own[(uu,2)]+r}, v{own[(uu,3)]+r}")
                off = (t//3)*393216 + (2*jh + rp)*3072 + (t % 3)*1024
                a.e(f"s_add_u32 s51, s50, {off}")
                a.vmem(f"buffer_store_dwordx4 {R('v', d)}, v{vL16}, s[{SWS}:{SWS+3}], s51 offen", "ost")
    reduce_("RO", Oacc, 160, 0, [], [0, 0], finishO, preO)
    a.stamp()
    a.dump_stamps(SWS, 46)
    a.lab("K1_END")
    a.e("s_endpgm")
    return a

def kernel2(D=12):
    a = Asm()
    SWS, SO = 20, 24
    a.e("s_cmp_ge_u32 s2, 256")
    a.e("s_cbranch_scc1 K2_END")
    a.e("s_load_dwordx2 s[4:5], s[0:1], 40")
    a.e("s_load_dwordx2 s[6:7], s[0:1], 56")
    a.e("v_lshrrev_b32 v1, 6, v0")
    a.e("v_and_b32 v2, 63, v0")
    a.e("v_readfirstlane_b32 s46, v1")
    a.e("v_lshlrev_b32 v255, 4, v2")
    a.e("s_and_b32 s50, s2, 7")
    a.e("s_lshr_b32 s51, s2, 3")
    a.e("s_lshr_b32 s44, s50, 1")
    a.e("s_lshl_b32 s44, s44, 2")
    a.e("s_lshr_b32 s52, s51, 3")
    a.e("s_add_u32 s44, s44, s52")
    a.e("s_and_b32 s45, s50, 1")
    a.e("s_lshl_b32 s45, s45, 3")
    a.e("s_and_b32 s52, s51, 7")
    a.e("s_add_u32 s45, s45, s52")
    a.e("s_lshl_b32 s52, s46, 5")
    a.e("s_lshl_b32 s53, s44, 7")
    a.e("s_add_u32 s53, s53, s52")
    a.e("s_mul_i32 s53, s53, 3072")
    a.e("s_lshl_b32 s54, s45, 7")
    a.e("s_add_u32 s54, s54, s52")
    a.e("s_lshl_b32 s54, s54, 11")
    a.e(f"s_add_u32 s54, s54, {WS_W}")
    a.e("v_and_b32 v3, 15, v2")
    a.e("v_lshrrev_b32 v4, 4, v2")
    a.e("v_lshlrev_b32 v4, 4, v4")
    a.e("v_lshl_add_u32 v254, v3, 10, v4")
    a.e("s_waitcnt lgkmcnt(0)")
    srd(a, SWS, 6, 268435456)
    srd(a, SO, 4, 786432)
    def ld(ks):
        b = 20*(ks % D)
        for x in range(2):
            a.vmem(f"buffer_load_dwordx4 {R('v', b+4*x)}, v255, s[{SWS}:{SWS+3}], s54 offen offset:{1024*x}", f"k{ks}")
        for x in range(3):
            a.vmem(f"buffer_load_dwordx4 {R('v', b+8+4*x)}, v255, s[{SWS}:{SWS+3}], s53 offen offset:{1024*x}", f"k{ks}")
        a.e("s_add_u32 s54, s54, 2048")
        a.e("s_add_u32 s53, s53, 3072")
    for ks in range(D): ld(ks)
    for ks in range(32):
        b = 20*(ks % D)
        a.wait_vm(f"k{ks}")
        for x in range(2):
            for tt in range(3):
                acc = R('a', 4*(tt*2 + x))
                cin = "0" if ks == 0 else acc
                a.e(f"v_mfma_f32_16x16x32_bf16 {acc}, {R('v', b+4*x)}, {R('v', b+8+4*tt)}, {cin}")
        if ks + D < 32:
            ld(ks + D)
    a.e("s_mul_i32 s52, s46, 6144")
    a.e("v_add_u32 v253, s52, v255")
    a.e("s_lshl_b32 s52, s46, 11")
    a.e("v_add_u32 v252, s52, v255")
    a.nop(8)
    for u in range(6):
        a.ds(f"ds_write_b128 v253, {R('a', 4*u)} offset:{1024*u}", "w")
    a.wait_lg0()
    a.e("s_barrier")
    a.e("s_cmp_eq_u32 s46, 3")
    a.e("s_cbranch_scc1 K2_END")
    for s in range(4):
        for x in range(2):
            a.ds(f"ds_read_b128 {R('v', 8*s+4*x)}, v252 offset:{6144*s + 1024*x}", "r")
    a.e("s_mul_i32 s52, s44, 49152")
    a.e("s_lshl_b32 s53, s46, 14")
    a.e("s_add_u32 s52, s52, s53")
    a.e("s_lshl_b32 s53, s45, 6")
    a.e("s_add_u32 s52, s52, s53")
    a.wait_lg0()
    for i in range(8):
        a.e(f"v_add_f32 v{i}, v{i}, v{8+i}")
        a.e(f"v_add_f32 v{16+i}, v{16+i}, v{24+i}")
    for i in range(8):
        a.e(f"v_add_f32 v{i}, v{i}, v{16+i}")
    for i in range(4):
        a.e(f"v_cvt_pk_bf16_f32 v{32+i}, v{2*i}, v{2*i+1}")
    a.vmem(f"buffer_store_dwordx4 v[32:35], v254, s[{SO}:{SO+3}], s52 offen", "o")
    a.lab("K2_END")
    a.e("s_endpgm")
    return a

def desc(name, nfv, acc):
    return f""".amdhsa_kernel {name}
  .amdhsa_next_free_vgpr {nfv}
  .amdhsa_next_free_sgpr 96
  .amdhsa_accum_offset {acc}
  .amdhsa_group_segment_fixed_size 0
  .amdhsa_kernarg_size 64
  .amdhsa_user_sgpr_count 2
  .amdhsa_user_sgpr_kernarg_segment_ptr 1
  .amdhsa_system_sgpr_workgroup_id_x 1
.end_amdhsa_kernel"""

def main():
    hdr = open("cdna_kernels/" + NAME + ".s.ref").read().split("\n")
    top = [l for l in hdr if l.startswith(";") and "@launch" not in l and "Override" not in l and "grid=ceil" not in l]
    out = list(top)
    out.append(f"; @launch kernel={K1} grid=(256,1,1) block=(256,1,1) lds=159744")
    out.append(f"; @launch kernel={K2} grid=(256,1,1) block=(256,1,1) lds=24576")
    out.append('.amdgcn_target "amdgcn-amd-amdhsa--gfx950"')
    out.append(".text")
    for name, k in ((K1, kernel1()), (K2, kernel2())):
        out += [f".globl {name}", ".p2align 8", f".type {name},@function", f"{name}:"]
        out += k.L
    out += ['.section .rodata,"a"', ".p2align 6", desc(K1, 512, 256), ".p2align 6", desc(K2, 280, 256)]
    path = sys.argv[1] if len(sys.argv) > 1 else "cdna_kernels/" + NAME + ".s"
    open(path, "w").write("\n".join(out) + "\n")

main()
```

```python
import sys, math, struct

NAME = "standalone__gqa_block_cached__near_ridge"
K1 = NAME + "_kernel"
K2 = "oproj_kernel"
import os
STAMP = bool(os.environ.get("STAMP"))
STAMP_OFF = 0
WS_W = 8 * 1024 * 1024

def f32bits(x):
    return struct.unpack("<I", struct.pack("<f", x))[0]

class Asm:
    def __init__(self):
        self.L = []
        self.vm = []
        self.lg = []
        self.ns = 0
    def e(self, s):
        self.L.append("    " + s)
    def lab(self, s):
        self.L.append(s + ":")
    def c(self, s):
        self.L.append("    ; " + s)
    def vmem(self, s, tag):
        self.e(s); self.vm.append(tag)
    def ds(self, s, tag):
        self.e(s); self.lg.append(tag)
    def wait_vm(self, tag):
        idx = max(i for i, t in enumerate(self.vm) if t == tag)
        n = min(len(self.vm) - 1 - idx, 63)
        self.e(f"s_waitcnt vmcnt({n})")
    def wait_lg(self, tag):
        idx = max(i for i, t in enumerate(self.lg) if t == tag)
        n = min(len(self.lg) - 1 - idx, 15)
        self.e(f"s_waitcnt lgkmcnt({n})")
    def wait_lg0(self):
        self.e("s_waitcnt lgkmcnt(0)")
    def stamp(self):
        if not STAMP: return
        k = self.ns; self.ns += 1
        self.e(f"s_memtime s[{64+2*k}:{65+2*k}]")
        self.e("s_waitcnt lgkmcnt(0)")
    def dump_stamps(self, srd_, wave_s):
        if not STAMP: return
        self.e("s_lshl_b32 s50, s2, 2")
        self.e(f"s_add_u32 s50, s50, s{wave_s}")
        self.e("s_lshl_b32 s50, s50, 7")
        self.e(f"s_add_u32 s50, s50, {16*1024*1024 + STAMP_OFF}")
        self.e("v_mov_b32 v1, 0")
        for k in range(self.ns):
            self.e(f"v_mov_b32 v2, s{64+2*k}")
            self.e(f"buffer_store_dword v2, v1, s[{srd_}:{srd_+3}], s50 offen offset:{4*k}")
            self.e("s_nop 1")
    def nop(self, n):
        while n > 0:
            k = min(n, 16)
            self.e(f"s_nop {k-1}")
            n -= k

def R(kind, b, n=4):
    return f"{kind}[{b}:{b+n-1}]" if n > 1 else f"{kind}{b}"

def srd(a, d, p, nbytes):
    a.e(f"s_mov_b32 s{d}, s{p}")
    a.e(f"s_and_b32 s{d+1}, s{p+1}, 0xffff")
    a.e(f"s_mov_b32 s{d+2}, {nbytes}")
    a.e(f"s_mov_b32 s{d+3}, 0x00020000")

def interleave(a, mf, va, maxper=2, lastfree=2):
    va = list(va)
    n = len(mf)
    slots = max(n - lastfree, 1)
    per = -(-len(va) // slots) if va else 0
    for i, m in enumerate(mf):
        a.e(m)
        if i < slots:
            for _ in range(per):
                if va: a.e(va.pop(0))
    assert not va

def interleave2(a, mf, va, ld, lastfree=2):
    va = list(va); ld = list(ld)
    n = len(mf)
    slots = max(n - lastfree, 1)
    per = -(-len(va) // slots) if va else 0
    nl = len(ld)
    done = 0
    for i, m in enumerate(mf):
        if callable(m): m()
        else: a.e(m)
        if i < slots:
            for _ in range(per):
                if va: a.e(va.pop(0))
        while done < nl and (done + 0.5) * n <= (i + 1) * nl:
            ld[done](); done += 1
    while done < nl:
        ld[done](); done += 1
    assert not va

def kernel1():
    a = Asm()
    SX, SK, SV, SWQ, SWO, SWS = 20, 24, 28, 32, 36, 40
    selLo, selHi = 48, 49
    NT = " nt" if os.environ.get("NT", "1") == "1" else ""
    NEARLY = int(os.environ.get("NEARLY", "16"))
    vL16, vV, vST, vSR, vWQ = 255, 254, 253, 252, 251
    vQWa, vQWb = 250, 249
    vXR = 240
    vKD = 244
    vWO, vWS = 40, 41
    vXD = 44
    sQ, sT = 84, 90
    sGRP = 47
    WREG = 36864
    a.e("s_cmp_ge_u32 s2, 256")
    a.e("s_cbranch_scc1 K1_END")
    a.e("s_load_dwordx16 s[4:19], s[0:1], 0")
    a.e("v_lshrrev_b32 v33, 6, v0")
    a.e("v_and_b32 v34, 63, v0")
    a.e("v_readfirstlane_b32 s46, v33")
    a.e("v_and_b32 v35, 15, v34")
    a.e("v_lshrrev_b32 v36, 4, v34")
    a.e("s_lshr_b32 s44, s2, 5")
    a.e("s_and_b32 s50, s2, 7")
    a.e("s_lshl_b32 s50, s50, 2")
    a.e("s_lshr_b32 s51, s2, 3")
    a.e("s_and_b32 s51, s51, 3")
    a.e("s_add_u32 s45, s50, s51")
    a.e(f"s_and_b32 s{sGRP}, s44, 1")
    a.e(f"s_mov_b32 s{selLo}, 0x05040100")
    a.e(f"s_mov_b32 s{selHi}, 0x07060302")
    a.e(f"v_lshlrev_b32 v{vL16}, 4, v34")
    a.e("v_and_b32 v39, 1, v33")
    a.e("v_lshlrev_b32 v39, 1, v39")
    a.e("v_xor_b32 v42, v39, v35")
    a.e("v_lshlrev_b32 v37, 4, v42")
    a.e("v_lshlrev_b32 v38, 4, v35")
    a.e(f"v_lshl_add_u32 v{vWQ}, v36, 16, v37")
    a.e(f"v_lshl_add_u32 v{vV}, v36, 11, v37")
    a.e("v_lshl_add_u32 v42, v36, 10, v38")
    a.e(f"v_lshl_add_u32 v{vQWa}, v39, 8, v42")
    a.e("v_xor_b32 v39, 2, v39")
    a.e(f"v_lshl_add_u32 v{vQWb}, v39, 8, v42")
    a.e("v_lshlrev_b32 v39, 13, v36")
    a.e(f"v_lshl_add_u32 v{vWO}, v35, 3, v39")
    a.e("v_lshrrev_b32 v39, 3, v35")
    a.e("v_lshlrev_b32 v39, 18, v39")
    a.e("v_lshl_add_u32 v39, v36, 11, v39")
    a.e("v_and_b32 v42, 1, v35")
    a.e("v_lshl_add_u32 v39, v42, 10, v39")
    a.e("v_bfe_u32 v42, v35, 1, 2")
    a.e(f"v_lshl_add_u32 v{vWS}, v42, 6, v39")
    a.e("v_lshlrev_b32 v39, 6, v35")
    a.e(f"v_add_u32 v{vSR}, 147456, v39")
    a.e("v_lshl_add_u32 v42, v33, 2, v36")
    a.e(f"v_lshl_add_u32 v{vST}, v42, 2, v{vSR}")
    a.e(f"v_mul_u32_u24 v43, {WREG}, v33")
    a.e("v_lshl_add_u32 v43, v35, 8, v43")
    for n in range(4):
        a.e(f"v_add_u32 v39, {4*n}, v36")
        a.e("v_xor_b32 v42, v39, v35")
        a.e("v_lshlrev_b32 v42, 4, v42")
        a.e(f"v_lshl_add_u32 v{vXD+n}, v39, 10, v42")
        a.e(f"v_add_u32 v{vXR+n}, v43, v42")
        a.e(f"v_add_u32 v39, {8*n}, v36")
        a.e(f"v_lshl_add_u32 v{vKD+n}, v39, 8, v42")
    a.e("s_and_b32 s51, s46, 1")
    a.e("s_lshr_b32 s52, s46, 1")
    a.e("s_mul_i32 s52, s52, 3")
    a.e("s_lshl_b32 s53, s51, 1")
    a.e("s_add_u32 s52, s52, s53")
    a.e("s_lshl_b32 s51, s51, 2")
    a.e("s_add_u32 s51, s51, 1")
    for t in range(1, 6):
        a.e(f"s_add_u32 s{52+t}, s{51+t}, s51")
        a.e(f"s_sub_u32 s50, s{52+t}, 6")
        a.e(f"s_min_u32 s{52+t}, s{52+t}, s50")
    for t in range(6):
        a.e(f"s_lshl_b32 s{sT+t}, s{52+t}, 10")
        a.e(f"s_cmp_ge_u32 s{52+t}, 3")
        a.e(f"s_cselect_b32 s50, 9, 3")
        a.e(f"s_add_u32 s{sQ+t}, s{52+t}, s50")
        a.e(f"s_lshl_b32 s{sQ+t}, s{sQ+t}, 12")
    a.e("s_mul_i32 s50, s44, 98304")
    a.e("s_lshl_b32 s51, s46, 8")
    a.e("s_add_u32 s50, s50, s51")
    for t in range(6):
        a.e(f"s_lshl_b32 s{52+t}, s{52+t}, 14")
        a.e(f"s_add_u32 s{52+t}, s{52+t}, s50")
    a.e("s_lshl_b32 s60, s44, 5")
    a.e("s_add_u32 s60, s60, s45")
    a.e("s_lshl_b32 s60, s60, 17")
    a.e("s_lshl_b32 s59, s46, 15")
    a.e("s_add_u32 s60, s60, s59")
    for p in range(1, 4):
        a.e(f"s_add_u32 s{60+p}, s60, {8192*p}")
    a.e(f"s_mul_i32 s43, s46, {WREG}")
    a.e("s_mov_b32 m0, s43")
    a.e("s_add_u32 s59, s43, 24576")
    a.e("s_lshl_b32 s58, s46, 20")
    a.e("s_lshl_b32 s50, s45, 8")
    a.e("s_add_u32 s58, s58, s50")
    a.e("s_waitcnt lgkmcnt(0)")
    a.stamp()
    srd(a, SV, 8, 33554432)
    srd(a, SX, 4, 786432)
    WQ = lambda s, i: 96 + 32 * s + 4 * i
    KA = lambda kt, u: 128 + 16 * kt + 4 * u
    VA = lambda p, i: 32*p + 4*i
    def Vld(p, i, cnt=True):
        def f():
            x = f"buffer_load_dwordx4 {R('a', VA(p,i))}, v{vV}, s[{SV}:{SV+3}], s{60+p} offen offset:{256*i}{NT}"
            if cnt: a.vmem(x, f"v{p}")
            else: a.e(x)
        return f
    def Wld(s, i):
        def f():
            a.vmem(f"buffer_load_dwordx4 {R('v', WQ(s,i))}, v{vWQ}, s[{SWQ}:{SWQ+3}], s58 offen", f"a{s}")
            a.e(f"s_add_u32 s58, s58, {8192 if i < 7 else 8192*25}")
        return f
    def Xld(n):
        def f():
            a.vmem(f"buffer_load_dwordx4 v{vXD + n%4}, s[{SX}:{SX+3}], s{52+n//4} offen lds", "x")
            a.e("s_add_u32 m0, m0, 1024")
            a.e("s_nop 0")
        return f
    def Kdma(kt):
        a.e(f"s_add_u32 m0, s59, {(kt%3)*4096}")
        a.e(f"s_add_u32 s50, s{60+kt//2}, {1024*(kt%2)}")
        for n in range(4):
            a.vmem(f"buffer_load_dwordx4 v{vKD+n}, s[{SK}:{SK+3}], s50 offen{NT} lds", f"k{kt}")
            if n < 3:
                a.e("s_add_u32 m0, m0, 1024")
                a.e("s_nop 0")
    def Kread(kt):
        a.wait_vm(f"k{kt}")
        for u in range(4):
            a.ds(f"ds_read_b128 {R('a', KA(kt,u))}, v{vXR+u} offset:{24576 + (kt%3)*4096}", f"kr{kt}")
    def Kservice(kt):
        Kread(kt)
        if kt + 3 < 8:
            a.wait_lg(f"kr{kt}")
            Kdma(kt + 3)
    Vall = [(p, i) for p in range(4) for i in range(8)]
    Vcom, Vcond = Vall[:32-NEARLY], Vall[32-NEARLY:]
    def take(q, n):
        r = q[:n]; del q[:n]; return r
    if NEARLY:
        a.e(f"s_cmp_eq_u32 s{sGRP}, 0")
        a.e("s_cbranch_scc1 K1_NOEARLY")
        for p, i in Vcond: Vld(p, i, False)()
        a.lab("K1_NOEARLY")
    for n in range(24): Xld(n)()
    srd(a, SWQ, 10, 4194304)
    for s in range(4):
        for i in range(8): Wld(s, i)()
    srd(a, SWO, 12, 4194304)
    srd(a, SK, 6, 33554432)
    srd(a, SWS, 18, 268435456)
    a.e("s_lshl_b32 s50, s45, 17")
    a.e("s_lshl_b32 s51, s46, 15")
    a.e("s_add_u32 s50, s50, s51")
    a.e("s_lshl_b32 s51, s44, 7")
    a.e("s_add_u32 s50, s50, s51")
    a.e("s_add_u32 s51, s50, 4096")
    WOR = 224
    a.stamp()
    XF = lambda t: 128 + 4*t
    def rdX(s, t):
        return lambda: a.ds(f"ds_read_b128 {R('a', XF(t))}, v{vXR+s} offset:{t*4096}", f"x{s}_{t}")
    a.wait_vm("x")
    for t in range(6): rdX(0, t)()
    a.stamp()
    a.e(f"v_mov_b32 v248, v{vWO}")
    a.e(f"v_mov_b32 v{vWQ}, v{vWS}")
    def Qacc(t, j):
        return ('v', (t*8 + j)*4) if t < 3 else ('a', 160 + ((t-3)*8 + j)*4)
    TB = [224, 232]
    def perms(raw, tb):
        out = []
        for e in range(2):
            for z in range(4):
                out.append(f"v_perm_b32 v{tb+4*e+z}, v{raw(2*z+1)}, v{raw(2*z)}, s{selHi if e else selLo}")
        return out
    for s in range(4):
        a.wait_vm(f"a{s}")
        for x in perms(lambda i: WQ(s, i) + 0, TB[0]): a.e(x)
        a.nop(2)
        for w in range(4):
            tb = TB[w % 2]
            mf = []
            for t in range(6):
                if w == 0:
                    mf.append(lambda s=s, t=t: a.wait_lg(f"x{s}_{t}"))
                for e in range(2):
                    j = 2*w + e
                    k, b = Qacc(t, j)
                    cin = "0" if s == 0 else R(k, b)
                    mf.append(f"v_mfma_f32_16x16x32_bf16 {R(k,b)}, {R('v', tb+4*e)}, {R('a', XF(t))}, {cin}")
                if w == 3 and s < 3:
                    mf.append(rdX(s+1, t))
            va = perms(lambda i: WQ(s, i) + w + 1, TB[(w+1) % 2]) if w < 3 else []
            interleave2(a, mf, va, [], lastfree=3)
        if s == 0:
            for i in range(8):
                so = 50 if i < 4 else 51
                a.vmem(f"buffer_load_dwordx2 v[{96+2*i}:{97+2*i}], v248, s[{SWO}:{SWO+3}], s{so} offen offset:{(i%4)*1024}", "wo")
            for kt in range(3): Kdma(kt)
    a.e("s_lshl_b32 s50, s44, 6")
    a.e("s_add_u32 s50, s50, s45")
    a.e("s_lshl_b32 s50, s50, 13")
    a.e("s_lshl_b32 s51, s46, 8")
    a.e("s_add_u32 s50, s50, s51")
    a.e(f"s_add_u32 s50, s50, {WS_W}")
    a.wait_vm("wo")
    for e in range(4):
        for z in range(4):
            sel = selLo if e % 2 == 0 else selHi
            a.e(f"v_perm_b32 v{112+4*e+z}, v{96+2*(2*z+1)+e//2}, v{96+2*(2*z)+e//2}, s{sel}")
    for e in range(4):
        a.vmem(f"buffer_store_dwordx4 {R('v', 112+4*e)}, v{vWQ}, s[{SWS}:{SWS+3}], s50 offen offset:{16*e}", "wst")
    a.stamp()
    def send_bases(stride, slotoff):
        for d in range(1, 4):
            a.e(f"s_xor_b32 s50, s46, {d}")
            a.e(f"s_mul_i32 s50, s50, {stride}")
            a.e(f"s_add_u32 s50, s50, {slotoff[d]}")
            a.e(f"v_add_u32 v{223+d}, s50, v{vL16}")
            a.e(f"v_lshrrev_b32 v{226+d}, 1, v{vL16}")
            a.e(f"v_add_u32 v{226+d}, s50, v{226+d}")
        a.e(f"s_mul_i32 s50, s46, {stride}")
        a.e(f"v_add_u32 v230, s50, v{vL16}")
        a.e(f"v_lshrrev_b32 v231, 1, v{vL16}")
        a.e(f"v_add_u32 v231, s50, v231")
    WHOLE = {1: 2, 2: 3, 3: 5}
    HALF = {1: (1, 1), 2: (4, 0), 3: (4, 1)}
    def send(acc, d):
        for j in range(8):
            k, b = acc(WHOLE[d], j)
            a.ds(f"ds_write_b128 v{223+d}, {R(k,b)} offset:{j*1024}", "w")
        t, hp = HALF[d]
        for j in range(8):
            k, b = acc(t, j)
            a.ds(f"ds_write_b64 v{226+d}, {R(k,b+2*hp,2)} offset:{8192 + j*512}", "w")
    def recv_rd(d, off, ib):
        for j in range(8):
            a.ds(f"ds_read_b128 {R('v', ib+4*j)}, v230 offset:{off + j*1024}", f"rw{d}")
        for j in range(8):
            a.ds(f"ds_read_b64 {R('v', ib+32+2*j, 2)}, v231 offset:{off + 8192 + j*512}", f"rh{d}")
    def recv_add(acc, d, ib):
        sw = 2 if d % 2 else 0
        a.wait_lg(f"rw{d}")
        for j in range(8):
            _, b = acc(0, j)
            for r in (0, 2):
                a.e(f"v_pk_add_f32 {R('v',b+r,2)}, {R('v',b+r,2)}, {R('v',ib+4*j+(r^sw),2)}")
        a.wait_lg(f"rh{d}")
        for j in range(8):
            _, b = acc(1, j)
            a.e(f"v_pk_add_f32 {R('v',b,2)}, {R('v',b,2)}, {R('v',ib+32+2*j,2)}")
    send_bases(WREG, {1: 0, 2: 12288, 3: 0})
    a.e("s_barrier")
    send(Qacc, 1); send(Qacc, 2)
    a.wait_lg0()
    a.e("s_barrier")
    recv_rd(1, 0, 128); recv_rd(2, 12288, 176)
    recv_add(Qacc, 1, 128); recv_add(Qacc, 2, 176)
    a.e("s_barrier")
    send(Qacc, 3)
    Kservice(0)
    a.wait_lg0()
    a.e("s_barrier")
    recv_rd(3, 0, 128)
    a.e(f"v_add_u32 v232, s{sQ}, v{vQWa}")
    a.e(f"v_add_u32 v233, s{sQ}, v{vQWb}")
    a.e(f"v_add_u32 v234, s{sQ+1}, v{vQWa}")
    recv_add(Qacc, 3, 128)
    def pack(acc, t, r, d):
        for z in range(4):
            a.e(f"v_cvt_pk_bf16_f32 v{d+z}, v{acc(t,2*z)[1]+r}, v{acc(t,2*z+1)[1]+r}")
    OWN = [(0, 0), (0, 1), (0, 2), (0, 3), (1, 0), (1, 1)]
    for n, (t, r) in enumerate(OWN):
        pack(Qacc, t, r, 176 + 4*n)
        ad = 234 if t == 1 else (232 if r < 2 else 233)
        a.ds(f"ds_write_b128 v{ad}, {R('v', 176+4*n)} offset:{256*(r%2)}", "qw")
    Kservice(1)
    a.wait_lg0()
    a.e("s_barrier")
    a.stamp()
    SB = lambda kt, t: ((kt % 2)*4 + kt//2)*24 + 4*t
    QF = [192, 208]
    def rdQ(t, buf, tag):
        a.e(f"v_add_u32 v{224+buf}, s{sQ+t}, v{vL16}")
        for u in range(4):
            a.ds(f"ds_read_b128 {R('v', QF[buf]+4*u)}, v{224+buf} offset:{u*1024}", tag)
    Vq = [Vld(p, i) for p, i in Vcom]
    step = 0
    rdQ(0, 0, "q0")
    for G in range(4):
        if G > 0:
            Kservice(2*G); Kservice(2*G+1)
            a.wait_lg(f"kr{2*G+1}")
        for t in range(6):
            nt_ = (step + 1)
            if nt_ < 24:
                rdQ(nt_ % 6, nt_ % 2, f"q{nt_}")
            a.wait_lg(f"q{step}")
            for kt in range(2*G, 2*G+2):
                for u in range(4):
                    cin = "0" if u == 0 else R('v', SB(kt, t))
                    a.e(f"v_mfma_f32_16x16x32_bf16 {R('v', SB(kt,t))}, {R('a', KA(kt,u))}, {R('v', QF[step%2]+4*u)}, {cin}")
            if G >= 2:
                for f in take(Vq, 1): f()
            step += 1
    for f in take(Vq, 99): f()
    a.nop(8)
    a.stamp()
    Vc = list(Vcond)
    cc = [0]
    def condV(n):
        g_ = take(Vc, n)
        if not g_: return
        cc[0] += 1
        a.e(f"s_cmp_lg_u32 s{sGRP}, 0")
        a.e(f"s_cbranch_scc1 K1_CV{cc[0]}")
        for p, i in g_: Vld(p, i)()
        a.lab(f"K1_CV{cc[0]}")
    cs = math.log2(math.e) / math.sqrt(128.0)
    a.e(f"s_mov_b32 s50, 0x{f32bits(cs):08x}")
    a.e(f"s_mov_b32 s51, 0x{f32bits(cs):08x}")
    vM = 224
    for t in range(6):
        vals = [SB(kt, t) + r for kt in range(8) for r in range(4)]
        m = vM + 2*t
        a.e(f"v_add_u32 v236, s{sT+t}, v{vST}")
        a.e(f"v_max3_f32 v{m}, v{vals[0]}, v{vals[1]}, v{vals[2]}")
        a.e(f"v_max3_f32 v{m+1}, v{vals[3]}, v{vals[4]}, v{vals[5]}")
        for i in range(6, 30, 4):
            a.e(f"v_max3_f32 v{m}, v{m}, v{vals[i]}, v{vals[i+1]}")
            a.e(f"v_max3_f32 v{m+1}, v{m+1}, v{vals[i+2]}, v{vals[i+3]}")
        a.e(f"v_max3_f32 v{m}, v{m}, v{vals[30]}, v{vals[31]}")
        a.e(f"v_max_f32 v{m}, v{m}, v{m+1}")
        a.ds(f"ds_write_b32 v236, v{m}", "mw")
    condV(2)
    a.wait_lg0()
    a.e("s_barrier")
    for t0 in range(0, 6, 2):
        for tt in range(2):
            a.e(f"v_add_u32 v{236+tt}, s{sT+t0+tt}, v{vSR}")
            for x in range(4):
                a.ds(f"ds_read_b128 {R('v', 192+16*tt+4*x)}, v{236+tt} offset:{16*x}", f"g{t0+tt}")
        for tt in range(2):
            a.wait_lg(f"g{t0+tt}")
            b = 192 + 16*tt
            d = vM + 2*(t0 + tt)
            a.e(f"v_max3_f32 v{d}, v{b}, v{b+1}, v{b+2}")
            for i in range(3, 15, 2):
                a.e(f"v_max3_f32 v{d}, v{d}, v{b+i}, v{b+i+1}")
            a.e(f"v_max_f32 v{d}, v{d}, v{b+15}")
            a.e(f"v_mul_f32 v{d}, s50, v{d}")
    condV(2)
    for r in range(4):
        a.e(f"v_mov_b32 v{192+r}, 0x3f803f80")
    PB = lambda t, p: 24*p + 4*t
    SUM = lambda t: 196 + 4*t
    for t in range(6):
        vals = [SB(kt, t) + r for kt in range(8) for r in range(4)]
        m = vM + 2*t
        for x in vals[::2]:
            a.e(f"v_pk_fma_f32 {R('v',x,2)}, {R('v',x,2)}, s[50:51], {R('v',m,2)} op_sel_hi:[1,1,0] neg_lo:[0,0,1] neg_hi:[0,0,1]")
        for i, x in enumerate(vals):
            a.e(f"v_exp_f32 v{x}, v{x}")
        condV(2)
        a.e("s_nop 0")
        for p in range(4):
            e0, e1 = SB(2*p, t), SB(2*p+1, t)
            a.e(f"v_cvt_pk_bf16_f32 v{e0}, v{e0}, v{e0+1}")
            a.e(f"v_cvt_pk_bf16_f32 v{e0+1}, v{e0+2}, v{e0+3}")
            a.e(f"v_cvt_pk_bf16_f32 v{e0+2}, v{e1}, v{e1+1}")
            a.e(f"v_cvt_pk_bf16_f32 v{e0+3}, v{e1+2}, v{e1+3}")
        if t > 0:
            for p in range(4):
                cin = "0" if p == 0 else R('v', SUM(t-1))
                a.e(f"v_mfma_f32_16x16x32_bf16 {R('v', SUM(t-1))}, v[192:195], {R('v', PB(t-1,p))}, {cin}")
    condV(99)
    a.nop(2)
    for p in range(4):
        cin = "0" if p == 0 else R('v', SUM(5))
        a.e(f"v_mfma_f32_16x16x32_bf16 {R('v', SUM(5))}, v[192:195], {R('v', PB(5,p))}, {cin}")
    for t in range(6):
        a.e(f"v_add_u32 v{232+t}, s{sT+t}, v{vST}")
    a.nop(4)
    for t in range(6):
        a.ds(f"ds_write_b32 v{232+t}, v{SUM(t)} offset:6144", "sw")
    a.stamp()
    def Oacc(t, j):
        return ('v', 96 + (t*8 + j)*4) if t < 2 else ('a', 128 + ((t-2)*8 + j)*4)
    RW = 160
    TC = [168, 176]
    def vstage(p, w, tb):
        out = [f"v_accvgpr_read_b32 v{RW+i}, a{VA(p,i)+w}" for i in range(8)]
        return out + perms(lambda i: RW + i, tb)
    ncond = len(Vcond)
    for p in range(4):
        idx = max(i for i, t_ in enumerate(a.vm) if t_ == f"v{p}")
        nA = len(a.vm) - 1 - idx
        nB = max(nA - ncond, 0)
        if nA != nB and (p+1)*8 <= 32 - ncond:
            a.e(f"s_cmp_lg_u32 s{sGRP}, 0")
            a.e(f"s_cbranch_scc0 K1_WA{p}")
            a.e(f"s_waitcnt vmcnt({nB})")
            a.lab(f"K1_WA{p}")
        elif nA != nB and p*8 < 32 - ncond:
            a.e(f"s_cmp_lg_u32 s{sGRP}, 0")
            a.e(f"s_cbranch_scc0 K1_WA{p}")
            a.e(f"s_waitcnt vmcnt(0)")
            a.lab(f"K1_WA{p}")
        a.e(f"s_waitcnt vmcnt({nA})")
        for x in vstage(p, 0, TC[0]): a.e(x)
        a.nop(2)
        for w in range(4):
            tb = TC[w % 2]
            mf = []
            for e in range(2):
                j = 2*w + e
                for t in range(6):
                    k, b = Oacc(t, j)
                    cin = "0" if p == 0 else R(k, b)
                    mf.append(f"v_mfma_f32_16x16x32_bf16 {R(k,b)}, {R('v', tb+4*e)}, {R('v', PB(t,p))}, {cin}")
            va = vstage(p, w+1, TC[(w+1) % 2]) if w < 3 else []
            interleave(a, mf, va)
        if p == 0:
            send_bases(WREG, {1: 0, 2: 12288, 3: 24576})
            a.e("s_lshl_b32 s50, s44, 6")
            a.e("s_add_u32 s50, s50, s45")
            a.e("s_mul_i32 s50, s50, 12288")
            for t in range(2):
                a.e(f"s_cmp_ge_u32 s{sT+t}, 3072")
                a.e(f"s_cselect_b32 s51, {393216-3072}, 0")
                a.e(f"s_add_u32 s{52+t}, s50, s51")
                a.e(f"s_add_u32 s{52+t}, s{52+t}, s{sT+t}")
            a.e("s_and_b32 s54, s46, 1")
            a.e("s_mul_i32 s54, s54, 6144")
            a.e("s_sub_u32 s55, 6144, s54")
            a.e("s_add_u32 s56, s52, s55")
            a.e("s_add_u32 s52, s52, s54")
            a.e("s_add_u32 s53, s53, s54")
            a.e(f"v_add_u32 v232, s{sT}, v{vSR}")
            a.e(f"v_add_u32 v233, s{sT+1}, v{vSR}")
    a.stamp()
    a.nop(8)
    for d in (1, 2, 3): send(Oacc, d)
    a.wait_lg0()
    a.e("s_barrier")
    for n in range(2):
        for wv in range(4):
            a.ds(f"ds_read_b32 v{208+4*n+wv}, v{232+n} offset:{6144 + 16*wv}", "sr")
    recv_rd(1, 0, 0); recv_rd(2, 12288, 48); recv_rd(3, 24576, 160)
    recv_add(Oacc, 1, 0)
    for n in range(2):
        b = 208 + 4*n
        a.e(f"v_add_f32 v{b}, v{b}, v{b+1}")
        a.e(f"v_add_f32 v{b+2}, v{b+2}, v{b+3}")
        a.e(f"v_add_f32 v{b}, v{b}, v{b+2}")
        a.e(f"v_rcp_f32 v{b}, v{b}")
    recv_add(Oacc, 2, 48); recv_add(Oacc, 3, 160)
    for j in range(8):
        for r in (0, 2):
            b = Oacc(0, j)[1] + r
            a.e(f"v_pk_mul_f32 {R('v',b,2)}, {R('v',b,2)}, v[208:209] op_sel_hi:[1,0]")
        b = Oacc(1, j)[1]
        a.e(f"v_pk_mul_f32 {R('v',b,2)}, {R('v',b,2)}, v[212:213] op_sel_hi:[1,0]")
    for n, (t, r) in enumerate(OWN):
        pack(Oacc, t, r, 4*n)
        so = 53 if t == 1 else (52 if r < 2 else 56)
        a.vmem(f"buffer_store_dwordx4 {R('v', 4*n)}, v{vL16}, s[{SWS}:{SWS+3}], s{so} offen offset:{3072*(r%2)}", "ost")
    a.stamp()
    a.dump_stamps(SWS, 46)
    a.lab("K1_END")
    a.e("s_endpgm")
    return a

def kernel2(D=12):
    a = Asm()
    SWS, SO = 20, 24
    a.e("s_cmp_ge_u32 s2, 256")
    a.e("s_cbranch_scc1 K2_END")
    a.e("s_load_dwordx2 s[4:5], s[0:1], 40")
    a.e("s_load_dwordx2 s[6:7], s[0:1], 56")
    a.e("v_lshrrev_b32 v1, 6, v0")
    a.e("v_and_b32 v2, 63, v0")
    a.e("v_readfirstlane_b32 s46, v1")
    a.e("v_lshlrev_b32 v255, 4, v2")
    a.e("s_and_b32 s50, s2, 7")
    a.e("s_lshr_b32 s51, s2, 3")
    a.e("s_lshr_b32 s44, s50, 1")
    a.e("s_lshl_b32 s44, s44, 2")
    a.e("s_lshr_b32 s52, s51, 3")
    a.e("s_add_u32 s44, s44, s52")
    a.e("s_and_b32 s45, s50, 1")
    a.e("s_lshl_b32 s45, s45, 3")
    a.e("s_and_b32 s52, s51, 7")
    a.e("s_add_u32 s45, s45, s52")
    a.e("s_lshl_b32 s52, s46, 5")
    a.e("s_lshl_b32 s53, s44, 7")
    a.e("s_add_u32 s53, s53, s52")
    a.e("s_mul_i32 s53, s53, 3072")
    a.e("s_lshl_b32 s54, s45, 7")
    a.e("s_add_u32 s54, s54, s52")
    a.e("s_lshl_b32 s54, s54, 11")
    a.e(f"s_add_u32 s54, s54, {WS_W}")
    a.e("v_and_b32 v3, 15, v2")
    a.e("v_lshrrev_b32 v4, 4, v2")
    a.e("v_lshlrev_b32 v4, 4, v4")
    a.e("v_lshl_add_u32 v254, v3, 10, v4")
    a.e("s_waitcnt lgkmcnt(0)")
    srd(a, SWS, 6, 268435456)
    srd(a, SO, 4, 786432)
    def ld(ks):
        b = 20*(ks % D)
        for x in range(2):
            a.vmem(f"buffer_load_dwordx4 {R('v', b+4*x)}, v255, s[{SWS}:{SWS+3}], s54 offen offset:{1024*x}", f"k{ks}")
        for x in range(3):
            a.vmem(f"buffer_load_dwordx4 {R('v', b+8+4*x)}, v255, s[{SWS}:{SWS+3}], s53 offen offset:{1024*x}", f"k{ks}")
        a.e("s_add_u32 s54, s54, 2048")
        a.e("s_add_u32 s53, s53, 3072")
    for ks in range(D): ld(ks)
    for ks in range(32):
        b = 20*(ks % D)
        a.wait_vm(f"k{ks}")
        for x in range(2):
            for tt in range(3):
                acc = R('a', 4*(tt*2 + x))
                cin = "0" if ks == 0 else acc
                a.e(f"v_mfma_f32_16x16x32_bf16 {acc}, {R('v', b+4*x)}, {R('v', b+8+4*tt)}, {cin}")
        if ks + D < 32:
            ld(ks + D)
    a.e("s_mul_i32 s52, s46, 6144")
    a.e("v_add_u32 v253, s52, v255")
    a.e("s_lshl_b32 s52, s46, 11")
    a.e("v_add_u32 v252, s52, v255")
    a.nop(8)
    for u in range(6):
        a.ds(f"ds_write_b128 v253, {R('a', 4*u)} offset:{1024*u}", "w")
    a.wait_lg0()
    a.e("s_barrier")
    a.e("s_cmp_eq_u32 s46, 3")
    a.e("s_cbranch_scc1 K2_END")
    for s in range(4):
        for x in range(2):
            a.ds(f"ds_read_b128 {R('v', 8*s+4*x)}, v252 offset:{6144*s + 1024*x}", "r")
    a.e("s_mul_i32 s52, s44, 49152")
    a.e("s_lshl_b32 s53, s46, 14")
    a.e("s_add_u32 s52, s52, s53")
    a.e("s_lshl_b32 s53, s45, 6")
    a.e("s_add_u32 s52, s52, s53")
    a.wait_lg0()
    for i in range(8):
        a.e(f"v_add_f32 v{i}, v{i}, v{8+i}")
        a.e(f"v_add_f32 v{16+i}, v{16+i}, v{24+i}")
    for i in range(8):
        a.e(f"v_add_f32 v{i}, v{i}, v{16+i}")
    for i in range(4):
        a.e(f"v_cvt_pk_bf16_f32 v{32+i}, v{2*i}, v{2*i+1}")
    a.vmem(f"buffer_store_dwordx4 v[32:35], v254, s[{SO}:{SO+3}], s52 offen", "o")
    a.lab("K2_END")
    a.e("s_endpgm")
    return a

def desc(name, nfv, acc):
    return f""".amdhsa_kernel {name}
  .amdhsa_next_free_vgpr {nfv}
  .amdhsa_next_free_sgpr 102
  .amdhsa_accum_offset {acc}
  .amdhsa_group_segment_fixed_size 0
  .amdhsa_kernarg_size 64
  .amdhsa_user_sgpr_count 2
  .amdhsa_user_sgpr_kernarg_segment_ptr 1
  .amdhsa_system_sgpr_workgroup_id_x 1
.end_amdhsa_kernel"""

def main():
    hdr = open("cdna_kernels/" + NAME + ".s.ref").read().split("\n")
    top = [l for l in hdr if l.startswith(";") and "@launch" not in l and "Override" not in l and "grid=ceil" not in l]
    out = list(top)
    out.append(f"; @launch kernel={K1} grid=(256,1,1) block=(256,1,1) lds=159744")
    out.append(f"; @launch kernel={K2} grid=(256,1,1) block=(256,1,1) lds=24576")
    out.append('.amdgcn_target "amdgcn-amd-amdhsa--gfx950"')
    out.append(".text")
    for name, k in ((K1, kernel1()), (K2, kernel2())):
        out += [f".globl {name}", ".p2align 8", f".type {name},@function", f"{name}:"]
        out += k.L
    out += ['.section .rodata,"a"', ".p2align 6", desc(K1, 512, 256), ".p2align 6", desc(K2, 280, 256)]
    path = sys.argv[1] if len(sys.argv) > 1 else "cdna_kernels/" + NAME + ".s"
    open(path, "w").write("\n".join(out) + "\n")

main()
```

```python
import sys, math, struct

NAME = "standalone__gqa_block_cached__near_ridge"
K1 = NAME + "_kernel"
K2 = "oproj_kernel"
import os
STAMP = bool(os.environ.get("STAMP"))
STAMP_OFF = 0
WS_W = 8 * 1024 * 1024

def f32bits(x):
    return struct.unpack("<I", struct.pack("<f", x))[0]

class Asm:
    def __init__(self):
        self.L = []
        self.vm = []
        self.lg = []
        self.ns = 0
        self.vmB = []
        self.cur = None
        self.nl = 0
    def e(self, s):
        self.L.append("    " + s)
    def lab(self, s):
        self.L.append(s + ":")
    def c(self, s):
        self.L.append("    ; " + s)
    def vmem(self, s, tag):
        self.e(s)
        if self.cur in (None, 0): self.vm.append(tag)
        if self.cur in (None, 1): self.vmB.append(tag)
    def only(self, g, fn):
        self.nl += 1
        L = f"K1_G{self.nl}"
        self.e(f"s_cmp_lg_u32 s47, {g}")
        self.e(f"s_cbranch_scc1 {L}")
        self.cur = g
        lg = list(self.lg)
        fn()
        self.e("s_waitcnt lgkmcnt(0)") if self.lg != lg else None
        self.lg = lg
        self.cur = None
        self.lab(L)
    def ds(self, s, tag):
        self.e(s); self.lg.append(tag)
    def wait_vm(self, tag):
        def cnt(l):
            idx = max(i for i, t in enumerate(l) if t == tag)
            return min(len(l) - 1 - idx, 63)
        if self.cur is not None:
            self.e(f"s_waitcnt vmcnt({cnt(self.vm if self.cur == 0 else self.vmB)})"); return
        nA, nB = cnt(self.vm), cnt(self.vmB)
        if nA != nB:
            g = 0 if nA < nB else 1
            self.nl += 1
            L = f"K1_G{self.nl}"
            self.e(f"s_cmp_lg_u32 s47, {g}")
            self.e(f"s_cbranch_scc1 {L}")
            self.e(f"s_waitcnt vmcnt({min(nA,nB)})")
            self.lab(L)
        self.e(f"s_waitcnt vmcnt({max(nA,nB)})")
    def wait_lg(self, tag):
        idx = max(i for i, t in enumerate(self.lg) if t == tag)
        n = min(len(self.lg) - 1 - idx, 15)
        self.e(f"s_waitcnt lgkmcnt({n})")
    def wait_lg0(self):
        self.e("s_waitcnt lgkmcnt(0)")
    def stamp(self):
        if not STAMP: return
        k = self.ns; self.ns += 1
        self.e(f"s_memtime s[{64+2*k}:{65+2*k}]")
        self.e("s_waitcnt lgkmcnt(0)")
    def dump_stamps(self, srd_, wave_s):
        if not STAMP: return
        self.e("s_lshl_b32 s50, s2, 2")
        self.e(f"s_add_u32 s50, s50, s{wave_s}")
        self.e("s_lshl_b32 s50, s50, 7")
        self.e(f"s_add_u32 s50, s50, {16*1024*1024 + STAMP_OFF}")
        self.e("v_mov_b32 v1, 0")
        for k in range(self.ns):
            self.e(f"v_mov_b32 v2, s{64+2*k}")
            self.e(f"buffer_store_dword v2, v1, s[{srd_}:{srd_+3}], s50 offen offset:{4*k}")
            self.e("s_nop 1")
    def nop(self, n):
        while n > 0:
            k = min(n, 16)
            self.e(f"s_nop {k-1}")
            n -= k

def R(kind, b, n=4):
    return f"{kind}[{b}:{b+n-1}]" if n > 1 else f"{kind}{b}"

def srd(a, d, p, nbytes):
    a.e(f"s_mov_b32 s{d}, s{p}")
    a.e(f"s_and_b32 s{d+1}, s{p+1}, 0xffff")
    a.e(f"s_mov_b32 s{d+2}, {nbytes}")
    a.e(f"s_mov_b32 s{d+3}, 0x00020000")

def interleave(a, mf, va, maxper=2, lastfree=2):
    va = list(va)
    n = len(mf)
    slots = max(n - lastfree, 1)
    per = -(-len(va) // slots) if va else 0
    for i, m in enumerate(mf):
        a.e(m)
        if i < slots:
            for _ in range(per):
                if va: a.e(va.pop(0))
    assert not va

def interleave2(a, mf, va, ld, lastfree=2):
    va = list(va); ld = list(ld)
    n = len(mf)
    slots = max(n - lastfree, 1)
    per = -(-len(va) // slots) if va else 0
    nl = len(ld)
    done = 0
    for i, m in enumerate(mf):
        if callable(m): m()
        else: a.e(m)
        if i < slots:
            for _ in range(per):
                if va: a.e(va.pop(0))
        while done < nl and (done + 0.5) * n <= (i + 1) * nl:
            ld[done](); done += 1
    while done < nl:
        ld[done](); done += 1
    assert not va

def kernel1():
    a = Asm()
    SX, SK, SV, SWQ, SWO, SWS = 20, 24, 28, 32, 36, 40
    selLo, selHi = 48, 49
    NT = " nt" if os.environ.get("NT", "1") == "1" else ""
    NEARLY = int(os.environ.get("NEARLY", "16"))
    vL16, vV, vST, vSR, vWQ = 255, 254, 253, 252, 251
    vQWa, vQWb = 250, 249
    vXR = 240
    vKD = 244
    vWO, vWS = 40, 41
    vXD = 44
    sQ, sT = 84, 90
    sGRP = 47
    WREG = 36864
    a.e("s_cmp_ge_u32 s2, 256")
    a.e("s_cbranch_scc1 K1_END")
    a.e("s_load_dwordx16 s[4:19], s[0:1], 0")
    a.e("v_lshrrev_b32 v33, 6, v0")
    a.e("v_and_b32 v34, 63, v0")
    a.e("v_readfirstlane_b32 s46, v33")
    a.e("v_and_b32 v35, 15, v34")
    a.e("v_lshrrev_b32 v36, 4, v34")
    a.e("s_lshr_b32 s44, s2, 5")
    a.e("s_and_b32 s50, s2, 7")
    a.e("s_lshl_b32 s50, s50, 2")
    a.e("s_lshr_b32 s51, s2, 3")
    a.e("s_and_b32 s51, s51, 3")
    a.e("s_add_u32 s45, s50, s51")
    a.e(f"s_and_b32 s{sGRP}, s44, 1")
    a.e(f"s_mov_b32 s{selLo}, 0x05040100")
    a.e(f"s_mov_b32 s{selHi}, 0x07060302")
    a.e(f"v_lshlrev_b32 v{vL16}, 4, v34")
    a.e("v_and_b32 v39, 1, v33")
    a.e("v_lshlrev_b32 v39, 1, v39")
    a.e("v_xor_b32 v42, v39, v35")
    a.e("v_lshlrev_b32 v37, 4, v42")
    a.e("v_lshlrev_b32 v38, 4, v35")
    a.e(f"v_lshl_add_u32 v{vWQ}, v36, 16, v37")
    a.e(f"v_lshl_add_u32 v{vV}, v36, 11, v37")
    a.e("v_lshl_add_u32 v42, v36, 10, v38")
    a.e(f"v_lshl_add_u32 v{vQWa}, v39, 8, v42")
    a.e("v_xor_b32 v39, 2, v39")
    a.e(f"v_lshl_add_u32 v{vQWb}, v39, 8, v42")
    a.e("v_lshlrev_b32 v39, 13, v36")
    a.e(f"v_lshl_add_u32 v{vWO}, v35, 3, v39")
    a.e("v_lshrrev_b32 v39, 3, v35")
    a.e("v_lshlrev_b32 v39, 18, v39")
    a.e("v_lshl_add_u32 v39, v36, 11, v39")
    a.e("v_and_b32 v42, 1, v35")
    a.e("v_lshl_add_u32 v39, v42, 10, v39")
    a.e("v_bfe_u32 v42, v35, 1, 2")
    a.e(f"v_lshl_add_u32 v{vWS}, v42, 6, v39")
    a.e("v_lshlrev_b32 v39, 6, v35")
    a.e(f"v_add_u32 v{vSR}, 147456, v39")
    a.e("v_lshl_add_u32 v42, v33, 2, v36")
    a.e(f"v_lshl_add_u32 v{vST}, v42, 2, v{vSR}")
    a.e(f"v_mul_u32_u24 v43, {WREG}, v33")
    a.e("v_lshl_add_u32 v43, v35, 8, v43")
    for n in range(4):
        a.e(f"v_add_u32 v39, {4*n}, v36")
        a.e("v_xor_b32 v42, v39, v35")
        a.e("v_lshlrev_b32 v42, 4, v42")
        a.e(f"v_lshl_add_u32 v{vXD+n}, v39, 10, v42")
        a.e(f"v_add_u32 v{vXR+n}, v43, v42")
        a.e(f"v_add_u32 v39, {8*n}, v36")
        a.e(f"v_lshl_add_u32 v{vKD+n}, v39, 8, v42")
    a.e("s_and_b32 s51, s46, 1")
    a.e("s_lshr_b32 s52, s46, 1")
    a.e("s_mul_i32 s52, s52, 3")
    a.e("s_lshl_b32 s53, s51, 1")
    a.e("s_add_u32 s52, s52, s53")
    a.e("s_lshl_b32 s51, s51, 2")
    a.e("s_add_u32 s51, s51, 1")
    for t in range(1, 6):
        a.e(f"s_add_u32 s{52+t}, s{51+t}, s51")
        a.e(f"s_sub_u32 s50, s{52+t}, 6")
        a.e(f"s_min_u32 s{52+t}, s{52+t}, s50")
    for t in range(6):
        a.e(f"s_lshl_b32 s{sT+t}, s{52+t}, 10")
        a.e(f"s_cmp_ge_u32 s{52+t}, 3")
        a.e(f"s_cselect_b32 s50, 9, 3")
        a.e(f"s_add_u32 s{sQ+t}, s{52+t}, s50")
        a.e(f"s_lshl_b32 s{sQ+t}, s{sQ+t}, 12")
    a.e("s_mul_i32 s50, s44, 98304")
    a.e("s_lshl_b32 s51, s46, 8")
    a.e("s_add_u32 s50, s50, s51")
    for t in range(6):
        a.e(f"s_lshl_b32 s{52+t}, s{52+t}, 14")
        a.e(f"s_add_u32 s{52+t}, s{52+t}, s50")
    a.e("s_lshl_b32 s60, s44, 5")
    a.e("s_add_u32 s60, s60, s45")
    a.e("s_lshl_b32 s60, s60, 17")
    a.e("s_lshl_b32 s59, s46, 15")
    a.e("s_add_u32 s60, s60, s59")
    for p in range(1, 4):
        a.e(f"s_add_u32 s{60+p}, s60, {8192*p}")
    a.e(f"s_mul_i32 s43, s46, {WREG}")
    a.e("s_mov_b32 m0, s43")
    a.e("s_add_u32 s59, s43, 24576")
    a.e("s_lshl_b32 s58, s46, 20")
    a.e("s_lshl_b32 s50, s45, 8")
    a.e("s_add_u32 s58, s58, s50")
    a.e("s_waitcnt lgkmcnt(0)")
    a.stamp()
    srd(a, SV, 8, 33554432)
    srd(a, SX, 4, 786432)
    WQ = lambda s, i: 96 + 32 * s + 4 * i
    KA = lambda kt, u: 16 * kt + 4 * u
    VA = lambda p, i: 128 + 32*p + 4*i
    def Vld(p, i, cnt=True):
        def f():
            x = f"buffer_load_dwordx4 {R('a', VA(p,i))}, v{vV}, s[{SV}:{SV+3}], s{60+p} offen offset:{256*i}{NT}"
            if cnt: a.vmem(x, f"v{p}")
            else: a.e(x)
        return f
    def Wld(s, i):
        def f():
            a.vmem(f"buffer_load_dwordx4 {R('v', WQ(s,i))}, v{vWQ}, s[{SWQ}:{SWQ+3}], s58 offen", f"a{s}")
            a.e(f"s_add_u32 s58, s58, {8192 if i < 7 else 8192*25}")
        return f
    def Xld(n):
        def f():
            a.vmem(f"buffer_load_dwordx4 v{vXD + n%4}, s[{SX}:{SX+3}], s{52+n//4} offen lds", "x")
            a.e("s_add_u32 m0, m0, 1024")
            a.e("s_nop 0")
        return f
    def Kdma(kt):
        a.e(f"s_add_u32 m0, s59, {(kt%3)*4096}")
        a.e(f"s_add_u32 s50, s{60+kt//2}, {1024*(kt%2)}")
        for n in range(4):
            a.vmem(f"buffer_load_dwordx4 v{vKD+n}, s[{SK}:{SK+3}], s50 offen{NT} lds", f"k{kt}")
            if n < 3:
                a.e("s_add_u32 m0, m0, 1024")
                a.e("s_nop 0")
    def Kread(kt):
        a.wait_vm(f"k{kt}")
        for u in range(4):
            a.ds(f"ds_read_b128 {R('a', KA(kt,u))}, v{vXR+u} offset:{24576 + (kt%3)*4096}", f"kr{kt}")
    STAG = int(os.environ.get("STAG", "1"))
    def Kservice(kt):
        def full():
            Kread(kt)
            if kt + 3 < 8:
                a.wait_lg(f"kr{kt}")
                Kdma(kt + 3)
        if not STAG: full()
        elif kt >= 3: a.only(0, full)
        else:
            Kread(kt)
            a.wait_lg(f"kr{kt}")
            a.only(0, lambda: Kdma(kt + 3))
    VqA = [(p, i) for p in range(4) for i in range(8)]
    VqB = list(VqA)
    def Vslot(nA, nB):
        la, lb = take(VqA, nA), take(VqB, nB)
        if not STAG:
            for p, i in la: Vld(p, i)()
            return
        if la: a.only(0, lambda: [Vld(p, i)() for p, i in la])
        if lb: a.only(1, lambda: [Vld(p, i)() for p, i in lb])
    Vall = [(p, i) for p in range(4) for i in range(8)]
    Vcom, Vcond = Vall[:32-NEARLY], Vall[32-NEARLY:]
    def take(q, n):
        r = q[:n]; del q[:n]; return r
    srd(a, SK, 6, 33554432)
    def early():
        for kt in (3, 4, 5): Kdma(kt)
        for kt in range(3, 8):
            Kread(kt)
            if kt + 3 < 8:
                a.wait_lg(f"kr{kt}")
                Kdma(kt + 3)
        a.e("s_mov_b32 m0, s43")
    if STAG: a.only(1, early)
    for n in range(24): Xld(n)()
    srd(a, SWQ, 10, 4194304)
    for s in range(2):
        for i in range(8): Wld(s, i)()
    srd(a, SWO, 12, 4194304)
    srd(a, SWS, 18, 268435456)
    a.e("s_lshl_b32 s50, s45, 17")
    a.e("s_lshl_b32 s51, s46, 15")
    a.e("s_add_u32 s50, s50, s51")
    a.e("s_lshl_b32 s51, s44, 7")
    a.e("s_add_u32 s50, s50, s51")
    a.e("s_add_u32 s51, s50, 4096")
    WOR = 224
    a.stamp()
    XF = lambda t: 128 + 4*t
    def rdX(s, t):
        return lambda: a.ds(f"ds_read_b128 {R('a', XF(t))}, v{vXR+s} offset:{t*4096}", f"x{s}_{t}")
    a.wait_vm("x")
    for t in range(6): rdX(0, t)()
    a.stamp()
    a.e(f"v_mov_b32 v248, v{vWO}")
    a.e(f"v_accvgpr_write_b32 a152, v{vWS}")
    def Qacc(t, j):
        return ('v', (t*8 + j)*4) if t < 3 else ('a', 160 + ((t-3)*8 + j)*4)
    TB = [224, 232]
    def perms(raw, tb):
        out = []
        for e in range(2):
            for z in range(4):
                out.append(f"v_perm_b32 v{tb+4*e+z}, v{raw(2*z+1)}, v{raw(2*z)}, s{selHi if e else selLo}")
        return out
    for s in range(4):
        a.wait_vm(f"a{s}")
        for x in perms(lambda i: WQ(s, i) + 0, TB[0]): a.e(x)
        a.nop(2)
        for w in range(4):
            tb = TB[w % 2]
            mf = []
            for t in range(6):
                if w == 0:
                    mf.append(lambda s=s, t=t: a.wait_lg(f"x{s}_{t}"))
                for e in range(2):
                    j = 2*w + e
                    k, b = Qacc(t, j)
                    cin = "0" if s == 0 else R(k, b)
                    mf.append(f"v_mfma_f32_16x16x32_bf16 {R(k,b)}, {R('v', tb+4*e)}, {R('a', XF(t))}, {cin}")
                if w == 3 and s < 3:
                    mf.append(rdX(s+1, t))
            va = perms(lambda i: WQ(s, i) + w + 1, TB[(w+1) % 2]) if w < 3 else []
            interleave2(a, mf, va, [Wld(s+2, 2*w), Wld(s+2, 2*w+1)] if s < 2 else [], lastfree=3)
        if s == 1:
            for i in range(8):
                so = 50 if i < 4 else 51
                a.vmem(f"buffer_load_dwordx2 v[{96+2*i}:{97+2*i}], v248, s[{SWO}:{SWO+3}], s{so} offen offset:{(i%4)*1024}", "wo")
            for kt in range(3): Kdma(kt)
    a.e("s_lshl_b32 s50, s44, 6")
    a.e("s_add_u32 s50, s50, s45")
    a.e("s_lshl_b32 s50, s50, 13")
    a.e("s_lshl_b32 s51, s46, 8")
    a.e("s_add_u32 s50, s50, s51")
    a.e(f"s_add_u32 s50, s50, {WS_W}")
    a.e(f"v_accvgpr_read_b32 v{vWQ}, a152")
    a.wait_vm("wo")
    for e in range(4):
        for z in range(4):
            sel = selLo if e % 2 == 0 else selHi
            a.e(f"v_perm_b32 v{112+4*e+z}, v{96+2*(2*z+1)+e//2}, v{96+2*(2*z)+e//2}, s{sel}")
    for e in range(4):
        a.vmem(f"buffer_store_dwordx4 {R('v', 112+4*e)}, v{vWQ}, s[{SWS}:{SWS+3}], s50 offen offset:{16*e}", "wst")
    a.stamp()
    def send_bases(stride, slotoff):
        for d in range(1, 4):
            a.e(f"s_xor_b32 s50, s46, {d}")
            a.e(f"s_mul_i32 s50, s50, {stride}")
            a.e(f"s_add_u32 s50, s50, {slotoff[d]}")
            a.e(f"v_add_u32 v{223+d}, s50, v{vL16}")
            a.e(f"v_lshrrev_b32 v{226+d}, 1, v{vL16}")
            a.e(f"v_add_u32 v{226+d}, s50, v{226+d}")
        a.e(f"s_mul_i32 s50, s46, {stride}")
        a.e(f"v_add_u32 v230, s50, v{vL16}")
        a.e(f"v_lshrrev_b32 v231, 1, v{vL16}")
        a.e(f"v_add_u32 v231, s50, v231")
    WHOLE = {1: 2, 2: 3, 3: 5}
    HALF = {1: (1, 1), 2: (4, 0), 3: (4, 1)}
    def send(acc, d):
        for j in range(8):
            k, b = acc(WHOLE[d], j)
            a.ds(f"ds_write_b128 v{223+d}, {R(k,b)} offset:{j*1024}", "w")
        t, hp = HALF[d]
        for j in range(8):
            k, b = acc(t, j)
            a.ds(f"ds_write_b64 v{226+d}, {R(k,b+2*hp,2)} offset:{8192 + j*512}", "w")
    def recv_rd(d, off, ib):
        for j in range(8):
            a.ds(f"ds_read_b128 {R('v', ib+4*j)}, v230 offset:{off + j*1024}", f"rw{d}")
        for j in range(8):
            a.ds(f"ds_read_b64 {R('v', ib+32+2*j, 2)}, v231 offset:{off + 8192 + j*512}", f"rh{d}")
    def recv_add(acc, d, ib):
        sw = 2 if d % 2 else 0
        a.wait_lg(f"rw{d}")
        for j in range(8):
            _, b = acc(0, j)
            for r in (0, 2):
                a.e(f"v_pk_add_f32 {R('v',b+r,2)}, {R('v',b+r,2)}, {R('v',ib+4*j+(r^sw),2)}")
        a.wait_lg(f"rh{d}")
        for j in range(8):
            _, b = acc(1, j)
            a.e(f"v_pk_add_f32 {R('v',b,2)}, {R('v',b,2)}, {R('v',ib+32+2*j,2)}")
    send_bases(WREG, {1: 0, 2: 12288, 3: 0})
    a.e("s_barrier")
    send(Qacc, 1); send(Qacc, 2)
    Kservice(0)
    a.wait_lg0()
    a.e("s_barrier")
    recv_rd(1, 0, 128); recv_rd(2, 12288, 176)
    recv_add(Qacc, 1, 128); recv_add(Qacc, 2, 176)
    a.e("s_barrier")
    send(Qacc, 3)
    Kservice(1)
    a.wait_lg0()
    Vslot(0, 6)
    a.e("s_barrier")
    recv_rd(3, 0, 128)
    a.e(f"v_add_u32 v232, s{sQ}, v{vQWa}")
    a.e(f"v_add_u32 v233, s{sQ}, v{vQWb}")
    a.e(f"v_add_u32 v234, s{sQ+1}, v{vQWa}")
    recv_add(Qacc, 3, 128)
    def pack(acc, t, r, d):
        for z in range(4):
            a.e(f"v_cvt_pk_bf16_f32 v{d+z}, v{acc(t,2*z)[1]+r}, v{acc(t,2*z+1)[1]+r}")
    OWN = [(0, 0), (0, 1), (0, 2), (0, 3), (1, 0), (1, 1)]
    for n, (t, r) in enumerate(OWN):
        pack(Qacc, t, r, 176 + 4*n)
        ad = 234 if t == 1 else (232 if r < 2 else 233)
        a.ds(f"ds_write_b128 v{ad}, {R('v', 176+4*n)} offset:{256*(r%2)}", "qw")
    Kservice(2)
    a.wait_lg0()
    a.e("s_barrier")
    a.stamp()
    SB = lambda kt, t: ((kt % 2)*4 + kt//2)*24 + 4*t
    QF = [192, 208]
    def rdQ(t, buf, tag):
        a.e(f"v_add_u32 v{224+buf}, s{sQ+t}, v{vL16}")
        for u in range(4):
            a.ds(f"ds_read_b128 {R('v', QF[buf]+4*u)}, v{224+buf} offset:{u*1024}", tag)
    step = 0
    rdQ(0, 0, "q0")
    for G in range(4):
        if G > 0:
            if G > 1: Kservice(2*G)
            Kservice(2*G+1)
            if not STAG: a.wait_lg(f"kr{2*G+1}")
        for t in range(6):
            nt_ = (step + 1)
            if nt_ < 24:
                rdQ(nt_ % 6, nt_ % 2, f"q{nt_}")
            a.wait_lg(f"q{step}")
            for kt in range(2*G, 2*G+2):
                for u in range(4):
                    cin = "0" if u == 0 else R('v', SB(kt, t))
                    a.e(f"v_mfma_f32_16x16x32_bf16 {R('v', SB(kt,t))}, {R('a', KA(kt,u))}, {R('v', QF[step%2]+4*u)}, {cin}")
            if t % 2 == 1:
                Vslot(2 if G >= 2 else 0, 1)
            step += 1
    a.nop(8)
    a.stamp()
    def condV(n):
        Vslot(n + 1 if n < 99 else n, n)
    cs = math.log2(math.e) / math.sqrt(128.0)
    a.e(f"s_mov_b32 s50, 0x{f32bits(cs):08x}")
    a.e(f"s_mov_b32 s51, 0x{f32bits(cs):08x}")
    vM = 224
    for t in range(6):
        vals = [SB(kt, t) + r for kt in range(8) for r in range(4)]
        m = vM + 2*t
        a.e(f"v_add_u32 v236, s{sT+t}, v{vST}")
        a.e(f"v_max3_f32 v{m}, v{vals[0]}, v{vals[1]}, v{vals[2]}")
        a.e(f"v_max3_f32 v{m+1}, v{vals[3]}, v{vals[4]}, v{vals[5]}")
        for i in range(6, 30, 4):
            a.e(f"v_max3_f32 v{m}, v{m}, v{vals[i]}, v{vals[i+1]}")
            a.e(f"v_max3_f32 v{m+1}, v{m+1}, v{vals[i+2]}, v{vals[i+3]}")
        a.e(f"v_max3_f32 v{m}, v{m}, v{vals[30]}, v{vals[31]}")
        a.e(f"v_max_f32 v{m}, v{m}, v{m+1}")
        a.ds(f"ds_write_b32 v236, v{m}", "mw")
    condV(2)
    a.wait_lg0()
    a.e("s_barrier")
    for t0 in range(0, 6, 2):
        for tt in range(2):
            a.e(f"v_add_u32 v{236+tt}, s{sT+t0+tt}, v{vSR}")
            for x in range(4):
                a.ds(f"ds_read_b128 {R('v', 192+16*tt+4*x)}, v{236+tt} offset:{16*x}", f"g{t0+tt}")
        for tt in range(2):
            a.wait_lg(f"g{t0+tt}")
            b = 192 + 16*tt
            d = vM + 2*(t0 + tt)
            a.e(f"v_max3_f32 v{d}, v{b}, v{b+1}, v{b+2}")
            for i in range(3, 15, 2):
                a.e(f"v_max3_f32 v{d}, v{d}, v{b+i}, v{b+i+1}")
            a.e(f"v_max_f32 v{d}, v{d}, v{b+15}")
            a.e(f"v_mul_f32 v{d}, s50, v{d}")
    condV(2)
    for r in range(4):
        a.e(f"v_mov_b32 v{192+r}, 0x3f803f80")
    PB = lambda t, p: 24*p + 4*t
    SUM = lambda t: 196 + 4*t
    for t in range(6):
        vals = [SB(kt, t) + r for kt in range(8) for r in range(4)]
        m = vM + 2*t
        for x in vals[::2]:
            a.e(f"v_pk_fma_f32 {R('v',x,2)}, {R('v',x,2)}, s[50:51], {R('v',m,2)} op_sel_hi:[1,1,0] neg_lo:[0,0,1] neg_hi:[0,0,1]")
        for i, x in enumerate(vals):
            a.e(f"v_exp_f32 v{x}, v{x}")
        condV(2)
        a.e("s_nop 0")
        for p in range(4):
            e0, e1 = SB(2*p, t), SB(2*p+1, t)
            a.e(f"v_cvt_pk_bf16_f32 v{e0}, v{e0}, v{e0+1}")
            a.e(f"v_cvt_pk_bf16_f32 v{e0+1}, v{e0+2}, v{e0+3}")
            a.e(f"v_cvt_pk_bf16_f32 v{e0+2}, v{e1}, v{e1+1}")
            a.e(f"v_cvt_pk_bf16_f32 v{e0+3}, v{e1+2}, v{e1+3}")
        if t > 0:
            for p in range(4):
                cin = "0" if p == 0 else R('v', SUM(t-1))
                a.e(f"v_mfma_f32_16x16x32_bf16 {R('v', SUM(t-1))}, v[192:195], {R('v', PB(t-1,p))}, {cin}")
    condV(99)
    a.nop(2)
    for p in range(4):
        cin = "0" if p == 0 else R('v', SUM(5))
        a.e(f"v_mfma_f32_16x16x32_bf16 {R('v', SUM(5))}, v[192:195], {R('v', PB(5,p))}, {cin}")
    for t in range(6):
        a.e(f"v_add_u32 v{232+t}, s{sT+t}, v{vST}")
    a.nop(4)
    for t in range(6):
        a.ds(f"ds_write_b32 v{232+t}, v{SUM(t)} offset:6144", "sw")
    a.stamp()
    def Oacc(t, j):
        return ('v', 96 + (t*8 + j)*4) if t < 2 else ('a', ((t-2)*8 + j)*4)
    RW = 160
    TC = [168, 176]
    def vstage(p, w, tb):
        out = [f"v_accvgpr_read_b32 v{RW+i}, a{VA(p,i)+w}" for i in range(8)]
        return out + perms(lambda i: RW + i, tb)
    for p in range(4):
        a.wait_vm(f"v{p}")
        for x in vstage(p, 0, TC[0]): a.e(x)
        a.nop(2)
        for w in range(4):
            tb = TC[w % 2]
            mf = []
            for e in range(2):
                j = 2*w + e
                for t in range(6):
                    k, b = Oacc(t, j)
                    cin = "0" if p == 0 else R(k, b)
                    mf.append(f"v_mfma_f32_16x16x32_bf16 {R(k,b)}, {R('v', tb+4*e)}, {R('v', PB(t,p))}, {cin}")
            va = vstage(p, w+1, TC[(w+1) % 2]) if w < 3 else []
            interleave(a, mf, va)
        if p == 0:
            send_bases(WREG, {1: 0, 2: 12288, 3: 24576})
            a.e("s_lshl_b32 s50, s44, 6")
            a.e("s_add_u32 s50, s50, s45")
            a.e("s_mul_i32 s50, s50, 12288")
            for t in range(2):
                a.e(f"s_cmp_ge_u32 s{sT+t}, 3072")
                a.e(f"s_cselect_b32 s51, {393216-3072}, 0")
                a.e(f"s_add_u32 s{52+t}, s50, s51")
                a.e(f"s_add_u32 s{52+t}, s{52+t}, s{sT+t}")
            a.e("s_and_b32 s54, s46, 1")
            a.e("s_mul_i32 s54, s54, 6144")
            a.e("s_sub_u32 s55, 6144, s54")
            a.e("s_add_u32 s56, s52, s55")
            a.e("s_add_u32 s52, s52, s54")
            a.e("s_add_u32 s53, s53, s54")
            a.e(f"v_add_u32 v232, s{sT}, v{vSR}")
            a.e(f"v_add_u32 v233, s{sT+1}, v{vSR}")
    a.stamp()
    a.nop(8)
    for d in (1, 2, 3): send(Oacc, d)
    a.wait_lg0()
    a.e("s_barrier")
    for n in range(2):
        for wv in range(4):
            a.ds(f"ds_read_b32 v{208+4*n+wv}, v{232+n} offset:{6144 + 16*wv}", "sr")
    recv_rd(1, 0, 0); recv_rd(2, 12288, 48); recv_rd(3, 24576, 160)
    recv_add(Oacc, 1, 0)
    for n in range(2):
        b = 208 + 4*n
        a.e(f"v_add_f32 v{b}, v{b}, v{b+1}")
        a.e(f"v_add_f32 v{b+2}, v{b+2}, v{b+3}")
        a.e(f"v_add_f32 v{b}, v{b}, v{b+2}")
        a.e(f"v_rcp_f32 v{b}, v{b}")
    recv_add(Oacc, 2, 48); recv_add(Oacc, 3, 160)
    for j in range(8):
        for r in (0, 2):
            b = Oacc(0, j)[1] + r
            a.e(f"v_pk_mul_f32 {R('v',b,2)}, {R('v',b,2)}, v[208:209] op_sel_hi:[1,0]")
        b = Oacc(1, j)[1]
        a.e(f"v_pk_mul_f32 {R('v',b,2)}, {R('v',b,2)}, v[212:213] op_sel_hi:[1,0]")
    for n, (t, r) in enumerate(OWN):
        pack(Oacc, t, r, 4*n)
        so = 53 if t == 1 else (52 if r < 2 else 56)
        a.vmem(f"buffer_store_dwordx4 {R('v', 4*n)}, v{vL16}, s[{SWS}:{SWS+3}], s{so} offen offset:{3072*(r%2)}", "ost")
    a.stamp()
    a.dump_stamps(SWS, 46)
    a.lab("K1_END")
    a.e("s_endpgm")
    return a

def kernel2(D=12):
    a = Asm()
    SWS, SO = 20, 24
    a.e("s_cmp_ge_u32 s2, 256")
    a.e("s_cbranch_scc1 K2_END")
    a.e("s_load_dwordx2 s[4:5], s[0:1], 40")
    a.e("s_load_dwordx2 s[6:7], s[0:1], 56")
    a.e("v_lshrrev_b32 v1, 6, v0")
    a.e("v_and_b32 v2, 63, v0")
    a.e("v_readfirstlane_b32 s46, v1")
    a.e("v_lshlrev_b32 v255, 4, v2")
    a.e("s_and_b32 s50, s2, 7")
    a.e("s_lshr_b32 s51, s2, 3")
    a.e("s_lshr_b32 s44, s50, 1")
    a.e("s_lshl_b32 s44, s44, 2")
    a.e("s_lshr_b32 s52, s51, 3")
    a.e("s_add_u32 s44, s44, s52")
    a.e("s_and_b32 s45, s50, 1")
    a.e("s_lshl_b32 s45, s45, 3")
    a.e("s_and_b32 s52, s51, 7")
    a.e("s_add_u32 s45, s45, s52")
    a.e("s_lshl_b32 s52, s46, 5")
    a.e("s_lshl_b32 s53, s44, 7")
    a.e("s_add_u32 s53, s53, s52")
    a.e("s_mul_i32 s53, s53, 3072")
    a.e("s_lshl_b32 s54, s45, 7")
    a.e("s_add_u32 s54, s54, s52")
    a.e("s_lshl_b32 s54, s54, 11")
    a.e(f"s_add_u32 s54, s54, {WS_W}")
    a.e("v_and_b32 v3, 15, v2")
    a.e("v_lshrrev_b32 v4, 4, v2")
    a.e("v_lshlrev_b32 v4, 4, v4")
    a.e("v_lshl_add_u32 v254, v3, 10, v4")
    a.e("s_waitcnt lgkmcnt(0)")
    srd(a, SWS, 6, 268435456)
    srd(a, SO, 4, 786432)
    def ld(ks):
        b = 20*(ks % D)
        for x in range(2):
            a.vmem(f"buffer_load_dwordx4 {R('v', b+4*x)}, v255, s[{SWS}:{SWS+3}], s54 offen offset:{1024*x}", f"k{ks}")
        for x in range(3):
            a.vmem(f"buffer_load_dwordx4 {R('v', b+8+4*x)}, v255, s[{SWS}:{SWS+3}], s53 offen offset:{1024*x}", f"k{ks}")
        a.e("s_add_u32 s54, s54, 2048")
        a.e("s_add_u32 s53, s53, 3072")
    for ks in range(D): ld(ks)
    for ks in range(32):
        b = 20*(ks % D)
        a.wait_vm(f"k{ks}")
        for x in range(2):
            for tt in range(3):
                acc = R('a', 4*(tt*2 + x))
                cin = "0" if ks == 0 else acc
                a.e(f"v_mfma_f32_16x16x32_bf16 {acc}, {R('v', b+4*x)}, {R('v', b+8+4*tt)}, {cin}")
        if ks + D < 32:
            ld(ks + D)
    a.e("s_mul_i32 s52, s46, 6144")
    a.e("v_add_u32 v253, s52, v255")
    a.e("s_lshl_b32 s52, s46, 11")
    a.e("v_add_u32 v252, s52, v255")
    a.nop(8)
    for u in range(6):
        a.ds(f"ds_write_b128 v253, {R('a', 4*u)} offset:{1024*u}", "w")
    a.wait_lg0()
    a.e("s_barrier")
    a.e("s_cmp_eq_u32 s46, 3")
    a.e("s_cbranch_scc1 K2_END")
    for s in range(4):
        for x in range(2):
            a.ds(f"ds_read_b128 {R('v', 8*s+4*x)}, v252 offset:{6144*s + 1024*x}", "r")
    a.e("s_mul_i32 s52, s44, 49152")
    a.e("s_lshl_b32 s53, s46, 14")
    a.e("s_add_u32 s52, s52, s53")
    a.e("s_lshl_b32 s53, s45, 6")
    a.e("s_add_u32 s52, s52, s53")
    a.wait_lg0()
    for i in range(8):
        a.e(f"v_add_f32 v{i}, v{i}, v{8+i}")
        a.e(f"v_add_f32 v{16+i}, v{16+i}, v{24+i}")
    for i in range(8):
        a.e(f"v_add_f32 v{i}, v{i}, v{16+i}")
    for i in range(4):
        a.e(f"v_cvt_pk_bf16_f32 v{32+i}, v{2*i}, v{2*i+1}")
    a.vmem(f"buffer_store_dwordx4 v[32:35], v254, s[{SO}:{SO+3}], s52 offen", "o")
    a.lab("K2_END")
    a.e("s_endpgm")
    return a

def desc(name, nfv, acc):
    return f""".amdhsa_kernel {name}
  .amdhsa_next_free_vgpr {nfv}
  .amdhsa_next_free_sgpr 102
  .amdhsa_accum_offset {acc}
  .amdhsa_group_segment_fixed_size 0
  .amdhsa_kernarg_size 64
  .amdhsa_user_sgpr_count 2
  .amdhsa_user_sgpr_kernarg_segment_ptr 1
  .amdhsa_system_sgpr_workgroup_id_x 1
.end_amdhsa_kernel"""

def main():
    hdr = open("cdna_kernels/" + NAME + ".s.ref").read().split("\n")
    top = [l for l in hdr if l.startswith(";") and "@launch" not in l and "Override" not in l and "grid=ceil" not in l]
    out = list(top)
    out.append(f"; @launch kernel={K1} grid=(256,1,1) block=(256,1,1) lds=159744")
    out.append(f"; @launch kernel={K2} grid=(256,1,1) block=(256,1,1) lds=24576")
    out.append('.amdgcn_target "amdgcn-amd-amdhsa--gfx950"')
    out.append(".text")
    for name, k in ((K1, kernel1()), (K2, kernel2())):
        out += [f".globl {name}", ".p2align 8", f".type {name},@function", f"{name}:"]
        out += k.L
    out += ['.section .rodata,"a"', ".p2align 6", desc(K1, 512, 256), ".p2align 6", desc(K2, 280, 256)]
    path = sys.argv[1] if len(sys.argv) > 1 else "cdna_kernels/" + NAME + ".s"
    open(path, "w").write("\n".join(out) + "\n")

main()
```

```python
import sys, math, struct

NAME = "standalone__gqa_block_cached__near_ridge"
K1 = NAME + "_kernel"
K2 = "oproj_kernel"
import os
STAMP = bool(os.environ.get("STAMP"))
STAMP_OFF = 0
WS_W = 8 * 1024 * 1024

def f32bits(x):
    return struct.unpack("<I", struct.pack("<f", x))[0]

class Asm:
    def __init__(self):
        self.L = []
        self.vm = []
        self.lg = []
        self.ns = 0
        self.vmB = []
        self.cur = None
        self.nl = 0
    def e(self, s):
        self.L.append("    " + s)
    def lab(self, s):
        self.L.append(s + ":")
    def c(self, s):
        self.L.append("    ; " + s)
    def vmem(self, s, tag):
        self.e(s)
        if self.cur in (None, 0): self.vm.append(tag)
        if self.cur in (None, 1): self.vmB.append(tag)
    def only(self, g, fn):
        self.nl += 1
        L = f"K1_G{self.nl}"
        self.e(f"s_cmp_lg_u32 s47, {g}")
        self.e(f"s_cbranch_scc1 {L}")
        self.cur = g
        lg = list(self.lg)
        fn()
        self.e("s_waitcnt lgkmcnt(0)") if self.lg != lg else None
        self.lg = lg
        self.cur = None
        self.lab(L)
    def ds(self, s, tag):
        self.e(s); self.lg.append(tag)
    def wait_vm(self, tag):
        def cnt(l):
            idx = max(i for i, t in enumerate(l) if t == tag)
            return min(len(l) - 1 - idx, 63)
        if self.cur is not None:
            self.e(f"s_waitcnt vmcnt({cnt(self.vm if self.cur == 0 else self.vmB)})"); return
        nA, nB = cnt(self.vm), cnt(self.vmB)
        if nA != nB:
            g = 0 if nA < nB else 1
            self.nl += 1
            L = f"K1_G{self.nl}"
            self.e(f"s_cmp_lg_u32 s47, {g}")
            self.e(f"s_cbranch_scc1 {L}")
            self.e(f"s_waitcnt vmcnt({min(nA,nB)})")
            self.lab(L)
        self.e(f"s_waitcnt vmcnt({max(nA,nB)})")
    def wait_lg(self, tag):
        idx = max(i for i, t in enumerate(self.lg) if t == tag)
        n = min(len(self.lg) - 1 - idx, 15)
        self.e(f"s_waitcnt lgkmcnt({n})")
    def wait_lg0(self):
        self.e("s_waitcnt lgkmcnt(0)")
    def stamp(self):
        if not STAMP: return
        k = self.ns; self.ns += 1
        self.e(f"s_memtime s[{64+2*k}:{65+2*k}]")
        self.e("s_waitcnt lgkmcnt(0)")
    def dump_stamps(self, srd_, wave_s):
        if not STAMP: return
        self.e("s_lshl_b32 s50, s2, 2")
        self.e(f"s_add_u32 s50, s50, s{wave_s}")
        self.e("s_lshl_b32 s50, s50, 7")
        self.e(f"s_add_u32 s50, s50, {16*1024*1024 + STAMP_OFF}")
        self.e("v_mov_b32 v1, 0")
        for k in range(self.ns):
            self.e(f"v_mov_b32 v2, s{64+2*k}")
            self.e(f"buffer_store_dword v2, v1, s[{srd_}:{srd_+3}], s50 offen offset:{4*k}")
            self.e("s_nop 1")
    def nop(self, n):
        while n > 0:
            k = min(n, 16)
            self.e(f"s_nop {k-1}")
            n -= k

def R(kind, b, n=4):
    return f"{kind}[{b}:{b+n-1}]" if n > 1 else f"{kind}{b}"

def srd(a, d, p, nbytes):
    a.e(f"s_mov_b32 s{d}, s{p}")
    a.e(f"s_and_b32 s{d+1}, s{p+1}, 0xffff")
    a.e(f"s_mov_b32 s{d+2}, {nbytes}")
    a.e(f"s_mov_b32 s{d+3}, 0x00020000")

def interleave(a, mf, va, maxper=2, lastfree=2):
    va = list(va)
    n = len(mf)
    slots = max(n - lastfree, 1)
    per = -(-len(va) // slots) if va else 0
    for i, m in enumerate(mf):
        a.e(m)
        if i < slots:
            for _ in range(per):
                if va: a.e(va.pop(0))
    assert not va

def interleave2(a, mf, va, ld, lastfree=2):
    va = list(va); ld = list(ld)
    n = len(mf)
    slots = max(n - lastfree, 1)
    per = -(-len(va) // slots) if va else 0
    nl = len(ld)
    done = 0
    for i, m in enumerate(mf):
        if callable(m): m()
        else: a.e(m)
        if i < slots:
            for _ in range(per):
                if va: a.e(va.pop(0))
        while done < nl and (done + 0.5) * n <= (i + 1) * nl:
            ld[done](); done += 1
    while done < nl:
        ld[done](); done += 1
    assert not va

def kernel1():
    a = Asm()
    SX, SK, SV, SA, SWO, SWS = 20, 24, 28, 32, 36, 40
    selLo, selHi = 48, 49
    NT = " nt" if os.environ.get("NT", "1") == "1" else ""
    RING = 98304
    vL16, vST, vSR, vQW = 255, 254, 253, 252
    vAD = 251
    vVD = 250
    vKD = 246
    vKR = 242
    vB = 238
    vA = 236
    vWO, vWS = 234, 235
    vXD = 44
    ACC = lambda t, jt: 192 + 0 + 0 if False else (t*2 + jt)*4
    BF = lambda buf, t: 48 + 24*buf + 4*t
    AF = lambda k, jt: 96 + 8*k + 4*jt
    sN, sG, sAO, sAP, sM = 52, 53, 54, 55, 56
    a.e("s_cmp_ge_u32 s2, 256")
    a.e("s_cbranch_scc1 K1_END")
    a.e("s_load_dwordx16 s[4:19], s[0:1], 0")
    a.e("v_lshrrev_b32 v33, 6, v0")
    a.e("v_and_b32 v34, 63, v0")
    a.e("v_readfirstlane_b32 s46, v33")
    a.e("v_and_b32 v35, 15, v34")
    a.e("v_lshrrev_b32 v36, 4, v34")
    a.e("s_lshr_b32 s44, s2, 5")
    a.e("s_and_b32 s50, s2, 7")
    a.e("s_lshl_b32 s50, s50, 2")
    a.e("s_lshr_b32 s51, s2, 3")
    a.e("s_and_b32 s51, s51, 3")
    a.e("s_add_u32 s45, s50, s51")
    a.e(f"s_mov_b32 s{selLo}, 0x05040100")
    a.e(f"s_mov_b32 s{selHi}, 0x07060302")
    a.e(f"v_lshlrev_b32 v{vL16}, 4, v34")
    a.e("v_lshlrev_b32 v38, 4, v35")
    a.e("v_and_b32 v39, 1, v33")
    a.e("v_lshl_add_u32 v39, v39, 2, v36")
    a.e("v_lshlrev_b32 v39, 1, v39")
    a.e("v_xor_b32 v39, v39, v35")
    a.e("v_lshlrev_b32 v39, 4, v39")
    a.e(f"v_lshl_add_u32 v{vAD}, v36, 13, v39")
    a.e(f"v_lshl_add_u32 v{vVD}, v36, 8, v39")
    a.e("v_lshrrev_b32 v39, 2, v35")
    a.e("v_and_b32 v40, 1, v36")
    a.e("v_lshl_add_u32 v40, v40, 2, v39")
    a.e("v_lshl_add_u32 v41, v36, 3, v39")
    a.e("v_and_b32 v42, 3, v35")
    a.e("v_lshlrev_b32 v42, 3, v42")
    a.e("v_lshl_add_u32 v41, v41, 8, v42")
    a.e(f"v_add_u32 v41, {RING}, v41")
    a.e("v_lshlrev_b32 v42, 1, v33")
    a.e("v_xor_b32 v42, v42, v40")
    a.e(f"v_lshl_add_u32 v{vA}, v42, 5, v41")
    a.e("v_xor_b32 v42, 1, v42")
    a.e(f"v_lshl_add_u32 v{vA+1}, v42, 5, v41")
    a.e("v_lshrrev_b32 v39, 1, v36")
    a.e("v_lshl_add_u32 v39, v39, 8, v38")
    a.e("v_and_b32 v40, 1, v36")
    a.e("v_lshl_add_u32 v39, v40, 3, v39")
    a.e(f"v_lshl_add_u32 v{vQW}, v33, 10, v39")
    a.e("v_lshlrev_b32 v39, 15, v36")
    a.e(f"v_lshl_add_u32 v{vWO}, v35, 3, v39")
    a.e("v_lshrrev_b32 v39, 3, v35")
    a.e("v_lshlrev_b32 v39, 18, v39")
    a.e("v_lshl_add_u32 v39, v36, 11, v39")
    a.e("v_and_b32 v42, 1, v35")
    a.e("v_lshl_add_u32 v39, v42, 10, v39")
    a.e("v_bfe_u32 v42, v35, 1, 2")
    a.e(f"v_lshl_add_u32 v{vWS}, v42, 6, v39")
    a.e("v_lshlrev_b32 v39, 6, v35")
    a.e(f"v_add_u32 v{vSR}, {RING + 49152}, v39")
    a.e("v_lshl_add_u32 v42, v33, 2, v36")
    a.e(f"v_lshl_add_u32 v{vST}, v42, 2, v{vSR}")
    a.e("v_lshlrev_b32 v43, 8, v35")
    for n in range(4):
        a.e(f"v_add_u32 v39, {4*n}, v36")
        a.e("v_xor_b32 v42, v39, v35")
        a.e("v_lshlrev_b32 v42, 4, v42")
        a.e(f"v_lshl_add_u32 v{vXD+n}, v39, 10, v42")
        a.e(f"v_add_u32 v{vB+n}, v43, v42")
        a.e(f"v_add_u32 v39, {8*n}, v36")
        a.e(f"v_lshl_add_u32 v{vKD+n}, v39, 8, v42")
    a.e("s_lshl_b32 s50, s46, 12")
    for n in range(4):
        a.e(f"v_add_u32 v{vKR+n}, s50, v{vB+n}")
    a.e("s_mul_i32 s57, s44, 98304")
    a.e("s_lshl_b32 s51, s46, 8")
    a.e("s_add_u32 s57, s57, s51")
    a.e("s_lshl_b32 s61, s44, 5")
    a.e("s_add_u32 s61, s61, s45")
    a.e("s_lshl_b32 s61, s61, 17")
    a.e("s_lshl_b32 s59, s46, 15")
    a.e("s_add_u32 s60, s61, s59")
    a.e("s_mul_i32 m0, s46, 24576")
    a.e(f"s_lshl_b32 s{sAO}, s46, 16")
    a.e("s_lshl_b32 s50, s45, 8")
    a.e(f"s_add_u32 s{sAO}, s{sAO}, s50")
    a.e(f"s_mov_b32 s{sAP}, 32768")
    a.e(f"s_lshl_b32 s58, s46, 11")
    a.e(f"s_add_u32 s58, s58, {RING}")
    a.e(f"s_mov_b32 s{sG}, 0")
    a.e("s_waitcnt lgkmcnt(0)")
    a.stamp()
    srd(a, SX, 4, 786432)
    for n in range(24):
        a.vmem(f"buffer_load_dwordx4 v{vXD + n%4}, s[{SX}:{SX+3}], s57 offen lds", "x")
        a.e("s_add_u32 m0, m0, 1024")
        a.e("s_add_u32 s57, s57, 16384" if n % 4 == 3 else "s_nop 0")
    srd(a, SA, 10, 4194304)
    def Adma(nt=""):
        for blk in range(2):
            for hh in range(2):
                a.e(f"s_add_u32 m0, s{sM}, {blk*8192 + hh*1024}")
                a.e("s_nop 0")
                a.vmem(f"buffer_load_dwordx4 v{vAD}, s[{SA}:{SA+3}], s{sAO} offen lds", "A")
                if hh == 0: a.e(f"s_add_u32 s{sAO}, s{sAO}, s{sAP}")
                else:
                    a.e(f"s_mul_i32 s50, s{sAP}, 7")
                    a.e(f"s_add_u32 s{sAO}, s{sAO}, s50")
    def prefill():
        for n in range(3):
            a.e(f"s_add_u32 s{sM}, s58, {16384*n}")
            Adma()
    prefill()
    srd(a, SWO, 12, 4194304)
    srd(a, SK, 6, 33554432)
    srd(a, SWS, 18, 268435456)
    a.stamp()
    a.e("s_waitcnt vmcnt(12)")
    a.e("s_barrier")
    a.lab("K1_GEMM")
    a.e(f"s_mov_b32 s{sN}, 0")
    for i in range(48): a.e(f"v_mov_b32 v{i}, 0")
    def rdB(buf, k):
        return [f"ds_read_b128 {R('v', BF(buf,t))}, v{vB+k} offset:{t*4096}" for t in range(6)]
    for x in rdB(0, 0): a.e(x)
    a.lab("K1_LOOP")
    for hs in range(2):
        a.e("s_waitcnt vmcnt(8)")
        a.e(f"s_lshl_b32 s50, s{sG}, 3")
        a.e(f"s_add_u32 s50, s50, s{sN}")
        a.e(f"s_cmp_lt_u32 s50, 14")
        a.e(f"s_cbranch_scc1 K1_W{hs}")
        a.e(f"s_waitcnt vmcnt({4 if hs == 0 else 0})")
        a.lab(f"K1_W{hs}")
        a.e("s_barrier")
        for k in range(2):
            for jt in range(2):
                for hh in range(2):
                    a.e(f"ds_read_b64_tr_b16 {R('v', AF(k,jt)+2*hh, 2)}, v{vA+jt} offset:{hs*16384 + k*8192 + hh*1024}")
        a.e(f"s_add_u32 s{sM}, s{sN}, 3")
        a.e(f"s_and_b32 s{sM}, s{sM}, 3")
        a.e(f"s_lshl_b32 s{sM}, s{sM}, 14")
        a.e(f"s_add_u32 s{sM}, s{sM}, s58")
        a.e(f"s_cmp_ge_u32 s{sN}, 5")
        a.e(f"s_cbranch_scc1 K1_T{hs}")
        Adma()
        a.e(f"s_branch K1_D{hs}")
        a.lab(f"K1_T{hs}")
        a.e(f"s_cmp_lg_u32 s{sG}, 0")
        a.e(f"s_cbranch_scc1 K1_D{hs}")
        a.e(f"s_sub_u32 s50, s{sN}, 5")
        a.e("s_lshr_b32 s51, s50, 1")
        a.e("s_lshl_b32 s51, s51, 13")
        a.e("s_and_b32 s50, s50, 1")
        a.e("s_lshl_b32 s50, s50, 10")
        a.e("s_add_u32 s50, s50, s51")
        a.e("s_add_u32 s50, s50, s60")
        a.e("s_lshl_b32 s51, s46, 11")
        a.e(f"s_add_u32 m0, s{sM}, s51")
        for n in range(4):
            a.e("s_nop 0")
            a.e(f"buffer_load_dwordx4 v{vKD+n}, s[{SK}:{SK+3}], s50 offen{NT} lds")
            a.e("s_add_u32 m0, m0, 1024")
        a.lab(f"K1_D{hs}")
        a.e(f"s_add_u32 s{sN}, s{sN}, 1")
        for k in range(2):
            if k == 0:
                nxt = rdB(1, 2*hs + 1)
                a.e("s_waitcnt lgkmcnt(4)")
            else:
                if hs == 1:
                    a.e(f"v_add_u32 v{vB}, 24576, v{vB}")
                nxt = rdB(0, (2*hs + 2) % 4)
                a.e("s_waitcnt lgkmcnt(0)")
            for t in range(6):
                for jt in range(2):
                    a.e(f"v_mfma_f32_16x16x32_bf16 {R('v', ACC(t,jt))}, {R('v', AF(k,jt))}, {R('v', BF(k,t))}, {R('v', ACC(t,jt))}")
                a.e(nxt[t])
    for k in range(1, 4): a.e(f"v_add_u32 v{vB+k}, 24576, v{vB+k}")
    a.e(f"v_xor_b32 v{vA}, 0x38000, v{vA}")
    a.e(f"v_xor_b32 v{vA+1}, 0x38000, v{vA+1}")
    a.e(f"s_cmp_lt_u32 s{sN}, 8")
    a.e("s_cbranch_scc1 K1_LOOP")
    a.e("s_waitcnt lgkmcnt(0)")
    a.e(f"s_cmp_lg_u32 s{sG}, 0")
    a.e("s_cbranch_scc1 K1_EPI")
    a.vm = ["k0"]*4 + ["k1"]*4 + ["k2"]*4
    a.vmB = list(a.vm); a.lg = []
    a.stamp()
    a.e("s_barrier")
    KA = lambda kt, u: 16 * kt + 4 * u
    def kslot(kt):
        return RING + 16384*kt if kt < 3 else 24576 + 16384*((kt - 3) % 4)
    def Kdma(kt):
        a.e("s_lshl_b32 s51, s46, 12")
        a.e(f"s_add_u32 m0, s51, {kslot(kt)}")
        a.e(f"s_add_u32 s50, s60, {8192*(kt//2) + 1024*(kt%2)}")
        for n in range(4):
            a.vmem(f"buffer_load_dwordx4 v{vKD+n}, s[{SK}:{SK+3}], s50 offen{NT} lds", f"k{kt}")
            if n < 3:
                a.e("s_add_u32 m0, m0, 1024")
                a.e("s_nop 0")
    for kt in range(3, 7): Kdma(kt)
    for t in range(6):
        for jt in range(2):
            b = ACC(t, jt)
            a.e(f"v_cvt_pk_bf16_f32 v{b}, v{b}, v{b+1}")
            a.e(f"v_cvt_pk_bf16_f32 v{b+1}, v{b+2}, v{b+3}")
            a.ds(f"ds_write_b64 v{vQW}, {R('v', b, 2)} offset:{t*4096 + jt*512}", "qw")
    a.e("s_lshl_b32 s50, s45, 17")
    a.e("s_lshl_b32 s51, s46, 12")
    a.e("s_add_u32 s50, s50, s51")
    a.e("s_lshl_b32 s51, s44, 7")
    a.e("s_add_u32 s50, s50, s51")
    a.e("s_add_u32 s51, s50, 16384")
    for i in range(8):
        so = 50 if i < 4 else 51
        a.vmem(f"buffer_load_dwordx2 {R('a', 128+2*i, 2)}, v{vWO}, s[{SWO}:{SWO+3}], s{so} offen offset:{(i%4)*1024}", "wo")
    for n in range(4):
        a.e(f"v_add_u32 v{vB+n}, {RING}, v{vKR+n}")
    a.wait_lg0()
    a.e("s_barrier")
    a.stamp()
    SB = lambda kt, t: ((kt % 2)*4 + kt//2)*24 + 4*t
    QF = [192, 208]
    def Kread(kt):
        a.wait_vm(f"k{kt}")
        for u in range(4):
            if kt < 3: a.ds(f"ds_read_b128 {R('a', KA(kt,u))}, v{vB+u} offset:{16384*kt}", f"kr{kt}")
            elif kslot(kt) < 65536: a.ds(f"ds_read_b128 {R('a', KA(kt,u))}, v{vKR+u} offset:{kslot(kt)}", f"kr{kt}")
            else: a.ds(f"ds_read_b128 {R('a', KA(kt,u))}, v{224+u} offset:{kslot(kt)-65536}", f"kr{kt}")
    def rdQ(t, buf, tag):
        for u in range(4):
            a.ds(f"ds_read_b128 {R('v', QF[buf]+4*u)}, v{vL16} offset:{(t*4+u)*1024}", tag)
    for n in range(4):
        a.e(f"v_add_u32 v{224+n}, 0x10000, v{vKR+n}")
    step = 0
    rdQ(0, 0, "q0")
    for G in range(4):
        Kread(2*G); Kread(2*G+1)
        a.wait_lg(f"kr{2*G+1}")
        if G == 1:
            Kdma(7)
            srd(a, SA, 8, 33554432)
            a.e(f"s_lshl_b32 s{sAO}, s46, 11")
            a.e(f"s_add_u32 s{sAO}, s{sAO}, s61")
            a.e(f"s_mov_b32 s{sAP}, 1024")
            a.e(f"v_mov_b32 v{vAD}, v{vVD}")
        if G == 2:
            a.e("s_barrier")
            prefill()
        for t in range(6):
            nt_ = (step + 1)
            if nt_ < 24:
                rdQ(nt_ % 6, nt_ % 2, f"q{nt_}")
            a.wait_lg(f"q{step}")
            for kt in range(2*G, 2*G+2):
                for u in range(4):
                    cin = "0" if u == 0 else R('v', SB(kt, t))
                    a.e(f"v_mfma_f32_16x16x32_bf16 {R('v', SB(kt,t))}, {R('a', KA(kt,u))}, {R('v', QF[step%2]+4*u)}, {cin}")
            step += 1
    a.e("s_lshl_b32 s50, s44, 6")
    a.e("s_add_u32 s50, s50, s45")
    a.e("s_lshl_b32 s50, s50, 13")
    a.e("s_lshl_b32 s51, s46, 8")
    a.e("s_add_u32 s50, s50, s51")
    a.e(f"s_add_u32 s50, s50, {WS_W}")
    for i in range(16): a.e(f"v_accvgpr_read_b32 v{192+i}, a{128+i}")
    for e in range(4):
        for z in range(4):
            sel = selLo if e % 2 == 0 else selHi
            a.e(f"v_perm_b32 v{208+4*e+z}, v{192+2*(2*z+1)+e//2}, v{192+2*(2*z)+e//2}, s{sel}")
    for e in range(4):
        a.vmem(f"buffer_store_dwordx4 {R('v', 208+4*e)}, v{vWS}, s[{SWS}:{SWS+3}], s50 offen offset:{16*e}", "wst")
    a.stamp()
    cs = math.log2(math.e) / math.sqrt(128.0)
    a.e(f"s_mov_b32 s50, 0x{f32bits(cs):08x}")
    a.e(f"s_mov_b32 s51, 0x{f32bits(cs):08x}")
    vM = 224
    for t in range(6):
        vals = [SB(kt, t) + r for kt in range(8) for r in range(4)]
        m = vM + 2*t
        a.e(f"v_max3_f32 v{m}, v{vals[0]}, v{vals[1]}, v{vals[2]}")
        a.e(f"v_max3_f32 v{m+1}, v{vals[3]}, v{vals[4]}, v{vals[5]}")
        for i in range(6, 30, 4):
            a.e(f"v_max3_f32 v{m}, v{m}, v{vals[i]}, v{vals[i+1]}")
            a.e(f"v_max3_f32 v{m+1}, v{m+1}, v{vals[i+2]}, v{vals[i+3]}")
        a.e(f"v_max3_f32 v{m}, v{m}, v{vals[30]}, v{vals[31]}")
        a.e(f"v_max_f32 v{m}, v{m}, v{m+1}")
        a.ds(f"ds_write_b32 v{vST}, v{m} offset:{t*1024}", "mw")
    a.e("s_mul_i32 s59, s46, 24576")
    a.e(f"v_add_u32 v{vQW}, s59, v{vL16}")
    for n in range(4):
        a.e(f"v_add_u32 v{vB+n}, {1024*n}, v{vL16}")
    a.wait_lg0()
    a.e("s_barrier")
    for t0 in range(0, 6, 2):
        for tt in range(2):
            for x in range(4):
                a.ds(f"ds_read_b128 {R('v', 192+16*tt+4*x)}, v{vSR} offset:{(t0+tt)*1024 + 16*x}", f"g{t0+tt}")
        for tt in range(2):
            a.wait_lg(f"g{t0+tt}")
            b = 192 + 16*tt
            d = vM + 2*(t0 + tt)
            a.e(f"v_max3_f32 v{d}, v{b}, v{b+1}, v{b+2}")
            for i in range(3, 15, 2):
                a.e(f"v_max3_f32 v{d}, v{d}, v{b+i}, v{b+i+1}")
            a.e(f"v_max_f32 v{d}, v{d}, v{b+15}")
            a.e(f"v_mul_f32 v{d}, s50, v{d}")
    for r in range(4):
        a.e(f"v_mov_b32 v{192+r}, 0x3f803f80")
    PB = lambda t, p: 24*p + 4*t
    SUM = lambda t: 196 + 4*t
    def sums(t):
        for p in range(4):
            cin = "0" if p == 0 else R('v', SUM(t))
            a.e(f"v_mfma_f32_16x16x32_bf16 {R('v', SUM(t))}, v[192:195], {R('v', PB(t,p))}, {cin}")
    for t in range(6):
        vals = [SB(kt, t) + r for kt in range(8) for r in range(4)]
        m = vM + 2*t
        for x in vals[::2]:
            a.e(f"v_pk_fma_f32 {R('v',x,2)}, {R('v',x,2)}, s[50:51], {R('v',m,2)} op_sel_hi:[1,1,0] neg_lo:[0,0,1] neg_hi:[0,0,1]")
        if t > 0: sums(t-1)
        for i, x in enumerate(vals):
            a.e(f"v_exp_f32 v{x}, v{x}")
        a.e("s_nop 0")
        for p in range(4):
            e0, e1 = SB(2*p, t), SB(2*p+1, t)
            a.e(f"v_cvt_pk_bf16_f32 v{e0}, v{e0}, v{e0+1}")
            a.e(f"v_cvt_pk_bf16_f32 v{e0+1}, v{e0+2}, v{e0+3}")
            a.e(f"v_cvt_pk_bf16_f32 v{e0+2}, v{e1}, v{e1+1}")
            a.e(f"v_cvt_pk_bf16_f32 v{e0+3}, v{e1+2}, v{e1+3}")
            a.ds(f"ds_write_b128 v{vQW}, {R('v', e0)} offset:{t*4096 + p*1024}", "pw")
    a.nop(2)
    sums(5)
    a.nop(8)
    for t in range(6):
        a.ds(f"ds_write_b32 v{vST}, v{SUM(t)} offset:{6144 + t*1024}", "sw")
    a.wait_lg0()
    a.e("s_barrier")
    for t in range(6):
        for wv in range(4):
            a.ds(f"ds_read_b32 v{192+4*t+wv}, v{vSR} offset:{6144 + t*1024 + 16*wv}", f"sr{t}")
    for t in range(6):
        b = 192 + 4*t
        a.wait_lg(f"sr{t}")
        a.e(f"v_add_f32 v{b}, v{b}, v{b+1}")
        a.e(f"v_add_f32 v{b+2}, v{b+2}, v{b+3}")
        a.e(f"v_add_f32 v{b}, v{b}, v{b+2}")
        a.e(f"v_rcp_f32 v{b}, v{b}")
    a.e(f"s_mov_b32 s{sG}, 1")
    a.stamp()
    a.e("s_branch K1_GEMM")
    a.lab("K1_EPI")
    a.stamp()
    a.e("s_lshl_b32 s50, s44, 6")
    a.e("s_add_u32 s50, s50, s45")
    a.e("s_lshl_b32 s50, s50, 2")
    a.e("s_add_u32 s50, s50, s46")
    a.e("s_mul_i32 s50, s50, 3072")
    a.e("s_add_u32 s51, s50, 393216")
    a.nop(4)
    for t in range(6):
        b = ACC(t, 0)
        for r in range(0, 8, 2):
            a.e(f"v_pk_mul_f32 {R('v',b+r,2)}, {R('v',b+r,2)}, {R('v',192+4*t,2)} op_sel_hi:[1,0]")
        for z in range(4):
            a.e(f"v_cvt_pk_bf16_f32 v{48+4*t+z}, v{b+2*z}, v{b+2*z+1}")
        a.e(f"buffer_store_dwordx4 {R('v', 48+4*t)}, v{vL16}, s[{SWS}:{SWS+3}], s{50 + t//3} offen offset:{1024*(t%3)}")
    a.stamp()
    a.dump_stamps(SWS, 46)
    a.lab("K1_END")
    a.e("s_endpgm")
    return a

def kernel2(D=12):
    a = Asm()
    SWS, SO = 20, 24
    a.e("s_cmp_ge_u32 s2, 256")
    a.e("s_cbranch_scc1 K2_END")
    a.e("s_load_dwordx2 s[4:5], s[0:1], 40")
    a.e("s_load_dwordx2 s[6:7], s[0:1], 56")
    a.e("v_lshrrev_b32 v1, 6, v0")
    a.e("v_and_b32 v2, 63, v0")
    a.e("v_readfirstlane_b32 s46, v1")
    a.e("v_lshlrev_b32 v255, 4, v2")
    a.e("s_and_b32 s50, s2, 7")
    a.e("s_lshr_b32 s51, s2, 3")
    a.e("s_lshr_b32 s44, s50, 1")
    a.e("s_lshl_b32 s44, s44, 2")
    a.e("s_lshr_b32 s52, s51, 3")
    a.e("s_add_u32 s44, s44, s52")
    a.e("s_and_b32 s45, s50, 1")
    a.e("s_lshl_b32 s45, s45, 3")
    a.e("s_and_b32 s52, s51, 7")
    a.e("s_add_u32 s45, s45, s52")
    a.e("s_lshl_b32 s52, s46, 5")
    a.e("s_lshl_b32 s53, s44, 7")
    a.e("s_add_u32 s53, s53, s52")
    a.e("s_mul_i32 s53, s53, 3072")
    a.e("s_lshl_b32 s54, s45, 7")
    a.e("s_add_u32 s54, s54, s52")
    a.e("s_lshl_b32 s54, s54, 11")
    a.e(f"s_add_u32 s54, s54, {WS_W}")
    a.e("v_and_b32 v3, 15, v2")
    a.e("v_lshrrev_b32 v4, 4, v2")
    a.e("v_lshlrev_b32 v4, 4, v4")
    a.e("v_lshl_add_u32 v254, v3, 10, v4")
    a.e("s_waitcnt lgkmcnt(0)")
    srd(a, SWS, 6, 268435456)
    srd(a, SO, 4, 786432)
    def ld(ks):
        b = 20*(ks % D)
        for x in range(2):
            a.vmem(f"buffer_load_dwordx4 {R('v', b+4*x)}, v255, s[{SWS}:{SWS+3}], s54 offen offset:{1024*x}", f"k{ks}")
        for x in range(3):
            a.vmem(f"buffer_load_dwordx4 {R('v', b+8+4*x)}, v255, s[{SWS}:{SWS+3}], s53 offen offset:{1024*x}", f"k{ks}")
        a.e("s_add_u32 s54, s54, 2048")
        a.e("s_add_u32 s53, s53, 3072")
    for ks in range(D): ld(ks)
    for ks in range(32):
        b = 20*(ks % D)
        a.wait_vm(f"k{ks}")
        for x in range(2):
            for tt in range(3):
                acc = R('a', 4*(tt*2 + x))
                cin = "0" if ks == 0 else acc
                a.e(f"v_mfma_f32_16x16x32_bf16 {acc}, {R('v', b+4*x)}, {R('v', b+8+4*tt)}, {cin}")
        if ks + D < 32:
            ld(ks + D)
    a.e("s_mul_i32 s52, s46, 6144")
    a.e("v_add_u32 v253, s52, v255")
    a.e("s_lshl_b32 s52, s46, 11")
    a.e("v_add_u32 v252, s52, v255")
    a.nop(8)
    for u in range(6):
        a.ds(f"ds_write_b128 v253, {R('a', 4*u)} offset:{1024*u}", "w")
    a.wait_lg0()
    a.e("s_barrier")
    a.e("s_cmp_eq_u32 s46, 3")
    a.e("s_cbranch_scc1 K2_END")
    for s in range(4):
        for x in range(2):
            a.ds(f"ds_read_b128 {R('v', 8*s+4*x)}, v252 offset:{6144*s + 1024*x}", "r")
    a.e("s_mul_i32 s52, s44, 49152")
    a.e("s_lshl_b32 s53, s46, 14")
    a.e("s_add_u32 s52, s52, s53")
    a.e("s_lshl_b32 s53, s45, 6")
    a.e("s_add_u32 s52, s52, s53")
    a.wait_lg0()
    for i in range(8):
        a.e(f"v_add_f32 v{i}, v{i}, v{8+i}")
        a.e(f"v_add_f32 v{16+i}, v{16+i}, v{24+i}")
    for i in range(8):
        a.e(f"v_add_f32 v{i}, v{i}, v{16+i}")
    for i in range(4):
        a.e(f"v_cvt_pk_bf16_f32 v{32+i}, v{2*i}, v{2*i+1}")
    a.vmem(f"buffer_store_dwordx4 v[32:35], v254, s[{SO}:{SO+3}], s52 offen", "o")
    a.lab("K2_END")
    a.e("s_endpgm")
    return a

def desc(name, nfv, acc):
    return f""".amdhsa_kernel {name}
  .amdhsa_next_free_vgpr {nfv}
  .amdhsa_next_free_sgpr 102
  .amdhsa_accum_offset {acc}
  .amdhsa_group_segment_fixed_size 0
  .amdhsa_kernarg_size 64
  .amdhsa_user_sgpr_count 2
  .amdhsa_user_sgpr_kernarg_segment_ptr 1
  .amdhsa_system_sgpr_workgroup_id_x 1
.end_amdhsa_kernel"""

def main():
    hdr = open("cdna_kernels/" + NAME + ".s.ref").read().split("\n")
    top = [l for l in hdr if l.startswith(";") and "@launch" not in l and "Override" not in l and "grid=ceil" not in l]
    out = list(top)
    out.append(f"; @launch kernel={K1} grid=(256,1,1) block=(256,1,1) lds=163840")
    out.append(f"; @launch kernel={K2} grid=(256,1,1) block=(256,1,1) lds=24576")
    out.append('.amdgcn_target "amdgcn-amd-amdhsa--gfx950"')
    out.append(".text")
    for name, k in ((K1, kernel1()), (K2, kernel2())):
        out += [f".globl {name}", ".p2align 8", f".type {name},@function", f"{name}:"]
        out += k.L
    out += ['.section .rodata,"a"', ".p2align 6", desc(K1, 512, 256), ".p2align 6", desc(K2, 280, 256)]
    path = sys.argv[1] if len(sys.argv) > 1 else "cdna_kernels/" + NAME + ".s"
    open(path, "w").write("\n".join(out) + "\n")

main()
```

```python
import sys, math, struct

NAME = "standalone__gqa_block_cached__near_ridge"
K1 = NAME + "_kernel"
K2 = "oproj_kernel"
import os
STAMP = bool(os.environ.get("STAMP"))
STAMP_OFF = 0
WS_W = 8 * 1024 * 1024

def f32bits(x):
    return struct.unpack("<I", struct.pack("<f", x))[0]

class Asm:
    def __init__(self):
        self.L = []
        self.vm = []
        self.lg = []
        self.ns = 0
        self.vmB = []
        self.cur = None
        self.nl = 0
    def e(self, s):
        self.L.append("    " + s)
    def lab(self, s):
        self.L.append(s + ":")
    def c(self, s):
        self.L.append("    ; " + s)
    def vmem(self, s, tag):
        self.e(s)
        if self.cur in (None, 0): self.vm.append(tag)
        if self.cur in (None, 1): self.vmB.append(tag)
    def only(self, g, fn):
        self.nl += 1
        L = f"K1_G{self.nl}"
        self.e(f"s_cmp_lg_u32 s47, {g}")
        self.e(f"s_cbranch_scc1 {L}")
        self.cur = g
        lg = list(self.lg)
        fn()
        self.e("s_waitcnt lgkmcnt(0)") if self.lg != lg else None
        self.lg = lg
        self.cur = None
        self.lab(L)
    def ds(self, s, tag):
        self.e(s); self.lg.append(tag)
    def wait_vm(self, tag):
        def cnt(l):
            idx = max(i for i, t in enumerate(l) if t == tag)
            return min(len(l) - 1 - idx, 63)
        if self.cur is not None:
            self.e(f"s_waitcnt vmcnt({cnt(self.vm if self.cur == 0 else self.vmB)})"); return
        nA, nB = cnt(self.vm), cnt(self.vmB)
        if nA != nB:
            g = 0 if nA < nB else 1
            self.nl += 1
            L = f"K1_G{self.nl}"
            self.e(f"s_cmp_lg_u32 s47, {g}")
            self.e(f"s_cbranch_scc1 {L}")
            self.e(f"s_waitcnt vmcnt({min(nA,nB)})")
            self.lab(L)
        self.e(f"s_waitcnt vmcnt({max(nA,nB)})")
    def wait_lg(self, tag):
        idx = max(i for i, t in enumerate(self.lg) if t == tag)
        n = min(len(self.lg) - 1 - idx, 15)
        self.e(f"s_waitcnt lgkmcnt({n})")
    def wait_lg0(self):
        self.e("s_waitcnt lgkmcnt(0)")
    def stamp(self):
        if not STAMP: return
        k = self.ns; self.ns += 1
        self.e(f"s_memtime s[{64+2*k}:{65+2*k}]")
        self.e("s_waitcnt lgkmcnt(0)")
    def dump_stamps(self, srd_, wave_s):
        if not STAMP: return
        self.e("s_lshl_b32 s50, s2, 2")
        self.e(f"s_add_u32 s50, s50, s{wave_s}")
        self.e("s_lshl_b32 s50, s50, 7")
        self.e(f"s_add_u32 s50, s50, {16*1024*1024 + STAMP_OFF}")
        self.e("v_mov_b32 v1, 0")
        for k in range(self.ns):
            self.e(f"v_mov_b32 v2, s{64+2*k}")
            self.e(f"buffer_store_dword v2, v1, s[{srd_}:{srd_+3}], s50 offen offset:{4*k}")
            self.e("s_nop 1")
    def nop(self, n):
        while n > 0:
            k = min(n, 16)
            self.e(f"s_nop {k-1}")
            n -= k

def R(kind, b, n=4):
    return f"{kind}[{b}:{b+n-1}]" if n > 1 else f"{kind}{b}"

def srd(a, d, p, nbytes):
    a.e(f"s_mov_b32 s{d}, s{p}")
    a.e(f"s_and_b32 s{d+1}, s{p+1}, 0xffff")
    a.e(f"s_mov_b32 s{d+2}, {nbytes}")
    a.e(f"s_mov_b32 s{d+3}, 0x00020000")

def interleave(a, mf, va, maxper=2, lastfree=2):
    va = list(va)
    n = len(mf)
    slots = max(n - lastfree, 1)
    per = -(-len(va) // slots) if va else 0
    for i, m in enumerate(mf):
        a.e(m)
        if i < slots:
            for _ in range(per):
                if va: a.e(va.pop(0))
    assert not va

def interleave2(a, mf, va, ld, lastfree=2):
    va = list(va); ld = list(ld)
    n = len(mf)
    slots = max(n - lastfree, 1)
    per = -(-len(va) // slots) if va else 0
    nl = len(ld)
    done = 0
    for i, m in enumerate(mf):
        if callable(m): m()
        else: a.e(m)
        if i < slots:
            for _ in range(per):
                if va: a.e(va.pop(0))
        while done < nl and (done + 0.5) * n <= (i + 1) * nl:
            ld[done](); done += 1
    while done < nl:
        ld[done](); done += 1
    assert not va

def kernel1():
    a = Asm()
    SX, SK, SV, SA, SWO, SWS = 20, 24, 28, 32, 36, 40
    selLo, selHi = 48, 49
    NT = " nt" if os.environ.get("NT", "1") == "1" else ""
    RING = 98304
    vL16, vST, vSR, vQW = 255, 254, 253, 252
    vAD = 251
    vVD = 250
    vKD = 246
    vKR = 242
    vB = 238
    vA = 236
    vWO, vWS = 234, 235
    vXD = 44
    ACC = lambda t, jt: 192 + 0 + 0 if False else (t*2 + jt)*4
    BF = lambda buf, t: 48 + 24*buf + 4*t
    AF = lambda k, jt: 96 + 8*k + 4*jt
    sN, sG, sAO, sAP, sM = 52, 53, 54, 55, 56
    a.e("s_cmp_ge_u32 s2, 256")
    a.e("s_cbranch_scc1 K1_END")
    a.e("s_load_dwordx16 s[4:19], s[0:1], 0")
    a.e("v_lshrrev_b32 v33, 6, v0")
    a.e("v_and_b32 v34, 63, v0")
    a.e("v_readfirstlane_b32 s46, v33")
    a.e("v_and_b32 v35, 15, v34")
    a.e("v_lshrrev_b32 v36, 4, v34")
    a.e("s_lshr_b32 s44, s2, 5")
    a.e("s_and_b32 s50, s2, 7")
    a.e("s_lshl_b32 s50, s50, 2")
    a.e("s_lshr_b32 s51, s2, 3")
    a.e("s_and_b32 s51, s51, 3")
    a.e("s_add_u32 s45, s50, s51")
    a.e(f"s_mov_b32 s{selLo}, 0x05040100")
    a.e(f"s_mov_b32 s{selHi}, 0x07060302")
    a.e(f"v_lshlrev_b32 v{vL16}, 4, v34")
    a.e("v_lshlrev_b32 v38, 4, v35")
    a.e("v_and_b32 v39, 1, v33")
    a.e("v_lshl_add_u32 v39, v39, 2, v36")
    a.e("v_lshlrev_b32 v39, 1, v39")
    a.e("v_xor_b32 v39, v39, v35")
    a.e("v_lshlrev_b32 v39, 4, v39")
    a.e(f"v_lshl_add_u32 v{vAD}, v36, 13, v39")
    a.e(f"v_lshl_add_u32 v{vVD}, v36, 8, v39")
    a.e("v_lshrrev_b32 v39, 2, v35")
    a.e("v_and_b32 v40, 1, v36")
    a.e("v_lshl_add_u32 v40, v40, 2, v39")
    a.e("v_lshl_add_u32 v41, v36, 3, v39")
    a.e("v_and_b32 v42, 3, v35")
    a.e("v_lshlrev_b32 v42, 3, v42")
    a.e("v_lshl_add_u32 v41, v41, 8, v42")
    a.e(f"v_add_u32 v41, {RING}, v41")
    a.e("v_lshlrev_b32 v42, 1, v33")
    a.e("v_xor_b32 v42, v42, v40")
    a.e(f"v_lshl_add_u32 v{vA}, v42, 5, v41")
    a.e("v_xor_b32 v42, 1, v42")
    a.e(f"v_lshl_add_u32 v{vA+1}, v42, 5, v41")
    a.e("v_lshrrev_b32 v39, 1, v36")
    a.e("v_lshl_add_u32 v39, v39, 8, v38")
    a.e("v_and_b32 v40, 1, v36")
    a.e("v_lshl_add_u32 v39, v40, 3, v39")
    a.e(f"v_lshl_add_u32 v{vQW}, v33, 10, v39")
    a.e("v_lshlrev_b32 v39, 15, v36")
    a.e(f"v_lshl_add_u32 v{vWO}, v35, 3, v39")
    a.e("v_lshrrev_b32 v39, 3, v35")
    a.e("v_lshlrev_b32 v39, 18, v39")
    a.e("v_lshl_add_u32 v39, v36, 11, v39")
    a.e("v_and_b32 v42, 1, v35")
    a.e("v_lshl_add_u32 v39, v42, 10, v39")
    a.e("v_bfe_u32 v42, v35, 1, 2")
    a.e(f"v_lshl_add_u32 v{vWS}, v42, 6, v39")
    a.e("v_lshlrev_b32 v39, 6, v35")
    a.e(f"v_add_u32 v{vSR}, {RING + 49152}, v39")
    a.e("v_lshl_add_u32 v42, v33, 2, v36")
    a.e(f"v_lshl_add_u32 v{vST}, v42, 2, v{vSR}")
    a.e("v_lshlrev_b32 v43, 8, v35")
    for n in range(4):
        a.e(f"v_add_u32 v39, {4*n}, v36")
        a.e("v_xor_b32 v42, v39, v35")
        a.e("v_lshlrev_b32 v42, 4, v42")
        a.e(f"v_lshl_add_u32 v{vXD+n}, v39, 10, v42")
        a.e(f"v_add_u32 v{vB+n}, v43, v42")
        a.e(f"v_add_u32 v39, {8*n}, v36")
        a.e(f"v_lshl_add_u32 v{vKD+n}, v39, 8, v42")
    a.e(f"v_accvgpr_write_b32 a144, v{vWS}")
    a.e("s_lshl_b32 s50, s46, 12")
    for n in range(4):
        a.e(f"v_add_u32 v{vKR+n}, s50, v{vB+n}")
    a.e("s_mul_i32 s57, s44, 98304")
    a.e("s_lshl_b32 s51, s46, 8")
    a.e("s_add_u32 s57, s57, s51")
    a.e("s_lshl_b32 s61, s44, 5")
    a.e("s_add_u32 s61, s61, s45")
    a.e("s_lshl_b32 s61, s61, 17")
    a.e("s_lshl_b32 s59, s46, 15")
    a.e("s_add_u32 s60, s61, s59")
    a.e("s_mul_i32 m0, s46, 24576")
    a.e(f"s_lshl_b32 s{sAO}, s46, 16")
    a.e("s_lshl_b32 s50, s45, 8")
    a.e(f"s_add_u32 s{sAO}, s{sAO}, s50")
    a.e(f"s_mov_b32 s{sAP}, 32768")
    a.e(f"s_lshl_b32 s58, s46, 11")
    a.e(f"s_add_u32 s58, s58, {RING}")
    a.e(f"s_mov_b32 s{sG}, 0")
    a.e("s_waitcnt lgkmcnt(0)")
    a.stamp()
    srd(a, SX, 4, 786432)
    for n in range(24):
        a.vmem(f"buffer_load_dwordx4 v{vXD + n%4}, s[{SX}:{SX+3}], s57 offen lds", "x")
        a.e("s_add_u32 m0, m0, 1024")
        a.e("s_add_u32 s57, s57, 16384" if n % 4 == 3 else "s_nop 0")
    srd(a, SA, 10, 4194304)
    def Adma(nt=""):
        for blk in range(2):
            for hh in range(2):
                a.e(f"s_add_u32 m0, s{sM}, {blk*8192 + hh*1024}")
                a.e("s_nop 0")
                a.vmem(f"buffer_load_dwordx4 v{vAD}, s[{SA}:{SA+3}], s{sAO} offen lds", "A")
                if hh == 0: a.e(f"s_add_u32 s{sAO}, s{sAO}, s{sAP}")
                else:
                    a.e(f"s_mul_i32 s50, s{sAP}, 7")
                    a.e(f"s_add_u32 s{sAO}, s{sAO}, s50")
    def prefill():
        for n in range(3):
            a.e(f"s_add_u32 s{sM}, s58, {16384*n}")
            Adma()
    prefill()
    srd(a, SWO, 12, 4194304)
    srd(a, SK, 6, 33554432)
    srd(a, SWS, 18, 268435456)
    a.stamp()
    a.e("s_waitcnt vmcnt(12)")
    a.e("s_barrier")
    a.lab("K1_GEMM")
    a.e(f"s_mov_b32 s{sN}, 0")
    for i in range(48): a.e(f"v_mov_b32 v{i}, 0")
    def rdB(buf, k):
        return [f"ds_read_b128 {R('v', BF(buf,t))}, v{vB+k} offset:{t*4096}" for t in range(6)]
    for x in rdB(0, 0): a.e(x)
    a.lab("K1_LOOP")
    for hs in range(2):
        a.e("s_waitcnt vmcnt(8)")
        a.e(f"s_lshl_b32 s50, s{sG}, 3")
        a.e(f"s_add_u32 s50, s50, s{sN}")
        a.e(f"s_cmp_lt_u32 s50, 14")
        a.e(f"s_cbranch_scc1 K1_W{hs}")
        a.e(f"s_waitcnt vmcnt({4 if hs == 0 else 0})")
        a.lab(f"K1_W{hs}")
        a.e("s_barrier")
        for k in range(2):
            for jt in range(2):
                for hh in range(2):
                    a.e(f"ds_read_b64_tr_b16 {R('v', AF(k,jt)+2*hh, 2)}, v{vA+jt} offset:{hs*16384 + k*8192 + hh*1024}")
        def dmablk():
            a.e(f"s_add_u32 s{sM}, s{sN}, 3")
            a.e(f"s_and_b32 s{sM}, s{sM}, 3")
            a.e(f"s_lshl_b32 s{sM}, s{sM}, 14")
            a.e(f"s_add_u32 s{sM}, s{sM}, s58")
            a.e(f"s_cmp_ge_u32 s{sN}, 5")
            a.e(f"s_cbranch_scc1 K1_T{hs}")
            Adma()
            a.e(f"s_branch K1_D{hs}")
            a.lab(f"K1_T{hs}")
            a.e(f"s_cmp_lg_u32 s{sG}, 0")
            a.e(f"s_cbranch_scc1 K1_D{hs}")
            a.e(f"s_sub_u32 s50, s{sN}, 5")
            a.e("s_lshr_b32 s51, s50, 1")
            a.e("s_lshl_b32 s51, s51, 13")
            a.e("s_and_b32 s50, s50, 1")
            a.e("s_lshl_b32 s50, s50, 10")
            a.e("s_add_u32 s50, s50, s51")
            a.e("s_add_u32 s50, s50, s60")
            a.e("s_lshl_b32 s51, s46, 11")
            a.e(f"s_add_u32 m0, s{sM}, s51")
            for n in range(4):
                a.e("s_nop 0")
                a.e(f"buffer_load_dwordx4 v{vKD+n}, s[{SK}:{SK+3}], s50 offen{NT} lds")
                a.e("s_add_u32 m0, m0, 1024")
            a.lab(f"K1_D{hs}")
            a.e(f"s_add_u32 s{sN}, s{sN}, 1")
        for k in range(2):
            if k == 0:
                nxt = rdB(1, 2*hs + 1)
                a.e("s_waitcnt lgkmcnt(4)")
            else:
                dmablk()
                if hs == 1:
                    a.e(f"v_add_u32 v{vB}, 24576, v{vB}")
                nxt = rdB(0, (2*hs + 2) % 4)
                a.e("s_waitcnt lgkmcnt(0)")
            for t in range(6):
                for jt in range(2):
                    a.e(f"v_mfma_f32_16x16x32_bf16 {R('v', ACC(t,jt))}, {R('v', AF(k,jt))}, {R('v', BF(k,t))}, {R('v', ACC(t,jt))}")
                a.e(nxt[t])
    for k in range(1, 4): a.e(f"v_add_u32 v{vB+k}, 24576, v{vB+k}")
    a.e(f"v_xor_b32 v{vA}, 0x38000, v{vA}")
    a.e(f"v_xor_b32 v{vA+1}, 0x38000, v{vA+1}")
    a.e(f"s_cmp_lt_u32 s{sN}, 8")
    a.e("s_cbranch_scc1 K1_LOOP")
    a.e("s_waitcnt lgkmcnt(0)")
    a.e(f"s_cmp_lg_u32 s{sG}, 0")
    a.e("s_cbranch_scc1 K1_EPI")
    a.vm = ["k0"]*4 + ["k1"]*4 + ["k2"]*4
    a.vmB = list(a.vm); a.lg = []
    a.stamp()
    a.e("s_barrier")
    KA = lambda kt, u: 16 * kt + 4 * u
    def kslot(kt):
        return RING + 16384*kt if kt < 3 else 24576 + 16384*((kt - 3) % 4)
    def Kdma(kt):
        a.e("s_lshl_b32 s51, s46, 12")
        a.e(f"s_add_u32 m0, s51, {kslot(kt)}")
        a.e(f"s_add_u32 s50, s60, {8192*(kt//2) + 1024*(kt%2)}")
        for n in range(4):
            a.vmem(f"buffer_load_dwordx4 v{vKD+n}, s[{SK}:{SK+3}], s50 offen{NT} lds", f"k{kt}")
            if n < 3:
                a.e("s_add_u32 m0, m0, 1024")
                a.e("s_nop 0")
    for t in range(6):
        for jt in range(2):
            b = ACC(t, jt)
            a.e(f"v_cvt_pk_bf16_f32 v{b}, v{b}, v{b+1}")
            a.e(f"v_cvt_pk_bf16_f32 v{b+1}, v{b+2}, v{b+3}")
            a.ds(f"ds_write_b64 v{vQW}, {R('v', b, 2)} offset:{t*4096 + jt*512}", "qw")
    def wo_loads():
        a.e("s_lshl_b32 s50, s45, 17")
        a.e("s_lshl_b32 s51, s46, 12")
        a.e("s_add_u32 s50, s50, s51")
        a.e("s_lshl_b32 s51, s44, 7")
        a.e("s_add_u32 s50, s50, s51")
        a.e("s_add_u32 s51, s50, 16384")
        for i in range(8):
            so = 50 if i < 4 else 51
            a.vmem(f"buffer_load_dwordx2 {R('a', 128+2*i, 2)}, v{vWO}, s[{SWO}:{SWO+3}], s{so} offen offset:{(i%4)*1024}", "wo")
    for n in range(4):
        a.e(f"v_add_u32 v{vB+n}, {RING}, v{vKR+n}")
    a.wait_lg0()
    a.e("s_barrier")
    a.stamp()
    SB = lambda kt, t: ((kt % 2)*4 + kt//2)*24 + 4*t
    QF = [192, 208]
    def Kread(kt):
        a.wait_vm(f"k{kt}")
        for u in range(4):
            if kt < 3: a.ds(f"ds_read_b128 {R('a', KA(kt,u))}, v{vB+u} offset:{16384*kt}", f"kr{kt}")
            elif kslot(kt) < 65536: a.ds(f"ds_read_b128 {R('a', KA(kt,u))}, v{vKR+u} offset:{kslot(kt)}", f"kr{kt}")
            else: a.ds(f"ds_read_b128 {R('a', KA(kt,u))}, v{224+u} offset:{kslot(kt)-65536}", f"kr{kt}")
    def rdQ(t, buf, tag):
        for u in range(4):
            a.ds(f"ds_read_b128 {R('v', QF[buf]+4*u)}, v{vL16} offset:{(t*4+u)*1024}", tag)
    for n in range(4):
        a.e(f"v_add_u32 v{224+n}, 0x10000, v{vKR+n}")
    step = 0
    rdQ(0, 0, "q0")
    for G in range(4):
        Kread(2*G); Kread(2*G+1)
        a.wait_lg(f"kr{2*G+1}")
        if G == 1:
            srd(a, SA, 8, 33554432)
            a.e(f"s_lshl_b32 s{sAO}, s46, 11")
            a.e(f"s_add_u32 s{sAO}, s{sAO}, s61")
            a.e(f"s_mov_b32 s{sAP}, 1024")
            a.e(f"v_mov_b32 v{vAD}, v{vVD}")
        for t in range(6):
            if G == 0 and t == 0: Kdma(3)
            if G < 2 and t == 2: Kdma(4 + 2*G)
            if G < 2 and t == 5: Kdma(5 + 2*G)
            if G == 2 and t == 1: wo_loads()
            if G == 2 and t == 3:
                a.e("s_barrier")
                a.e(f"s_add_u32 s{sM}, s58, 0"); Adma()
            if G == 3 and t in (1, 4):
                a.e(f"s_add_u32 s{sM}, s58, {16384*(1 + t//3)}"); Adma()
            nt_ = (step + 1)
            if nt_ < 24:
                rdQ(nt_ % 6, nt_ % 2, f"q{nt_}")
            a.wait_lg(f"q{step}")
            for kt in range(2*G, 2*G+2):
                for u in range(4):
                    cin = "0" if u == 0 else R('v', SB(kt, t))
                    a.e(f"v_mfma_f32_16x16x32_bf16 {R('v', SB(kt,t))}, {R('a', KA(kt,u))}, {R('v', QF[step%2]+4*u)}, {cin}")
            step += 1
    a.nop(6)
    a.stamp()
    cs = math.log2(math.e) / math.sqrt(128.0)
    a.e(f"s_mov_b32 s50, 0x{f32bits(cs):08x}")
    a.e(f"s_mov_b32 s51, 0x{f32bits(cs):08x}")
    vM = 224
    for t in range(6):
        vals = [SB(kt, t) + r for kt in range(8) for r in range(4)]
        m = vM + 2*t
        a.e(f"v_max3_f32 v{m}, v{vals[0]}, v{vals[1]}, v{vals[2]}")
        a.e(f"v_max3_f32 v{m+1}, v{vals[3]}, v{vals[4]}, v{vals[5]}")
        for i in range(6, 30, 4):
            a.e(f"v_max3_f32 v{m}, v{m}, v{vals[i]}, v{vals[i+1]}")
            a.e(f"v_max3_f32 v{m+1}, v{m+1}, v{vals[i+2]}, v{vals[i+3]}")
        a.e(f"v_max3_f32 v{m}, v{m}, v{vals[30]}, v{vals[31]}")
        a.e(f"v_max_f32 v{m}, v{m}, v{m+1}")
        a.ds(f"ds_write_b32 v{vST}, v{m} offset:{t*1024}", "mw")
    a.e("s_mul_i32 s59, s46, 24576")
    a.e(f"v_add_u32 v{vQW}, s59, v{vL16}")
    for n in range(4):
        a.e(f"v_add_u32 v{vB+n}, {1024*n}, v{vL16}")
    a.wait_lg0()
    a.e("s_barrier")
    for t0 in range(0, 6, 2):
        for tt in range(2):
            for x in range(4):
                a.ds(f"ds_read_b128 {R('v', 192+16*tt+4*x)}, v{vSR} offset:{(t0+tt)*1024 + 16*x}", f"g{t0+tt}")
        for tt in range(2):
            a.wait_lg(f"g{t0+tt}")
            b = 192 + 16*tt
            d = vM + 2*(t0 + tt)
            a.e(f"v_max3_f32 v{d}, v{b}, v{b+1}, v{b+2}")
            for i in range(3, 15, 2):
                a.e(f"v_max3_f32 v{d}, v{d}, v{b+i}, v{b+i+1}")
            a.e(f"v_max_f32 v{d}, v{d}, v{b+15}")
            a.e(f"v_mul_f32 v{d}, s50, v{d}")
    for r in range(4):
        a.e(f"v_mov_b32 v{192+r}, 0x3f803f80")
    PB = lambda t, p: 24*p + 4*t
    SUM = lambda t: 196 + 4*t
    def sums(t):
        for p in range(4):
            cin = "0" if p == 0 else R('v', SUM(t))
            a.e(f"v_mfma_f32_16x16x32_bf16 {R('v', SUM(t))}, v[192:195], {R('v', PB(t,p))}, {cin}")
    for t in range(6):
        vals = [SB(kt, t) + r for kt in range(8) for r in range(4)]
        m = vM + 2*t
        for x in vals[::2]:
            a.e(f"v_pk_fma_f32 {R('v',x,2)}, {R('v',x,2)}, s[50:51], {R('v',m,2)} op_sel_hi:[1,1,0] neg_lo:[0,0,1] neg_hi:[0,0,1]")
        if t > 0: sums(t-1)
        for i, x in enumerate(vals):
            a.e(f"v_exp_f32 v{x}, v{x}")
        a.e("s_nop 0")
        for p in range(4):
            e0, e1 = SB(2*p, t), SB(2*p+1, t)
            a.e(f"v_cvt_pk_bf16_f32 v{e0}, v{e0}, v{e0+1}")
            a.e(f"v_cvt_pk_bf16_f32 v{e0+1}, v{e0+2}, v{e0+3}")
            a.e(f"v_cvt_pk_bf16_f32 v{e0+2}, v{e1}, v{e1+1}")
            a.e(f"v_cvt_pk_bf16_f32 v{e0+3}, v{e1+2}, v{e1+3}")
            a.ds(f"ds_write_b128 v{vQW}, {R('v', e0)} offset:{t*4096 + p*1024}", "pw")
    a.nop(2)
    sums(5)
    a.nop(8)
    for t in range(6):
        a.ds(f"ds_write_b32 v{vST}, v{SUM(t)} offset:{6144 + t*1024}", "sw")
    a.wait_lg0()
    a.e("s_barrier")
    for t in range(6):
        for wv in range(4):
            a.ds(f"ds_read_b32 v{192+4*t+wv}, v{vSR} offset:{6144 + t*1024 + 16*wv}", f"sr{t}")
    for t in range(6):
        b = 192 + 4*t
        a.wait_lg(f"sr{t}")
        a.e(f"v_add_f32 v{b}, v{b}, v{b+1}")
        a.e(f"v_add_f32 v{b+2}, v{b+2}, v{b+3}")
        a.e(f"v_add_f32 v{b}, v{b}, v{b+2}")
        a.e(f"v_rcp_f32 v{b}, v{b}")
    a.e(f"s_mov_b32 s{sG}, 1")
    a.stamp()
    a.e("s_branch K1_GEMM")
    a.lab("K1_EPI")
    a.stamp()
    a.e("s_lshl_b32 s50, s44, 6")
    a.e("s_add_u32 s50, s50, s45")
    a.e("s_lshl_b32 s50, s50, 2")
    a.e("s_add_u32 s50, s50, s46")
    a.e("s_mul_i32 s50, s50, 3072")
    a.e("s_add_u32 s51, s50, 393216")
    a.nop(4)
    for t in range(6):
        b = ACC(t, 0)
        for r in range(0, 8, 2):
            a.e(f"v_pk_mul_f32 {R('v',b+r,2)}, {R('v',b+r,2)}, {R('v',192+4*t,2)} op_sel_hi:[1,0]")
        for z in range(4):
            a.e(f"v_cvt_pk_bf16_f32 v{48+4*t+z}, v{b+2*z}, v{b+2*z+1}")
        a.e(f"buffer_store_dwordx4 {R('v', 48+4*t)}, v{vL16}, s[{SWS}:{SWS+3}], s{50 + t//3} offen offset:{1024*(t%3)}")
    a.e("s_lshl_b32 s50, s44, 6")
    a.e("s_add_u32 s50, s50, s45")
    a.e("s_lshl_b32 s50, s50, 13")
    a.e("s_lshl_b32 s51, s46, 8")
    a.e("s_add_u32 s50, s50, s51")
    a.e(f"s_add_u32 s50, s50, {WS_W}")
    a.e(f"v_accvgpr_read_b32 v{vWS}, a144")
    for i in range(16): a.e(f"v_accvgpr_read_b32 v{128+i}, a{128+i}")
    for e in range(4):
        for z in range(4):
            sel = selLo if e % 2 == 0 else selHi
            a.e(f"v_perm_b32 v{144+4*e+z}, v{128+2*(2*z+1)+e//2}, v{128+2*(2*z)+e//2}, s{sel}")
    for e in range(4):
        a.vmem(f"buffer_store_dwordx4 {R('v', 144+4*e)}, v{vWS}, s[{SWS}:{SWS+3}], s50 offen offset:{16*e}", "wst")
    a.stamp()
    a.dump_stamps(SWS, 46)
    a.lab("K1_END")
    a.e("s_endpgm")
    return a

def kernel2(D=12):
    a = Asm()
    SWS, SO = 20, 24
    a.e("s_cmp_ge_u32 s2, 256")
    a.e("s_cbranch_scc1 K2_END")
    a.e("s_load_dwordx2 s[4:5], s[0:1], 40")
    a.e("s_load_dwordx2 s[6:7], s[0:1], 56")
    a.e("v_lshrrev_b32 v1, 6, v0")
    a.e("v_and_b32 v2, 63, v0")
    a.e("v_readfirstlane_b32 s46, v1")
    a.e("v_lshlrev_b32 v255, 4, v2")
    a.e("s_and_b32 s50, s2, 7")
    a.e("s_lshr_b32 s51, s2, 3")
    a.e("s_lshr_b32 s44, s50, 1")
    a.e("s_lshl_b32 s44, s44, 2")
    a.e("s_lshr_b32 s52, s51, 3")
    a.e("s_add_u32 s44, s44, s52")
    a.e("s_and_b32 s45, s50, 1")
    a.e("s_lshl_b32 s45, s45, 3")
    a.e("s_and_b32 s52, s51, 7")
    a.e("s_add_u32 s45, s45, s52")
    a.e("s_lshl_b32 s52, s46, 5")
    a.e("s_lshl_b32 s53, s44, 7")
    a.e("s_add_u32 s53, s53, s52")
    a.e("s_mul_i32 s53, s53, 3072")
    a.e("s_lshl_b32 s54, s45, 7")
    a.e("s_add_u32 s54, s54, s52")
    a.e("s_lshl_b32 s54, s54, 11")
    a.e(f"s_add_u32 s54, s54, {WS_W}")
    a.e("v_and_b32 v3, 15, v2")
    a.e("v_lshrrev_b32 v4, 4, v2")
    a.e("v_lshlrev_b32 v4, 4, v4")
    a.e("v_lshl_add_u32 v254, v3, 10, v4")
    a.e("s_waitcnt lgkmcnt(0)")
    srd(a, SWS, 6, 268435456)
    srd(a, SO, 4, 786432)
    def ld(ks):
        b = 20*(ks % D)
        for x in range(2):
            a.vmem(f"buffer_load_dwordx4 {R('v', b+4*x)}, v255, s[{SWS}:{SWS+3}], s54 offen offset:{1024*x}", f"k{ks}")
        for x in range(3):
            a.vmem(f"buffer_load_dwordx4 {R('v', b+8+4*x)}, v255, s[{SWS}:{SWS+3}], s53 offen offset:{1024*x}", f"k{ks}")
        a.e("s_add_u32 s54, s54, 2048")
        a.e("s_add_u32 s53, s53, 3072")
    for ks in range(D): ld(ks)
    for ks in range(32):
        b = 20*(ks % D)
        a.wait_vm(f"k{ks}")
        for x in range(2):
            for tt in range(3):
                acc = R('a', 4*(tt*2 + x))
                cin = "0" if ks == 0 else acc
                a.e(f"v_mfma_f32_16x16x32_bf16 {acc}, {R('v', b+4*x)}, {R('v', b+8+4*tt)}, {cin}")
        if ks + D < 32:
            ld(ks + D)
    a.e("s_mul_i32 s52, s46, 6144")
    a.e("v_add_u32 v253, s52, v255")
    a.e("s_lshl_b32 s52, s46, 11")
    a.e("v_add_u32 v252, s52, v255")
    a.nop(8)
    for u in range(6):
        a.ds(f"ds_write_b128 v253, {R('a', 4*u)} offset:{1024*u}", "w")
    a.wait_lg0()
    a.e("s_barrier")
    a.e("s_cmp_eq_u32 s46, 3")
    a.e("s_cbranch_scc1 K2_END")
    for s in range(4):
        for x in range(2):
            a.ds(f"ds_read_b128 {R('v', 8*s+4*x)}, v252 offset:{6144*s + 1024*x}", "r")
    a.e("s_mul_i32 s52, s44, 49152")
    a.e("s_lshl_b32 s53, s46, 14")
    a.e("s_add_u32 s52, s52, s53")
    a.e("s_lshl_b32 s53, s45, 6")
    a.e("s_add_u32 s52, s52, s53")
    a.wait_lg0()
    for i in range(8):
        a.e(f"v_add_f32 v{i}, v{i}, v{8+i}")
        a.e(f"v_add_f32 v{16+i}, v{16+i}, v{24+i}")
    for i in range(8):
        a.e(f"v_add_f32 v{i}, v{i}, v{16+i}")
    for i in range(4):
        a.e(f"v_cvt_pk_bf16_f32 v{32+i}, v{2*i}, v{2*i+1}")
    a.vmem(f"buffer_store_dwordx4 v[32:35], v254, s[{SO}:{SO+3}], s52 offen", "o")
    a.lab("K2_END")
    a.e("s_endpgm")
    return a

def desc(name, nfv, acc):
    return f""".amdhsa_kernel {name}
  .amdhsa_next_free_vgpr {nfv}
  .amdhsa_next_free_sgpr 102
  .amdhsa_accum_offset {acc}
  .amdhsa_group_segment_fixed_size 0
  .amdhsa_kernarg_size 64
  .amdhsa_user_sgpr_count 2
  .amdhsa_user_sgpr_kernarg_segment_ptr 1
  .amdhsa_system_sgpr_workgroup_id_x 1
.end_amdhsa_kernel"""

def main():
    hdr = open("cdna_kernels/" + NAME + ".s.ref").read().split("\n")
    top = [l for l in hdr if l.startswith(";") and "@launch" not in l and "Override" not in l and "grid=ceil" not in l]
    out = list(top)
    out.append(f"; @launch kernel={K1} grid=(256,1,1) block=(256,1,1) lds=163840")
    out.append(f"; @launch kernel={K2} grid=(256,1,1) block=(256,1,1) lds=24576")
    out.append('.amdgcn_target "amdgcn-amd-amdhsa--gfx950"')
    out.append(".text")
    for name, k in ((K1, kernel1()), (K2, kernel2())):
        out += [f".globl {name}", ".p2align 8", f".type {name},@function", f"{name}:"]
        out += k.L
    out += ['.section .rodata,"a"', ".p2align 6", desc(K1, 512, 256), ".p2align 6", desc(K2, 280, 256)]
    path = sys.argv[1] if len(sys.argv) > 1 else "cdna_kernels/" + NAME + ".s"
    open(path, "w").write("\n".join(out) + "\n")

main()
```

```python
import sys, math, struct

NAME = "standalone__gqa_block_cached__near_ridge"
K1 = NAME + "_kernel"
K2 = "oproj_kernel"
import os
STAMP = bool(os.environ.get("STAMP"))
STAMP_OFF = 0
WS_W = 8 * 1024 * 1024

def f32bits(x):
    return struct.unpack("<I", struct.pack("<f", x))[0]

class Asm:
    def __init__(self):
        self.L = []
        self.vm = []
        self.lg = []
        self.ns = 0
        self.vmB = []
        self.cur = None
        self.nl = 0
    def e(self, s):
        self.L.append("    " + s)
    def lab(self, s):
        self.L.append(s + ":")
    def c(self, s):
        self.L.append("    ; " + s)
    def vmem(self, s, tag):
        self.e(s)
        if self.cur in (None, 0): self.vm.append(tag)
        if self.cur in (None, 1): self.vmB.append(tag)
    def only(self, g, fn):
        self.nl += 1
        L = f"K1_G{self.nl}"
        self.e(f"s_cmp_lg_u32 s47, {g}")
        self.e(f"s_cbranch_scc1 {L}")
        self.cur = g
        lg = list(self.lg)
        fn()
        self.e("s_waitcnt lgkmcnt(0)") if self.lg != lg else None
        self.lg = lg
        self.cur = None
        self.lab(L)
    def ds(self, s, tag):
        self.e(s); self.lg.append(tag)
    def wait_vm(self, tag):
        def cnt(l):
            idx = max(i for i, t in enumerate(l) if t == tag)
            return min(len(l) - 1 - idx, 63)
        if self.cur is not None:
            self.e(f"s_waitcnt vmcnt({cnt(self.vm if self.cur == 0 else self.vmB)})"); return
        nA, nB = cnt(self.vm), cnt(self.vmB)
        if nA != nB:
            g = 0 if nA < nB else 1
            self.nl += 1
            L = f"K1_G{self.nl}"
            self.e(f"s_cmp_lg_u32 s47, {g}")
            self.e(f"s_cbranch_scc1 {L}")
            self.e(f"s_waitcnt vmcnt({min(nA,nB)})")
            self.lab(L)
        self.e(f"s_waitcnt vmcnt({max(nA,nB)})")
    def wait_lg(self, tag):
        idx = max(i for i, t in enumerate(self.lg) if t == tag)
        n = min(len(self.lg) - 1 - idx, 15)
        self.e(f"s_waitcnt lgkmcnt({n})")
    def wait_lg0(self):
        self.e("s_waitcnt lgkmcnt(0)")
    def stamp(self):
        if not STAMP: return
        k = self.ns; self.ns += 1
        self.e(f"s_memtime s[{64+2*k}:{65+2*k}]")
        self.e("s_waitcnt lgkmcnt(0)")
    def dump_stamps(self, srd_, wave_s):
        if not STAMP: return
        self.e("s_lshl_b32 s50, s2, 2")
        self.e(f"s_add_u32 s50, s50, s{wave_s}")
        self.e("s_lshl_b32 s50, s50, 7")
        self.e(f"s_add_u32 s50, s50, {16*1024*1024 + STAMP_OFF}")
        self.e("v_mov_b32 v1, 0")
        for k in range(self.ns):
            self.e(f"v_mov_b32 v2, s{64+2*k}")
            self.e(f"buffer_store_dword v2, v1, s[{srd_}:{srd_+3}], s50 offen offset:{4*k}")
            self.e("s_nop 1")
    def nop(self, n):
        while n > 0:
            k = min(n, 16)
            self.e(f"s_nop {k-1}")
            n -= k

def R(kind, b, n=4):
    return f"{kind}[{b}:{b+n-1}]" if n > 1 else f"{kind}{b}"

def srd(a, d, p, nbytes):
    a.e(f"s_mov_b32 s{d}, s{p}")
    a.e(f"s_and_b32 s{d+1}, s{p+1}, 0xffff")
    a.e(f"s_mov_b32 s{d+2}, {nbytes}")
    a.e(f"s_mov_b32 s{d+3}, 0x00020000")

def interleave(a, mf, va, maxper=2, lastfree=2):
    va = list(va)
    n = len(mf)
    slots = max(n - lastfree, 1)
    per = -(-len(va) // slots) if va else 0
    for i, m in enumerate(mf):
        a.e(m)
        if i < slots:
            for _ in range(per):
                if va: a.e(va.pop(0))
    assert not va

def interleave2(a, mf, va, ld, lastfree=2):
    va = list(va); ld = list(ld)
    n = len(mf)
    slots = max(n - lastfree, 1)
    per = -(-len(va) // slots) if va else 0
    nl = len(ld)
    done = 0
    for i, m in enumerate(mf):
        if callable(m): m()
        else: a.e(m)
        if i < slots:
            for _ in range(per):
                if va: a.e(va.pop(0))
        while done < nl and (done + 0.5) * n <= (i + 1) * nl:
            ld[done](); done += 1
    while done < nl:
        ld[done](); done += 1
    assert not va

def kernel1():
    a = Asm()
    SX, SK, SV, SA, SWO, SWS = 20, 24, 28, 32, 36, 40
    selLo, selHi = 48, 49
    NT = " nt" if os.environ.get("NT", "1") == "1" else ""
    RING = 98304
    vL16, vST, vSR, vQW = 255, 254, 253, 252
    vKR, vB, vA = 248, 244, 242
    vAD, vVD, vKD, vXD, vWO, vWS, vRW = 240, 241, 236, 232, 230, 231, 229
    ACC = lambda t, jt: (t*2 + jt)*4
    BF = lambda buf, t: 48 + 24*buf + 4*t
    AF = lambda k, jt: 96 + 8*k + 4*jt
    sN, sG, sAO, sAP, sM = 52, 53, 54, 55, 56
    VB = [int(x) for x in os.environ.get("VB", "4,6,4,11").split(",")]
    a.e("s_cmp_ge_u32 s2, 256")
    a.e("s_cbranch_scc1 K1_END")
    a.e("s_load_dwordx16 s[4:19], s[0:1], 0")
    a.e("v_lshrrev_b32 v32, 6, v0")
    a.e("v_and_b32 v34, 63, v0")
    a.e("v_and_b32 v33, 3, v32")
    a.e("v_readfirstlane_b32 s47, v32")
    a.e("v_readfirstlane_b32 s46, v33")
    a.e("v_and_b32 v35, 15, v34")
    a.e("v_lshrrev_b32 v36, 4, v34")
    a.e("s_lshr_b32 s44, s2, 5")
    a.e("s_and_b32 s50, s2, 7")
    a.e("s_lshl_b32 s50, s50, 2")
    a.e("s_lshr_b32 s51, s2, 3")
    a.e("s_and_b32 s51, s51, 3")
    a.e("s_add_u32 s45, s50, s51")
    a.e(f"v_lshlrev_b32 v{vL16}, 4, v34")
    a.e("v_lshlrev_b32 v38, 4, v35")
    a.e("v_lshlrev_b32 v43, 8, v35")
    a.e("s_cmp_ge_u32 s47, 4")
    a.e("s_cbranch_scc1 K1_LOADER")
    a.e("v_lshrrev_b32 v39, 2, v35")
    a.e("v_and_b32 v40, 1, v36")
    a.e("v_lshl_add_u32 v40, v40, 2, v39")
    a.e("v_lshl_add_u32 v41, v36, 3, v39")
    a.e("v_and_b32 v42, 3, v35")
    a.e("v_lshlrev_b32 v42, 3, v42")
    a.e("v_lshl_add_u32 v41, v41, 8, v42")
    a.e(f"v_add_u32 v41, {RING}, v41")
    a.e("v_lshlrev_b32 v42, 1, v33")
    a.e("v_xor_b32 v42, v42, v40")
    a.e(f"v_lshl_add_u32 v{vA}, v42, 5, v41")
    a.e("v_xor_b32 v42, 1, v42")
    a.e(f"v_lshl_add_u32 v{vA+1}, v42, 5, v41")
    a.e("v_lshrrev_b32 v39, 1, v36")
    a.e("v_lshl_add_u32 v39, v39, 8, v38")
    a.e("v_and_b32 v40, 1, v36")
    a.e("v_lshl_add_u32 v39, v40, 3, v39")
    a.e(f"v_lshl_add_u32 v{vQW}, v33, 10, v39")
    a.e("v_lshlrev_b32 v39, 6, v35")
    a.e(f"v_add_u32 v{vSR}, {RING + 49152}, v39")
    a.e("v_lshl_add_u32 v42, v33, 2, v36")
    a.e(f"v_lshl_add_u32 v{vST}, v42, 2, v{vSR}")
    a.e("s_lshl_b32 s50, s46, 12")
    a.e("s_add_u32 s50, s50, 24576")
    for n in range(4):
        a.e(f"v_add_u32 v39, {4*n}, v36")
        a.e("v_xor_b32 v42, v39, v35")
        a.e(f"v_lshl_add_u32 v{vB+n}, v42, 4, v43")
        a.e(f"v_add_u32 v{vKR+n}, s50, v{vB+n}")
    a.e(f"s_mov_b32 s{sG}, 0")
    a.e("s_waitcnt lgkmcnt(0)")
    a.stamp()
    srd(a, SWS, 18, 268435456)
    a.e("s_barrier")
    a.stamp()
    a.lab("K1_GEMM")
    a.e(f"s_mov_b32 s{sN}, 0")
    def rdB(buf, k):
        return [f"ds_read_b128 {R('v', BF(buf,t))}, v{vB+k} offset:{t*4096}" for t in range(6)]
    for x in rdB(0, 0): a.e(x)
    for i in range(48): a.e(f"v_mov_b32 v{i}, 0")
    a.lab("K1_LOOP")
    for hs in range(2):
        a.e("s_barrier")
        for k in range(2):
            for jt in range(2):
                for hh in range(2):
                    a.e(f"ds_read_b64_tr_b16 {R('v', AF(k,jt)+2*hh, 2)}, v{vA+jt} offset:{hs*16384 + k*8192 + hh*1024}")
        for x in rdB(1, 2*hs + 1): a.e(x)
        for k in range(2):
            if k == 0:
                nxt = [None]*6
                a.e("s_waitcnt lgkmcnt(10)")
            else:
                if hs == 1:
                    a.e(f"v_add_u32 v{vB}, 24576, v{vB}")
                nxt = rdB(0, (2*hs + 2) % 4)
                a.e("s_waitcnt lgkmcnt(0)")
            for t in range(6):
                for jt in range(2):
                    a.e(f"v_mfma_f32_16x16x32_bf16 {R('v', ACC(t,jt))}, {R('v', AF(k,jt))}, {R('v', BF(k,t))}, {R('v', ACC(t,jt))}")
                if nxt[t]: a.e(nxt[t])
    for k in range(1, 4): a.e(f"v_add_u32 v{vB+k}, 24576, v{vB+k}")
    a.e(f"v_xor_b32 v{vA}, 0x38000, v{vA}")
    a.e(f"v_xor_b32 v{vA+1}, 0x38000, v{vA+1}")
    a.e(f"s_add_u32 s{sN}, s{sN}, 2")
    a.e(f"s_cmp_lt_u32 s{sN}, 8")
    a.e("s_cbranch_scc1 K1_LOOP")
    a.e("s_waitcnt lgkmcnt(0)")
    a.e(f"s_cmp_lg_u32 s{sG}, 0")
    a.e("s_cbranch_scc1 K1_EPI")
    a.lg = []
    a.stamp()
    a.e("s_barrier")
    for t in range(6):
        for jt in range(2):
            b = ACC(t, jt)
            a.e(f"v_cvt_pk_bf16_f32 v{b}, v{b}, v{b+1}")
            a.e(f"v_cvt_pk_bf16_f32 v{b+1}, v{b+2}, v{b+3}")
            a.ds(f"ds_write_b64 v{vQW}, {R('v', b, 2)} offset:{t*4096 + jt*512}", "qw")
    for n in range(4):
        a.e(f"v_add_u32 v{vB+n}, {RING - 24576}, v{vKR+n}")
    a.wait_lg0()
    SB = lambda kt, t: ((kt % 2)*4 + kt//2)*24 + 4*t
    KF = lambda x, u: 192 + 16*x + 4*u
    QF = lambda u: 224 + 4*u
    def kslot(kt):
        return RING + 16384*(kt % 7) if kt < 3 or kt == 7 else 24576 + 16384*(kt - 3)
    def rdQ(t, u):
        a.ds(f"ds_read_b128 {R('v', QF(u))}, v{vL16} offset:{(t*4+u)*1024}", f"q{t}_{u}")
    for G in range(4):
        a.e("s_barrier")
        if G == 0:
            a.stamp()
            for u in range(4): rdQ(0, u)
        for u in range(4):
            for x in range(2):
                kt = 2*G + x
                if kslot(kt) >= RING: a.ds(f"ds_read_b128 {R('v', KF(x,u))}, v{vB+u} offset:{kslot(kt)-RING}", f"kr{u}")
                else: a.ds(f"ds_read_b128 {R('v', KF(x,u))}, v{vKR+u} offset:{kslot(kt)-24576}", f"kr{u}")
        for t in range(6):
            for u in range(4):
                a.wait_lg(f"kr{u}" if t == 0 else f"q{t}_{u}")
                for x in range(2):
                    kt = 2*G + x
                    cin = "0" if u == 0 else R('v', SB(kt, t))
                    a.e(f"v_mfma_f32_16x16x32_bf16 {R('v', SB(kt,t))}, {R('v', KF(x,u))}, {R('v', QF(u))}, {cin}")
                if not (G == 3 and t == 5): rdQ((t+1) % 6, u)
    a.nop(8)
    a.stamp()
    cs = math.log2(math.e) / math.sqrt(128.0)
    a.e(f"s_mov_b32 s50, 0x{f32bits(cs):08x}")
    a.e(f"s_mov_b32 s51, 0x{f32bits(cs):08x}")
    vM = 224
    for t in range(6):
        vals = [SB(kt, t) + r for kt in range(8) for r in range(4)]
        m = vM + 2*t
        a.e(f"v_max3_f32 v{m}, v{vals[0]}, v{vals[1]}, v{vals[2]}")
        a.e(f"v_max3_f32 v{m+1}, v{vals[3]}, v{vals[4]}, v{vals[5]}")
        for i in range(6, 30, 4):
            a.e(f"v_max3_f32 v{m}, v{m}, v{vals[i]}, v{vals[i+1]}")
            a.e(f"v_max3_f32 v{m+1}, v{m+1}, v{vals[i+2]}, v{vals[i+3]}")
        a.e(f"v_max3_f32 v{m}, v{m}, v{vals[30]}, v{vals[31]}")
        a.e(f"v_max_f32 v{m}, v{m}, v{m+1}")
        a.ds(f"ds_write_b32 v{vST}, v{m} offset:{t*1024}", "mw")
    a.e("s_mul_i32 s59, s46, 24576")
    a.e(f"v_add_u32 v{vQW}, s59, v{vL16}")
    for n in range(4):
        a.e(f"v_add_u32 v{vB+n}, {1024*n}, v{vL16}")
    a.wait_lg0()
    a.e("s_barrier")
    for t0 in range(0, 6, 2):
        for tt in range(2):
            for x in range(4):
                a.ds(f"ds_read_b128 {R('v', 192+16*tt+4*x)}, v{vSR} offset:{(t0+tt)*1024 + 16*x}", f"g{t0+tt}")
        for tt in range(2):
            a.wait_lg(f"g{t0+tt}")
            b = 192 + 16*tt
            d = vM + 2*(t0 + tt)
            a.e(f"v_max3_f32 v{d}, v{b}, v{b+1}, v{b+2}")
            for i in range(3, 15, 2):
                a.e(f"v_max3_f32 v{d}, v{d}, v{b+i}, v{b+i+1}")
            a.e(f"v_max_f32 v{d}, v{d}, v{b+15}")
            a.e(f"v_mul_f32 v{d}, s50, v{d}")
    for r in range(4):
        a.e(f"v_mov_b32 v{192+r}, 0x3f803f80")
    PB = lambda t, p: 24*p + 4*t
    SUM = lambda t: 196 + 4*t
    def sums(t):
        for p in range(4):
            cin = "0" if p == 0 else R('v', SUM(t))
            a.e(f"v_mfma_f32_16x16x32_bf16 {R('v', SUM(t))}, v[192:195], {R('v', PB(t,p))}, {cin}")
    for t in range(6):
        vals = [SB(kt, t) + r for kt in range(8) for r in range(4)]
        m = vM + 2*t
        for x in vals[::2]:
            a.e(f"v_pk_fma_f32 {R('v',x,2)}, {R('v',x,2)}, s[50:51], {R('v',m,2)} op_sel_hi:[1,1,0] neg_lo:[0,0,1] neg_hi:[0,0,1]")
        if t > 0: sums(t-1)
        for i, x in enumerate(vals):
            a.e(f"v_exp_f32 v{x}, v{x}")
        a.e("s_nop 0")
        for p in range(4):
            e0, e1 = SB(2*p, t), SB(2*p+1, t)
            a.e(f"v_cvt_pk_bf16_f32 v{e0}, v{e0}, v{e0+1}")
            a.e(f"v_cvt_pk_bf16_f32 v{e0+1}, v{e0+2}, v{e0+3}")
            a.e(f"v_cvt_pk_bf16_f32 v{e0+2}, v{e1}, v{e1+1}")
            a.e(f"v_cvt_pk_bf16_f32 v{e0+3}, v{e1+2}, v{e1+3}")
            a.ds(f"ds_write_b128 v{vQW}, {R('v', e0)} offset:{t*4096 + p*1024}", "pw")
    a.nop(2)
    sums(5)
    a.nop(8)
    for t in range(6):
        a.ds(f"ds_write_b32 v{vST}, v{SUM(t)} offset:{6144 + t*1024}", "sw")
    a.wait_lg0()
    a.e("s_barrier")
    for t in range(6):
        for wv in range(4):
            a.ds(f"ds_read_b32 v{192+4*t+wv}, v{vSR} offset:{6144 + t*1024 + 16*wv}", f"sr{t}")
    for t in range(6):
        b = 192 + 4*t
        a.wait_lg(f"sr{t}")
        a.e(f"v_add_f32 v{b}, v{b}, v{b+1}")
        a.e(f"v_add_f32 v{b+2}, v{b+2}, v{b+3}")
        a.e(f"v_add_f32 v{b}, v{b}, v{b+2}")
        a.e(f"v_rcp_f32 v{b}, v{b}")
    a.e(f"s_mov_b32 s{sG}, 1")
    a.stamp()
    a.e("s_branch K1_GEMM")
    a.lab("K1_EPI")
    a.stamp()
    a.e("s_lshl_b32 s50, s44, 6")
    a.e("s_add_u32 s50, s50, s45")
    a.e("s_lshl_b32 s50, s50, 2")
    a.e("s_add_u32 s50, s50, s46")
    a.e("s_mul_i32 s50, s50, 3072")
    a.e("s_add_u32 s51, s50, 393216")
    a.nop(4)
    for t in range(6):
        b = ACC(t, 0)
        for r in range(0, 8, 2):
            a.e(f"v_pk_mul_f32 {R('v',b+r,2)}, {R('v',b+r,2)}, {R('v',192+4*t,2)} op_sel_hi:[1,0]")
        for z in range(4):
            a.e(f"v_cvt_pk_bf16_f32 v{48+4*t+z}, v{b+2*z}, v{b+2*z+1}")
        a.e(f"buffer_store_dwordx4 {R('v', 48+4*t)}, v{vL16}, s[{SWS}:{SWS+3}], s{50 + t//3} offen offset:{1024*(t%3)}")
    a.stamp()
    a.dump_stamps(SWS, 46)
    a.e("s_endpgm")
    a.lab("K1_LOADER")
    a.vm = []; a.vmB = []; a.lg = []
    for n in range(4):
        a.e(f"v_add_u32 v39, {4*n}, v36")
        a.e("v_xor_b32 v42, v39, v35")
        a.e("v_lshlrev_b32 v42, 4, v42")
        a.e(f"v_lshl_add_u32 v{vXD+n}, v39, 10, v42")
        a.e(f"v_add_u32 v39, {8*n}, v36")
        a.e(f"v_lshl_add_u32 v{vKD+n}, v39, 8, v42")
    a.e("s_mul_i32 s57, s44, 98304")
    a.e("s_lshl_b32 s51, s46, 8")
    a.e("s_add_u32 s57, s57, s51")
    a.e("s_mul_i32 m0, s46, 24576")
    a.e("s_waitcnt lgkmcnt(0)")
    srd(a, SX, 4, 786432)
    for n in range(24):
        a.vmem(f"buffer_load_dwordx4 v{vXD + n%4}, s[{SX}:{SX+3}], s57 offen lds", "x")
        a.e("s_add_u32 m0, m0, 1024")
        a.e("s_add_u32 s57, s57, 16384" if n % 4 == 3 else "s_nop 0")
    a.e("v_and_b32 v39, 1, v33")
    a.e("v_lshl_add_u32 v39, v39, 2, v36")
    a.e("v_lshlrev_b32 v39, 1, v39")
    a.e("v_xor_b32 v39, v39, v35")
    a.e("v_lshlrev_b32 v39, 4, v39")
    a.e(f"v_lshl_add_u32 v{vAD}, v36, 13, v39")
    a.e(f"v_lshl_add_u32 v{vVD}, v36, 8, v39")
    a.e(f"s_lshl_b32 s{sAO}, s46, 16")
    a.e("s_lshl_b32 s50, s45, 8")
    a.e(f"s_add_u32 s{sAO}, s{sAO}, s50")
    a.e(f"s_lshl_b32 s58, s46, 11")
    a.e(f"s_add_u32 s58, s58, {RING}")
    srd(a, SA, 10, 4194304)
    def Adma(n):
        for blk in range(2):
            for hh in range(2):
                a.e(f"s_add_u32 m0, s58, {(n%4)*16384 + blk*8192 + hh*1024}")
                a.e("s_nop 0")
                a.vmem(f"buffer_load_dwordx4 v{vAD}, s[{SA}:{SA+3}], s{sAO} offen lds", f"A{n}")
                a.e(f"s_add_u32 s{sAO}, s{sAO}, {32768 if hh == 0 else 32768*7}")
    for n in range(3): Adma(n)
    srd(a, SK, 6, 33554432)
    srd(a, SV, 8, 33554432)
    srd(a, SWO, 12, 4194304)
    srd(a, SWS, 18, 268435456)
    a.e(f"s_mov_b32 s{selLo}, 0x05040100")
    a.e(f"s_mov_b32 s{selHi}, 0x07060302")
    a.e("s_lshl_b32 s61, s44, 5")
    a.e("s_add_u32 s61, s61, s45")
    a.e("s_lshl_b32 s61, s61, 17")
    a.e("s_lshl_b32 s59, s46, 15")
    a.e("s_add_u32 s60, s61, s59")
    a.e("s_lshl_b32 s59, s46, 11")
    a.e("s_add_u32 s61, s61, s59")
    a.e("s_lshl_b32 s59, s46, 12")
    a.e(f"v_add_u32 v{vRW}, s58, v{vL16}")
    a.e("v_lshlrev_b32 v39, 15, v36")
    a.e(f"v_lshl_add_u32 v{vWO}, v35, 3, v39")
    a.e("v_lshrrev_b32 v39, 3, v35")
    a.e("v_lshlrev_b32 v39, 18, v39")
    a.e("v_lshl_add_u32 v39, v36, 11, v39")
    a.e("v_and_b32 v42, 1, v35")
    a.e("v_lshl_add_u32 v39, v42, 10, v39")
    a.e("v_bfe_u32 v42, v35, 1, 2")
    a.e(f"v_lshl_add_u32 v{vWS}, v42, 6, v39")
    def Kdma(kt):
        a.e(f"s_add_u32 m0, s59, {kslot(kt)}")
        a.e(f"s_add_u32 s50, s60, {8192*(kt//2) + 1024*(kt%2)}")
        for n in range(4):
            a.vmem(f"buffer_load_dwordx4 v{vKD+n}, s[{SK}:{SK+3}], s50 offen{NT} lds", f"k{kt}")
            if n < 3:
                a.e("s_add_u32 m0, m0, 1024")
                a.e("s_nop 0")
    Vq = [(n, x) for n in range(8) for x in range(4)]
    def Vld(cnt):
        for _ in range(cnt):
            if not Vq: return
            n, x = Vq.pop(0)
            a.e(f"s_add_u32 s50, s61, {n*16384 + (x//2)*8192}")
            a.vmem(f"buffer_load_dwordx4 {R('v', 16*n+4*x)}, v{vVD}, s[{SV}:{SV+3}], s50 offen offset:{1024*(x%2)}{NT}", f"v{n}")
    def Vwr(n):
        a.wait_vm(f"v{n}")
        for x in range(4):
            a.ds(f"ds_write_b128 v{vRW}, {R('v', 16*n+4*x)} offset:{(n%4)*16384 + (x//2)*8192 + (x%2)*1024}", "vw")
    a.wait_vm("x")
    a.e("s_barrier")
    for n in range(8):
        a.wait_vm(f"A{n}")
        a.e("s_barrier")
        if n < 5: Adma(n + 3)
        else: Kdma(n - 5)
    a.e("s_barrier")
    Kdma(3); Kdma(4)
    a.wait_vm("k1"); a.e("s_barrier")
    Kdma(5); Kdma(6)
    a.wait_vm("k3"); a.e("s_barrier")
    Kdma(7)
    Vld(VB[0])
    a.wait_vm("k5"); a.e("s_barrier")
    Vld(VB[1])
    a.wait_vm("k7"); a.e("s_barrier")
    Vld(VB[2])
    a.e("s_barrier")
    Vld(VB[3])
    for n in range(3): Vwr(n)
    a.e("s_barrier")
    Vld(99)
    a.e("s_lshl_b32 s50, s45, 17")
    a.e("s_add_u32 s50, s50, s59")
    a.e("s_lshl_b32 s51, s44, 7")
    a.e("s_add_u32 s50, s50, s51")
    a.e("s_add_u32 s51, s50, 16384")
    for i in range(8):
        so = 50 if i < 4 else 51
        a.vmem(f"buffer_load_dwordx2 {R('v', 128+2*i, 2)}, v{vWO}, s[{SWO}:{SWO+3}], s{so} offen offset:{(i%4)*1024}", "wo")
    for n in range(8):
        a.wait_lg0()
        a.e("s_barrier")
        if n < 5: Vwr(n + 3)
        if n == 5:
            a.e("s_lshl_b32 s50, s44, 6")
            a.e("s_add_u32 s50, s50, s45")
            a.e("s_lshl_b32 s50, s50, 13")
            a.e("s_lshl_b32 s51, s46, 8")
            a.e("s_add_u32 s50, s50, s51")
            a.e(f"s_add_u32 s50, s50, {WS_W}")
            a.wait_vm("wo")
            for e in range(4):
                for z in range(4):
                    sel = selLo if e % 2 == 0 else selHi
                    a.e(f"v_perm_b32 v{144+4*e+z}, v{128+2*(2*z+1)+e//2}, v{128+2*(2*z)+e//2}, s{sel}")
            for e in range(4):
                a.vmem(f"buffer_store_dwordx4 {R('v', 144+4*e)}, v{vWS}, s[{SWS}:{SWS+3}], s50 offen offset:{16*e}", "wst")
    a.lab("K1_END")
    a.e("s_endpgm")
    return a

def kernel2(D=12):
    a = Asm()
    SWS, SO = 20, 24
    a.e("s_cmp_ge_u32 s2, 256")
    a.e("s_cbranch_scc1 K2_END")
    a.e("s_load_dwordx2 s[4:5], s[0:1], 40")
    a.e("s_load_dwordx2 s[6:7], s[0:1], 56")
    a.e("v_lshrrev_b32 v1, 6, v0")
    a.e("v_and_b32 v2, 63, v0")
    a.e("v_readfirstlane_b32 s46, v1")
    a.e("v_lshlrev_b32 v255, 4, v2")
    a.e("s_and_b32 s50, s2, 7")
    a.e("s_lshr_b32 s51, s2, 3")
    a.e("s_lshr_b32 s44, s50, 1")
    a.e("s_lshl_b32 s44, s44, 2")
    a.e("s_lshr_b32 s52, s51, 3")
    a.e("s_add_u32 s44, s44, s52")
    a.e("s_and_b32 s45, s50, 1")
    a.e("s_lshl_b32 s45, s45, 3")
    a.e("s_and_b32 s52, s51, 7")
    a.e("s_add_u32 s45, s45, s52")
    a.e("s_lshl_b32 s52, s46, 5")
    a.e("s_lshl_b32 s53, s44, 7")
    a.e("s_add_u32 s53, s53, s52")
    a.e("s_mul_i32 s53, s53, 3072")
    a.e("s_lshl_b32 s54, s45, 7")
    a.e("s_add_u32 s54, s54, s52")
    a.e("s_lshl_b32 s54, s54, 11")
    a.e(f"s_add_u32 s54, s54, {WS_W}")
    a.e("v_and_b32 v3, 15, v2")
    a.e("v_lshrrev_b32 v4, 4, v2")
    a.e("v_lshlrev_b32 v4, 4, v4")
    a.e("v_lshl_add_u32 v254, v3, 10, v4")
    a.e("s_waitcnt lgkmcnt(0)")
    srd(a, SWS, 6, 268435456)
    srd(a, SO, 4, 786432)
    def ld(ks):
        b = 20*(ks % D)
        for x in range(2):
            a.vmem(f"buffer_load_dwordx4 {R('v', b+4*x)}, v255, s[{SWS}:{SWS+3}], s54 offen offset:{1024*x}", f"k{ks}")
        for x in range(3):
            a.vmem(f"buffer_load_dwordx4 {R('v', b+8+4*x)}, v255, s[{SWS}:{SWS+3}], s53 offen offset:{1024*x}", f"k{ks}")
        a.e("s_add_u32 s54, s54, 2048")
        a.e("s_add_u32 s53, s53, 3072")
    for ks in range(D): ld(ks)
    for ks in range(32):
        b = 20*(ks % D)
        a.wait_vm(f"k{ks}")
        for x in range(2):
            for tt in range(3):
                acc = R('a', 4*(tt*2 + x))
                cin = "0" if ks == 0 else acc
                a.e(f"v_mfma_f32_16x16x32_bf16 {acc}, {R('v', b+4*x)}, {R('v', b+8+4*tt)}, {cin}")
        if ks + D < 32:
            ld(ks + D)
    a.e("s_mul_i32 s52, s46, 6144")
    a.e("v_add_u32 v253, s52, v255")
    a.e("s_lshl_b32 s52, s46, 11")
    a.e("v_add_u32 v252, s52, v255")
    a.nop(8)
    for u in range(6):
        a.ds(f"ds_write_b128 v253, {R('a', 4*u)} offset:{1024*u}", "w")
    a.wait_lg0()
    a.e("s_barrier")
    a.e("s_cmp_eq_u32 s46, 3")
    a.e("s_cbranch_scc1 K2_END")
    for s in range(4):
        for x in range(2):
            a.ds(f"ds_read_b128 {R('v', 8*s+4*x)}, v252 offset:{6144*s + 1024*x}", "r")
    a.e("s_mul_i32 s52, s44, 49152")
    a.e("s_lshl_b32 s53, s46, 14")
    a.e("s_add_u32 s52, s52, s53")
    a.e("s_lshl_b32 s53, s45, 6")
    a.e("s_add_u32 s52, s52, s53")
    a.wait_lg0()
    for i in range(8):
        a.e(f"v_add_f32 v{i}, v{i}, v{8+i}")
        a.e(f"v_add_f32 v{16+i}, v{16+i}, v{24+i}")
    for i in range(8):
        a.e(f"v_add_f32 v{i}, v{i}, v{16+i}")
    for i in range(4):
        a.e(f"v_cvt_pk_bf16_f32 v{32+i}, v{2*i}, v{2*i+1}")
    a.vmem(f"buffer_store_dwordx4 v[32:35], v254, s[{SO}:{SO+3}], s52 offen", "o")
    a.lab("K2_END")
    a.e("s_endpgm")
    return a

def desc(name, nfv, acc):
    return f""".amdhsa_kernel {name}
  .amdhsa_next_free_vgpr {nfv}
  .amdhsa_next_free_sgpr 102
  .amdhsa_accum_offset {acc}
  .amdhsa_group_segment_fixed_size 0
  .amdhsa_kernarg_size 64
  .amdhsa_user_sgpr_count 2
  .amdhsa_user_sgpr_kernarg_segment_ptr 1
  .amdhsa_system_sgpr_workgroup_id_x 1
.end_amdhsa_kernel"""

def main():
    hdr = open("cdna_kernels/" + NAME + ".s.ref").read().split("\n")
    top = [l for l in hdr if l.startswith(";") and "@launch" not in l and "Override" not in l and "grid=ceil" not in l]
    out = list(top)
    out.append(f"; @launch kernel={K1} grid=(256,1,1) block=(512,1,1) lds=163840")
    out.append(f"; @launch kernel={K2} grid=(256,1,1) block=(256,1,1) lds=24576")
    out.append('.amdgcn_target "amdgcn-amd-amdhsa--gfx950"')
    out.append(".text")
    for name, k in ((K1, kernel1()), (K2, kernel2())):
        out += [f".globl {name}", ".p2align 8", f".type {name},@function", f"{name}:"]
        out += k.L
    out += ['.section .rodata,"a"', ".p2align 6", desc(K1, 256, 256), ".p2align 6", desc(K2, 280, 256)]
    path = sys.argv[1] if len(sys.argv) > 1 else "cdna_kernels/" + NAME + ".s"
    open(path, "w").write("\n".join(out) + "\n")

main()
```

```python
import sys, math, struct

NAME = "standalone__gqa_block_cached__near_ridge"
K1 = NAME + "_kernel"
K2 = "oproj_kernel"
import os
STAMP = bool(os.environ.get("STAMP"))
STAMP_OFF = 0
WS_W = 8 * 1024 * 1024

def f32bits(x):
    return struct.unpack("<I", struct.pack("<f", x))[0]

class Asm:
    def __init__(self):
        self.L = []
        self.vm = []
        self.lg = []
        self.ns = 0
        self.vmB = []
        self.cur = None
        self.nl = 0
    def e(self, s):
        self.L.append("    " + s)
    def lab(self, s):
        self.L.append(s + ":")
    def c(self, s):
        self.L.append("    ; " + s)
    def vmem(self, s, tag):
        self.e(s)
        if self.cur in (None, 0): self.vm.append(tag)
        if self.cur in (None, 1): self.vmB.append(tag)
    def only(self, g, fn):
        self.nl += 1
        L = f"K1_G{self.nl}"
        self.e(f"s_cmp_lg_u32 s47, {g}")
        self.e(f"s_cbranch_scc1 {L}")
        self.cur = g
        lg = list(self.lg)
        fn()
        self.e("s_waitcnt lgkmcnt(0)") if self.lg != lg else None
        self.lg = lg
        self.cur = None
        self.lab(L)
    def ds(self, s, tag):
        self.e(s); self.lg.append(tag)
    def wait_vm(self, tag):
        def cnt(l):
            idx = max(i for i, t in enumerate(l) if t == tag)
            return min(len(l) - 1 - idx, 63)
        if self.cur is not None:
            self.e(f"s_waitcnt vmcnt({cnt(self.vm if self.cur == 0 else self.vmB)})"); return
        nA, nB = cnt(self.vm), cnt(self.vmB)
        if nA != nB:
            g = 0 if nA < nB else 1
            self.nl += 1
            L = f"K1_G{self.nl}"
            self.e(f"s_cmp_lg_u32 s47, {g}")
            self.e(f"s_cbranch_scc1 {L}")
            self.e(f"s_waitcnt vmcnt({min(nA,nB)})")
            self.lab(L)
        self.e(f"s_waitcnt vmcnt({max(nA,nB)})")
    def wait_lg(self, tag):
        idx = max(i for i, t in enumerate(self.lg) if t == tag)
        n = min(len(self.lg) - 1 - idx, 15)
        self.e(f"s_waitcnt lgkmcnt({n})")
    def wait_lg0(self):
        self.e("s_waitcnt lgkmcnt(0)")
    def stamp(self):
        if not STAMP: return
        k = self.ns; self.ns += 1
        self.e(f"s_memtime s[{64+2*k}:{65+2*k}]")
        self.e("s_waitcnt lgkmcnt(0)")
    def dump_stamps(self, srd_, wave_s):
        if not STAMP: return
        self.e("s_lshl_b32 s50, s2, 2")
        self.e(f"s_add_u32 s50, s50, s{wave_s}")
        self.e("s_lshl_b32 s50, s50, 7")
        self.e(f"s_add_u32 s50, s50, {16*1024*1024 + STAMP_OFF}")
        self.e("v_mov_b32 v1, 0")
        for k in range(self.ns):
            self.e(f"v_mov_b32 v2, s{64+2*k}")
            self.e(f"buffer_store_dword v2, v1, s[{srd_}:{srd_+3}], s50 offen offset:{4*k}")
            self.e("s_nop 1")
    def nop(self, n):
        while n > 0:
            k = min(n, 16)
            self.e(f"s_nop {k-1}")
            n -= k

def R(kind, b, n=4):
    return f"{kind}[{b}:{b+n-1}]" if n > 1 else f"{kind}{b}"

def srd(a, d, p, nbytes):
    a.e(f"s_mov_b32 s{d}, s{p}")
    a.e(f"s_and_b32 s{d+1}, s{p+1}, 0xffff")
    a.e(f"s_mov_b32 s{d+2}, {nbytes}")
    a.e(f"s_mov_b32 s{d+3}, 0x00020000")

def interleave(a, mf, va, maxper=2, lastfree=2):
    va = list(va)
    n = len(mf)
    slots = max(n - lastfree, 1)
    per = -(-len(va) // slots) if va else 0
    for i, m in enumerate(mf):
        a.e(m)
        if i < slots:
            for _ in range(per):
                if va: a.e(va.pop(0))
    assert not va

def interleave2(a, mf, va, ld, lastfree=2):
    va = list(va); ld = list(ld)
    n = len(mf)
    slots = max(n - lastfree, 1)
    per = -(-len(va) // slots) if va else 0
    nl = len(ld)
    done = 0
    for i, m in enumerate(mf):
        if callable(m): m()
        else: a.e(m)
        if i < slots:
            for _ in range(per):
                if va: a.e(va.pop(0))
        while done < nl and (done + 0.5) * n <= (i + 1) * nl:
            ld[done](); done += 1
    while done < nl:
        ld[done](); done += 1
    assert not va

def kernel1():
    a = Asm()
    SX, SK, SV, SA, SWO, SWS = 20, 24, 28, 32, 36, 40
    selLo, selHi = 48, 49
    NT = " nt" if os.environ.get("NT", "1") == "1" else ""
    RING = 98304
    vL16, vST, vSR, vQW = 255, 254, 253, 252
    vKR, vB, vA = 248, 244, 242
    vAD, vVD, vKD, vXD, vWO, vWS, vRW = 240, 241, 236, 232, 230, 231, 229
    ACC = lambda t, jt: (t*2 + jt)*4
    BF = lambda buf, t: 48 + 24*buf + 4*t
    AF = lambda k, jt: 96 + 8*k + 4*jt
    sN, sG, sAO, sAP, sM = 52, 53, 54, 55, 56
    VB = [int(x) for x in os.environ.get("VB", "4,6,4,11").split(",")]
    a.e("s_cmp_ge_u32 s2, 256")
    a.e("s_cbranch_scc1 K1_END")
    a.e("s_load_dwordx16 s[4:19], s[0:1], 0")
    a.e("v_lshrrev_b32 v32, 6, v0")
    a.e("v_and_b32 v34, 63, v0")
    a.e("v_and_b32 v33, 3, v32")
    a.e("v_readfirstlane_b32 s47, v32")
    a.e("v_readfirstlane_b32 s46, v33")
    a.e("v_and_b32 v35, 15, v34")
    a.e("v_lshrrev_b32 v36, 4, v34")
    a.e("s_lshr_b32 s44, s2, 5")
    a.e("s_and_b32 s50, s2, 7")
    a.e("s_lshl_b32 s50, s50, 2")
    a.e("s_lshr_b32 s51, s2, 3")
    a.e("s_and_b32 s51, s51, 3")
    a.e("s_add_u32 s45, s50, s51")
    a.e(f"v_lshlrev_b32 v{vL16}, 4, v34")
    a.e("v_lshlrev_b32 v38, 4, v35")
    a.e("v_lshlrev_b32 v43, 8, v35")
    a.e("s_cmp_ge_u32 s47, 4")
    a.e("s_cbranch_scc1 K1_LOADER")
    a.e("v_lshrrev_b32 v39, 2, v35")
    a.e("v_and_b32 v40, 1, v36")
    a.e("v_lshl_add_u32 v40, v40, 2, v39")
    a.e("v_lshl_add_u32 v41, v36, 3, v39")
    a.e("v_and_b32 v42, 3, v35")
    a.e("v_lshlrev_b32 v42, 3, v42")
    a.e("v_lshl_add_u32 v41, v41, 8, v42")
    a.e(f"v_add_u32 v41, {RING}, v41")
    a.e("v_lshlrev_b32 v42, 1, v33")
    a.e("v_xor_b32 v42, v42, v40")
    a.e(f"v_lshl_add_u32 v{vA}, v42, 5, v41")
    a.e("v_xor_b32 v42, 1, v42")
    a.e(f"v_lshl_add_u32 v{vA+1}, v42, 5, v41")
    a.e("v_lshrrev_b32 v39, 1, v36")
    a.e("v_lshl_add_u32 v39, v39, 8, v38")
    a.e("v_and_b32 v40, 1, v36")
    a.e("v_lshl_add_u32 v39, v40, 3, v39")
    a.e(f"v_lshl_add_u32 v{vQW}, v33, 10, v39")
    a.e(f"v_add_u32 v{vSR}, {RING + 49152}, v38")
    a.e(f"v_lshl_add_u32 v{vST}, v33, 2, v{vSR}")
    a.e("s_lshl_b32 s50, s46, 12")
    a.e("s_add_u32 s50, s50, 24576")
    for n in range(4):
        a.e(f"v_add_u32 v39, {4*n}, v36")
        a.e("v_xor_b32 v42, v39, v35")
        a.e(f"v_lshl_add_u32 v{vB+n}, v42, 4, v43")
        a.e(f"v_add_u32 v{vKR+n}, s50, v{vB+n}")
    a.e(f"s_mov_b32 s{sG}, 0")
    a.e("s_waitcnt lgkmcnt(0)")
    a.stamp()
    srd(a, SWS, 18, 268435456)
    a.e("s_barrier")
    a.stamp()
    a.lab("K1_GEMM")
    a.e(f"s_mov_b32 s{sN}, 0")
    def rdB(buf, k):
        return [f"ds_read_b128 {R('v', BF(buf,t))}, v{vB+k} offset:{t*4096}" for t in range(6)]
    def rdA(k, off):
        return [f"ds_read_b64_tr_b16 {R('v', AF(k,jt)+2*hh, 2)}, v{vA+jt} offset:{off + hh*1024}" for jt in range(2) for hh in range(2)]
    for x in rdA(0, 0) + rdB(0, 0): a.e(x)
    for i in range(48): a.e(f"v_mov_b32 v{i}, 0")
    a.lab("K1_LOOP")
    for hs in range(2):
        a.e("s_waitcnt lgkmcnt(0)")
        a.e("s_barrier")
        for k in range(2):
            if k == 0:
                nxt = rdA(1, hs*16384 + 8192) + rdB(1, 2*hs + 1)
            else:
                if hs == 1:
                    a.e(f"v_add_u32 v{vB}, 24576, v{vB}")
                    a.e(f"v_xor_b32 v{vA}, 0x38000, v{vA}")
                    a.e(f"v_xor_b32 v{vA+1}, 0x38000, v{vA+1}")
                nxt = rdA(0, 16384*(1 - hs)) + rdB(0, (2*hs + 2) % 4)
                a.e("s_waitcnt lgkmcnt(0)")
            for t in range(6):
                for jt in range(2):
                    a.e(f"v_mfma_f32_16x16x32_bf16 {R('v', ACC(t,jt))}, {R('v', AF(k,jt))}, {R('v', BF(k,t))}, {R('v', ACC(t,jt))}")
                    for _ in range(2):
                        if nxt and t < 3: a.e(nxt.pop(0))
    for k in range(1, 4): a.e(f"v_add_u32 v{vB+k}, 24576, v{vB+k}")
    a.e(f"s_add_u32 s{sN}, s{sN}, 2")
    a.e(f"s_cmp_lt_u32 s{sN}, 8")
    a.e("s_cbranch_scc1 K1_LOOP")
    a.e("s_waitcnt lgkmcnt(0)")
    a.e(f"s_cmp_lg_u32 s{sG}, 0")
    a.e("s_cbranch_scc1 K1_EPI")
    a.lg = []
    a.stamp()
    a.e("s_barrier")
    for t in range(6):
        for jt in range(2):
            b = ACC(t, jt)
            a.e(f"v_cvt_pk_bf16_f32 v{b}, v{b}, v{b+1}")
            a.e(f"v_cvt_pk_bf16_f32 v{b+1}, v{b+2}, v{b+3}")
            a.ds(f"ds_write_b64 v{vQW}, {R('v', b, 2)} offset:{t*4096 + jt*512}", "qw")
    for n in range(4):
        a.e(f"v_add_u32 v{vB+n}, {RING - 24576}, v{vKR+n}")
    a.wait_lg0()
    SB = lambda kt, t: ((kt % 2)*4 + kt//2)*24 + 4*t
    KF = lambda x, u: 192 + 16*x + 4*u
    QF = lambda u: 224 + 4*u
    def kslot(kt):
        return RING + 16384*(kt % 7) if kt < 3 or kt == 7 else 24576 + 16384*(kt - 3)
    def rdQ(t, u):
        a.ds(f"ds_read_b128 {R('v', QF(u))}, v{vL16} offset:{(t*4+u)*1024}", f"q{t}_{u}")
    for G in range(4):
        a.e("s_barrier")
        if G == 0:
            a.stamp()
            for u in range(4): rdQ(0, u)
        for u in range(4):
            for x in range(2):
                kt = 2*G + x
                if kslot(kt) >= RING: a.ds(f"ds_read_b128 {R('v', KF(x,u))}, v{vB+u} offset:{kslot(kt)-RING}", f"kr{u}")
                else: a.ds(f"ds_read_b128 {R('v', KF(x,u))}, v{vKR+u} offset:{kslot(kt)-24576}", f"kr{u}")
        for t in range(6):
            for u in range(4):
                a.wait_lg(f"kr{u}" if t == 0 else f"q{t}_{u}")
                for x in range(2):
                    kt = 2*G + x
                    cin = "0" if u == 0 else R('v', SB(kt, t))
                    a.e(f"v_mfma_f32_16x16x32_bf16 {R('v', SB(kt,t))}, {R('v', KF(x,u))}, {R('v', QF(u))}, {cin}")
                if not (G == 3 and t == 5): rdQ((t+1) % 6, u)
    a.nop(8)
    a.stamp()
    cs = math.log2(math.e) / math.sqrt(128.0)
    a.e(f"s_mov_b32 s50, 0x{f32bits(cs):08x}")
    a.e(f"s_mov_b32 s51, 0x{f32bits(cs):08x}")
    vM = 224
    for t in range(6):
        vals = [SB(kt, t) + r for kt in range(8) for r in range(4)]
        m = vM + 2*t
        a.e(f"v_max3_f32 v{m}, v{vals[0]}, v{vals[1]}, v{vals[2]}")
        a.e(f"v_max3_f32 v{m+1}, v{vals[3]}, v{vals[4]}, v{vals[5]}")
        for i in range(6, 30, 4):
            a.e(f"v_max3_f32 v{m}, v{m}, v{vals[i]}, v{vals[i+1]}")
            a.e(f"v_max3_f32 v{m+1}, v{m+1}, v{vals[i+2]}, v{vals[i+3]}")
        a.e(f"v_max3_f32 v{m}, v{m}, v{vals[30]}, v{vals[31]}")
        a.e(f"v_max_f32 v{m}, v{m}, v{m+1}")
        a.e(f"v_mov_b32 v{m+1}, v{m}")
    for op in ("v_permlane32_swap_b32", "v_permlane16_swap_b32"):
        a.nop(2)
        for t in range(6): a.e(f"{op} v{vM+2*t}, v{vM+2*t+1}")
        for t in range(6): a.e(f"v_max_f32 v{vM+2*t}, v{vM+2*t}, v{vM+2*t+1}")
        if "32" in op[:13]:
            for t in range(6): a.e(f"v_mov_b32 v{vM+2*t+1}, v{vM+2*t}")
    for t in range(6):
        a.ds(f"ds_write_b32 v{vST}, v{vM+2*t} offset:{t*256}", "mw")
    a.e("s_mul_i32 s59, s46, 24576")
    a.e(f"v_add_u32 v{vQW}, s59, v{vL16}")
    for n in range(4):
        a.e(f"v_add_u32 v{vB+n}, {1024*n}, v{vL16}")
    a.wait_lg0()
    a.stamp()
    a.e("s_barrier")
    a.stamp()
    for t in range(6):
        a.ds(f"ds_read_b128 {R('v', 196+4*t)}, v{vSR} offset:{t*256}", f"g{t}")
    for t in range(6):
        b = 196 + 4*t
        a.wait_lg(f"g{t}")
        a.e(f"v_max3_f32 v{b}, v{b}, v{b+1}, v{b+2}")
        a.e(f"v_max_f32 v{b}, v{b}, v{b+3}")
        a.e(f"v_mul_f32 v{vM+2*t}, s50, v{b}")
    for r in range(4):
        a.e(f"v_mov_b32 v{192+r}, 0x3f803f80")
    PB = lambda t, p: 24*p + 4*t
    SUM = lambda t: 196 + 4*t
    def sums(t):
        for p in range(4):
            cin = "0" if p == 0 else R('v', SUM(t))
            a.e(f"v_mfma_f32_16x16x32_bf16 {R('v', SUM(t))}, v[192:195], {R('v', PB(t,p))}, {cin}")
    for t in range(6):
        vals = [SB(kt, t) + r for kt in range(8) for r in range(4)]
        m = vM + 2*t
        for x in vals[::2]:
            a.e(f"v_pk_fma_f32 {R('v',x,2)}, {R('v',x,2)}, s[50:51], {R('v',m,2)} op_sel_hi:[1,1,0] neg_lo:[0,0,1] neg_hi:[0,0,1]")
        if t > 0: sums(t-1)
        for i, x in enumerate(vals):
            a.e(f"v_exp_f32 v{x}, v{x}")
        a.e("s_nop 0")
        for p in range(4):
            e0, e1 = SB(2*p, t), SB(2*p+1, t)
            a.e(f"v_cvt_pk_bf16_f32 v{e0}, v{e0}, v{e0+1}")
            a.e(f"v_cvt_pk_bf16_f32 v{e0+1}, v{e0+2}, v{e0+3}")
            a.e(f"v_cvt_pk_bf16_f32 v{e0+2}, v{e1}, v{e1+1}")
            a.e(f"v_cvt_pk_bf16_f32 v{e0+3}, v{e1+2}, v{e1+3}")
            a.ds(f"ds_write_b128 v{vQW}, {R('v', e0)} offset:{t*4096 + p*1024}", "pw")
    a.nop(2)
    sums(5)
    a.nop(8)
    for t in range(6):
        a.ds(f"ds_write_b32 v{vST}, v{SUM(t)} offset:{2048 + t*256}", "sw")
    a.wait_lg0()
    a.stamp()
    a.e("s_barrier")
    a.stamp()
    for t in range(6):
        a.ds(f"ds_read_b128 {R('v', 192+4*t)}, v{vSR} offset:{2048 + t*256}", f"sr{t}")
    for t in range(6):
        b = 192 + 4*t
        a.wait_lg(f"sr{t}")
        a.e(f"v_add_f32 v{b}, v{b}, v{b+1}")
        a.e(f"v_add_f32 v{b+2}, v{b+2}, v{b+3}")
        a.e(f"v_add_f32 v{b}, v{b}, v{b+2}")
        a.e(f"v_rcp_f32 v{b}, v{b}")
    a.e(f"s_mov_b32 s{sG}, 1")
    a.stamp()
    a.e("s_branch K1_GEMM")
    a.lab("K1_EPI")
    a.stamp()
    a.e("s_lshl_b32 s50, s44, 6")
    a.e("s_add_u32 s50, s50, s45")
    a.e("s_lshl_b32 s50, s50, 2")
    a.e("s_add_u32 s50, s50, s46")
    a.e("s_mul_i32 s50, s50, 3072")
    a.e("s_add_u32 s51, s50, 393216")
    a.nop(4)
    for t in range(6):
        b = ACC(t, 0)
        for r in range(0, 8, 2):
            a.e(f"v_pk_mul_f32 {R('v',b+r,2)}, {R('v',b+r,2)}, {R('v',192+4*t,2)} op_sel_hi:[1,0]")
        for z in range(4):
            a.e(f"v_cvt_pk_bf16_f32 v{48+4*t+z}, v{b+2*z}, v{b+2*z+1}")
        a.e(f"buffer_store_dwordx4 {R('v', 48+4*t)}, v{vL16}, s[{SWS}:{SWS+3}], s{50 + t//3} offen offset:{1024*(t%3)}")
    a.stamp()
    a.dump_stamps(SWS, 46)
    a.e("s_endpgm")
    a.lab("K1_LOADER")
    a.vm = []; a.vmB = []; a.lg = []
    for n in range(4):
        a.e(f"v_lshl_add_u32 v39, v33, 1, {n}")
        a.e("v_and_b32 v39, 3, v39")
        a.e("v_lshl_add_u32 v39, v39, 2, v36")
        a.e("v_xor_b32 v42, v39, v35")
        a.e("v_lshlrev_b32 v42, 4, v42")
        a.e(f"v_lshl_add_u32 v{vXD+n}, v36, 10, v42")
    a.e("s_mul_i32 s57, s44, 98304")
    a.e("s_mul_i32 s51, s46, 24576")
    a.e("s_add_u32 s57, s57, s51")
    a.e("s_mul_i32 s62, s46, 6144")
    a.e("s_waitcnt lgkmcnt(0)")
    srd(a, SX, 4, 786432)
    def Xdma(kb):
        for m in range(6):
            a.e(f"s_add_u32 m0, s62, {kb*24576 + m*1024}")
            a.e(f"s_add_u32 s50, s57, {m*4096 + kb*256}")
            a.vmem(f"buffer_load_dwordx4 v{vXD + m%4}, s[{SX}:{SX+3}], s50 offen lds", f"x{kb}")
    Xdma(0)
    for n in range(4):
        a.e(f"v_add_u32 v39, {4*n}, v36")
        a.e("v_xor_b32 v42, v39, v35")
        a.e("v_lshlrev_b32 v42, 4, v42")
        a.e(f"v_add_u32 v39, {8*n}, v36")
        a.e(f"v_lshl_add_u32 v{vKD+n}, v39, 8, v42")
    a.e("v_and_b32 v39, 1, v33")
    a.e("v_lshl_add_u32 v39, v39, 2, v36")
    a.e("v_lshlrev_b32 v39, 1, v39")
    a.e("v_xor_b32 v39, v39, v35")
    a.e("v_lshlrev_b32 v39, 4, v39")
    a.e(f"v_lshl_add_u32 v{vAD}, v36, 13, v39")
    a.e(f"v_lshl_add_u32 v{vVD}, v36, 8, v39")
    a.e(f"s_lshl_b32 s{sAO}, s46, 16")
    a.e("s_lshl_b32 s50, s45, 8")
    a.e(f"s_add_u32 s{sAO}, s{sAO}, s50")
    a.e(f"s_lshl_b32 s58, s46, 11")
    a.e(f"s_add_u32 s58, s58, {RING}")
    srd(a, SA, 10, 4194304)
    def Adma(n):
        for blk in range(2):
            for hh in range(2):
                a.e(f"s_add_u32 m0, s58, {(n%4)*16384 + blk*8192 + hh*1024}")
                a.e("s_nop 0")
                a.vmem(f"buffer_load_dwordx4 v{vAD}, s[{SA}:{SA+3}], s{sAO} offen lds", f"A{n}")
                a.e(f"s_add_u32 s{sAO}, s{sAO}, {32768 if hh == 0 else 32768*7}")
    Adma(0); Adma(1); Xdma(1); Adma(2)
    srd(a, SK, 6, 33554432)
    srd(a, SV, 8, 33554432)
    srd(a, SWO, 12, 4194304)
    srd(a, SWS, 18, 268435456)
    a.e(f"s_mov_b32 s{selLo}, 0x05040100")
    a.e(f"s_mov_b32 s{selHi}, 0x07060302")
    a.e("s_lshl_b32 s61, s44, 5")
    a.e("s_add_u32 s61, s61, s45")
    a.e("s_lshl_b32 s61, s61, 17")
    a.e("s_lshl_b32 s59, s46, 15")
    a.e("s_add_u32 s60, s61, s59")
    a.e("s_lshl_b32 s59, s46, 11")
    a.e("s_add_u32 s61, s61, s59")
    a.e("s_lshl_b32 s59, s46, 12")
    a.e(f"v_add_u32 v{vRW}, s58, v{vL16}")
    a.e("v_lshlrev_b32 v39, 15, v36")
    a.e(f"v_lshl_add_u32 v{vWO}, v35, 3, v39")
    a.e("v_lshrrev_b32 v39, 3, v35")
    a.e("v_lshlrev_b32 v39, 18, v39")
    a.e("v_lshl_add_u32 v39, v36, 11, v39")
    a.e("v_and_b32 v42, 1, v35")
    a.e("v_lshl_add_u32 v39, v42, 10, v39")
    a.e("v_bfe_u32 v42, v35, 1, 2")
    a.e(f"v_lshl_add_u32 v{vWS}, v42, 6, v39")
    def Kdma(kt):
        a.e(f"s_add_u32 m0, s59, {kslot(kt)}")
        a.e(f"s_add_u32 s50, s60, {8192*(kt//2) + 1024*(kt%2)}")
        for n in range(4):
            a.vmem(f"buffer_load_dwordx4 v{vKD+n}, s[{SK}:{SK+3}], s50 offen{NT} lds", f"k{kt}")
            if n < 3:
                a.e("s_add_u32 m0, m0, 1024")
                a.e("s_nop 0")
    Vq = [(n, x) for n in range(8) for x in range(4)]
    def Vld(cnt):
        for _ in range(cnt):
            if not Vq: return
            n, x = Vq.pop(0)
            a.e(f"s_add_u32 s50, s61, {n*16384 + (x//2)*8192}")
            a.vmem(f"buffer_load_dwordx4 {R('v', 16*n+4*x)}, v{vVD}, s[{SV}:{SV+3}], s50 offen offset:{1024*(x%2)}{NT}", f"v{n}")
    def Vwr(n):
        a.wait_vm(f"v{n}")
        for x in range(4):
            a.ds(f"ds_write_b128 v{vRW}, {R('v', 16*n+4*x)} offset:{(n%4)*16384 + (x//2)*8192 + (x%2)*1024}", "vw")
    a.wait_vm("A0")
    a.e("s_barrier")
    for n in range(8):
        a.wait_vm(f"A{min(n+1, 7)}")
        a.e("s_barrier")
        if n in (1, 3): Xdma(2 + n//2)
        if n < 5: Adma(n + 3)
        else: Kdma(n - 5)
    a.e("s_barrier")
    Kdma(3); Kdma(4)
    a.wait_vm("k1"); a.e("s_barrier")
    Kdma(5); Kdma(6)
    a.wait_vm("k3"); a.e("s_barrier")
    Kdma(7)
    Vld(VB[0])
    a.wait_vm("k5"); a.e("s_barrier")
    Vld(VB[1])
    a.wait_vm("k7"); a.e("s_barrier")
    Vld(VB[2])
    a.e("s_barrier")
    Vld(VB[3])
    for n in range(3): Vwr(n)
    a.wait_lg0()
    a.e("s_barrier")
    Vld(99)
    a.e("s_lshl_b32 s50, s45, 17")
    a.e("s_add_u32 s50, s50, s59")
    a.e("s_lshl_b32 s51, s44, 7")
    a.e("s_add_u32 s50, s50, s51")
    a.e("s_add_u32 s51, s50, 16384")
    for i in range(8):
        so = 50 if i < 4 else 51
        a.vmem(f"buffer_load_dwordx2 {R('v', 128+2*i, 2)}, v{vWO}, s[{SWO}:{SWO+3}], s{so} offen offset:{(i%4)*1024}", "wo")
    for n in range(8):
        a.wait_lg0()
        a.e("s_barrier")
        if n < 5: Vwr(n + 3)
        if n == 5:
            a.e("s_lshl_b32 s50, s44, 6")
            a.e("s_add_u32 s50, s50, s45")
            a.e("s_lshl_b32 s50, s50, 13")
            a.e("s_lshl_b32 s51, s46, 8")
            a.e("s_add_u32 s50, s50, s51")
            a.e(f"s_add_u32 s50, s50, {WS_W}")
            a.wait_vm("wo")
            for e in range(4):
                for z in range(4):
                    sel = selLo if e % 2 == 0 else selHi
                    a.e(f"v_perm_b32 v{144+4*e+z}, v{128+2*(2*z+1)+e//2}, v{128+2*(2*z)+e//2}, s{sel}")
            for e in range(4):
                a.vmem(f"buffer_store_dwordx4 {R('v', 144+4*e)}, v{vWS}, s[{SWS}:{SWS+3}], s50 offen offset:{16*e}", "wst")
    a.lab("K1_END")
    a.e("s_endpgm")
    return a

def kernel2(D=12):
    a = Asm()
    SWS, SO = 20, 24
    a.e("s_cmp_ge_u32 s2, 256")
    a.e("s_cbranch_scc1 K2_END")
    a.e("s_load_dwordx2 s[4:5], s[0:1], 40")
    a.e("s_load_dwordx2 s[6:7], s[0:1], 56")
    a.e("v_lshrrev_b32 v1, 6, v0")
    a.e("v_and_b32 v2, 63, v0")
    a.e("v_readfirstlane_b32 s46, v1")
    a.e("v_lshlrev_b32 v255, 4, v2")
    a.e("s_and_b32 s50, s2, 7")
    a.e("s_lshr_b32 s51, s2, 3")
    a.e("s_lshr_b32 s44, s50, 1")
    a.e("s_lshl_b32 s44, s44, 2")
    a.e("s_lshr_b32 s52, s51, 3")
    a.e("s_add_u32 s44, s44, s52")
    a.e("s_and_b32 s45, s50, 1")
    a.e("s_lshl_b32 s45, s45, 3")
    a.e("s_and_b32 s52, s51, 7")
    a.e("s_add_u32 s45, s45, s52")
    a.e("s_lshl_b32 s52, s46, 5")
    a.e("s_lshl_b32 s53, s44, 7")
    a.e("s_add_u32 s53, s53, s52")
    a.e("s_mul_i32 s53, s53, 3072")
    a.e("s_lshl_b32 s54, s45, 7")
    a.e("s_add_u32 s54, s54, s52")
    a.e("s_lshl_b32 s54, s54, 11")
    a.e(f"s_add_u32 s54, s54, {WS_W}")
    a.e("v_and_b32 v3, 15, v2")
    a.e("v_lshrrev_b32 v4, 4, v2")
    a.e("v_lshlrev_b32 v4, 4, v4")
    a.e("v_lshl_add_u32 v254, v3, 10, v4")
    a.e("s_waitcnt lgkmcnt(0)")
    srd(a, SWS, 6, 268435456)
    srd(a, SO, 4, 786432)
    def ld(ks):
        b = 20*(ks % D)
        for x in range(2):
            a.vmem(f"buffer_load_dwordx4 {R('v', b+4*x)}, v255, s[{SWS}:{SWS+3}], s54 offen offset:{1024*x}", f"k{ks}")
        for x in range(3):
            a.vmem(f"buffer_load_dwordx4 {R('v', b+8+4*x)}, v255, s[{SWS}:{SWS+3}], s53 offen offset:{1024*x}", f"k{ks}")
        a.e("s_add_u32 s54, s54, 2048")
        a.e("s_add_u32 s53, s53, 3072")
    for ks in range(D): ld(ks)
    for ks in range(32):
        b = 20*(ks % D)
        a.wait_vm(f"k{ks}")
        for x in range(2):
            for tt in range(3):
                acc = R('a', 4*(tt*2 + x))
                cin = "0" if ks == 0 else acc
                a.e(f"v_mfma_f32_16x16x32_bf16 {acc}, {R('v', b+4*x)}, {R('v', b+8+4*tt)}, {cin}")
        if ks + D < 32:
            ld(ks + D)
    a.e("s_mul_i32 s52, s46, 6144")
    a.e("v_add_u32 v253, s52, v255")
    a.e("s_lshl_b32 s52, s46, 11")
    a.e("v_add_u32 v252, s52, v255")
    a.nop(8)
    for u in range(6):
        a.ds(f"ds_write_b128 v253, {R('a', 4*u)} offset:{1024*u}", "w")
    a.wait_lg0()
    a.e("s_barrier")
    a.e("s_cmp_eq_u32 s46, 3")
    a.e("s_cbranch_scc1 K2_END")
    for s in range(4):
        for x in range(2):
            a.ds(f"ds_read_b128 {R('v', 8*s+4*x)}, v252 offset:{6144*s + 1024*x}", "r")
    a.e("s_mul_i32 s52, s44, 49152")
    a.e("s_lshl_b32 s53, s46, 14")
    a.e("s_add_u32 s52, s52, s53")
    a.e("s_lshl_b32 s53, s45, 6")
    a.e("s_add_u32 s52, s52, s53")
    a.wait_lg0()
    for i in range(8):
        a.e(f"v_add_f32 v{i}, v{i}, v{8+i}")
        a.e(f"v_add_f32 v{16+i}, v{16+i}, v{24+i}")
    for i in range(8):
        a.e(f"v_add_f32 v{i}, v{i}, v{16+i}")
    for i in range(4):
        a.e(f"v_cvt_pk_bf16_f32 v{32+i}, v{2*i}, v{2*i+1}")
    a.vmem(f"buffer_store_dwordx4 v[32:35], v254, s[{SO}:{SO+3}], s52 offen", "o")
    a.lab("K2_END")
    a.e("s_endpgm")
    return a

def desc(name, nfv, acc):
    return f""".amdhsa_kernel {name}
  .amdhsa_next_free_vgpr {nfv}
  .amdhsa_next_free_sgpr 102
  .amdhsa_accum_offset {acc}
  .amdhsa_group_segment_fixed_size 0
  .amdhsa_kernarg_size 64
  .amdhsa_user_sgpr_count 2
  .amdhsa_user_sgpr_kernarg_segment_ptr 1
  .amdhsa_system_sgpr_workgroup_id_x 1
.end_amdhsa_kernel"""

def main():
    hdr = open("cdna_kernels/" + NAME + ".s.ref").read().split("\n")
    top = [l for l in hdr if l.startswith(";") and "@launch" not in l and "Override" not in l and "grid=ceil" not in l]
    out = list(top)
    out.append(f"; @launch kernel={K1} grid=(256,1,1) block=(512,1,1) lds=163840")
    out.append(f"; @launch kernel={K2} grid=(256,1,1) block=(256,1,1) lds=24576")
    out.append('.amdgcn_target "amdgcn-amd-amdhsa--gfx950"')
    out.append(".text")
    for name, k in ((K1, kernel1()), (K2, kernel2())):
        out += [f".globl {name}", ".p2align 8", f".type {name},@function", f"{name}:"]
        out += k.L
    out += ['.section .rodata,"a"', ".p2align 6", desc(K1, 256, 256), ".p2align 6", desc(K2, 280, 256)]
    path = sys.argv[1] if len(sys.argv) > 1 else "cdna_kernels/" + NAME + ".s"
    open(path, "w").write("\n".join(out) + "\n")

main()
```

```python
import sys, math, struct

NAME = "standalone__gqa_block_cached__near_ridge"
K1 = NAME + "_kernel"
K2 = "oproj_kernel"
import os
STAMP = bool(os.environ.get("STAMP"))
STAMP_OFF = 0
WS_W = 8 * 1024 * 1024

def f32bits(x):
    return struct.unpack("<I", struct.pack("<f", x))[0]

class Asm:
    def __init__(self):
        self.L = []
        self.vm = []
        self.lg = []
        self.ns = 0
        self.vmB = []
        self.cur = None
        self.nl = 0
    def e(self, s):
        self.L.append("    " + s)
    def lab(self, s):
        self.L.append(s + ":")
    def c(self, s):
        self.L.append("    ; " + s)
    def vmem(self, s, tag):
        self.e(s)
        if self.cur in (None, 0): self.vm.append(tag)
        if self.cur in (None, 1): self.vmB.append(tag)
    def only(self, g, fn):
        self.nl += 1
        L = f"K1_G{self.nl}"
        self.e(f"s_cmp_lg_u32 s63, {g}")
        self.e(f"s_cbranch_scc1 {L}")
        self.cur = g
        lg = list(self.lg)
        fn()
        self.e("s_waitcnt lgkmcnt(0)") if self.lg != lg else None
        self.lg = lg
        self.cur = None
        self.lab(L)
    def ds(self, s, tag):
        self.e(s); self.lg.append(tag)
    def wait_vm(self, tag):
        def cnt(l):
            idx = max(i for i, t in enumerate(l) if t == tag)
            return min(len(l) - 1 - idx, 63)
        if self.cur is not None:
            self.e(f"s_waitcnt vmcnt({cnt(self.vm if self.cur == 0 else self.vmB)})"); return
        nA, nB = cnt(self.vm), cnt(self.vmB)
        if nA != nB:
            g = 0 if nA < nB else 1
            self.nl += 1
            L = f"K1_G{self.nl}"
            self.e(f"s_cmp_lg_u32 s63, {g}")
            self.e(f"s_cbranch_scc1 {L}")
            self.e(f"s_waitcnt vmcnt({min(nA,nB)})")
            self.lab(L)
        self.e(f"s_waitcnt vmcnt({max(nA,nB)})")
    def wait_lg(self, tag):
        idx = max(i for i, t in enumerate(self.lg) if t == tag)
        n = min(len(self.lg) - 1 - idx, 15)
        self.e(f"s_waitcnt lgkmcnt({n})")
    def wait_lg0(self):
        self.e("s_waitcnt lgkmcnt(0)")
    def stamp(self):
        if not STAMP: return
        k = self.ns; self.ns += 1
        self.e(f"s_memtime s[{64+2*k}:{65+2*k}]")
        self.e("s_waitcnt lgkmcnt(0)")
    def dump_stamps(self, srd_, wave_s):
        if not STAMP: return
        self.e("s_lshl_b32 s50, s2, 2")
        self.e(f"s_add_u32 s50, s50, s{wave_s}")
        self.e("s_lshl_b32 s50, s50, 7")
        self.e(f"s_add_u32 s50, s50, {16*1024*1024 + STAMP_OFF}")
        self.e("v_mov_b32 v1, 0")
        for k in range(self.ns):
            self.e(f"v_mov_b32 v2, s{64+2*k}")
            self.e(f"buffer_store_dword v2, v1, s[{srd_}:{srd_+3}], s50 offen offset:{4*k}")
            self.e("s_nop 1")
    def nop(self, n):
        while n > 0:
            k = min(n, 16)
            self.e(f"s_nop {k-1}")
            n -= k

def R(kind, b, n=4):
    return f"{kind}[{b}:{b+n-1}]" if n > 1 else f"{kind}{b}"

def srd(a, d, p, nbytes):
    a.e(f"s_mov_b32 s{d}, s{p}")
    a.e(f"s_and_b32 s{d+1}, s{p+1}, 0xffff")
    a.e(f"s_mov_b32 s{d+2}, {nbytes}")
    a.e(f"s_mov_b32 s{d+3}, 0x00020000")

def interleave(a, mf, va, maxper=2, lastfree=2):
    va = list(va)
    n = len(mf)
    slots = max(n - lastfree, 1)
    per = -(-len(va) // slots) if va else 0
    for i, m in enumerate(mf):
        a.e(m)
        if i < slots:
            for _ in range(per):
                if va: a.e(va.pop(0))
    assert not va

def interleave2(a, mf, va, ld, lastfree=2):
    va = list(va); ld = list(ld)
    n = len(mf)
    slots = max(n - lastfree, 1)
    per = -(-len(va) // slots) if va else 0
    nl = len(ld)
    done = 0
    for i, m in enumerate(mf):
        if callable(m): m()
        else: a.e(m)
        if i < slots:
            for _ in range(per):
                if va: a.e(va.pop(0))
        while done < nl and (done + 0.5) * n <= (i + 1) * nl:
            ld[done](); done += 1
    while done < nl:
        ld[done](); done += 1
    assert not va

def kernel1():
    a = Asm()
    SX, SK, SV, SA, SWO, SWS = 20, 24, 28, 32, 36, 40
    selLo, selHi = 48, 49
    NT = " nt" if os.environ.get("NT", "1") == "1" else ""
    RING = 98304
    vL16, vST, vSR, vQW = 255, 254, 253, 252
    vKR, vB, vA = 248, 244, 242
    vAD, vVD, vKD, vXD, vWO, vWS, vRW = 240, 241, 236, 232, 230, 231, 229
    ACC = lambda t, jt: (t*2 + jt)*4
    BF = lambda buf, t: 48 + 24*buf + 4*t
    AF = lambda k, jt: 96 + 8*k + 4*jt
    sN, sG, sAO, sAP, sM = 52, 53, 54, 55, 56
    VB = [int(x) for x in os.environ.get("VB", "6,8,4,10").split(",")]
    a.e("s_cmp_ge_u32 s2, 256")
    a.e("s_cbranch_scc1 K1_END")
    a.e("s_load_dwordx16 s[4:19], s[0:1], 0")
    a.e("v_lshrrev_b32 v32, 6, v0")
    a.e("v_and_b32 v34, 63, v0")
    a.e("v_and_b32 v33, 3, v32")
    a.e("v_readfirstlane_b32 s47, v32")
    a.e("v_readfirstlane_b32 s46, v33")
    a.e("v_and_b32 v35, 15, v34")
    a.e("v_lshrrev_b32 v36, 4, v34")
    a.e("s_lshr_b32 s44, s2, 5")
    a.e("s_and_b32 s50, s2, 7")
    a.e("s_lshl_b32 s50, s50, 2")
    a.e("s_lshr_b32 s51, s2, 3")
    a.e("s_and_b32 s51, s51, 3")
    a.e("s_add_u32 s45, s50, s51")
    a.e(f"v_lshlrev_b32 v{vL16}, 4, v34")
    a.e("v_lshlrev_b32 v38, 4, v35")
    a.e("v_lshlrev_b32 v43, 8, v35")
    a.e("s_cmp_ge_u32 s47, 4")
    a.e("s_cbranch_scc1 K1_LOADER")
    a.e("v_lshrrev_b32 v39, 2, v35")
    a.e("v_and_b32 v40, 1, v36")
    a.e("v_lshl_add_u32 v40, v40, 2, v39")
    a.e("v_lshl_add_u32 v41, v36, 3, v39")
    a.e("v_and_b32 v42, 3, v35")
    a.e("v_lshlrev_b32 v42, 3, v42")
    a.e("v_lshl_add_u32 v41, v41, 8, v42")
    a.e(f"v_add_u32 v41, {RING}, v41")
    a.e("v_lshlrev_b32 v42, 1, v33")
    a.e("v_xor_b32 v42, v42, v40")
    a.e(f"v_lshl_add_u32 v{vA}, v42, 5, v41")
    a.e("v_xor_b32 v42, 1, v42")
    a.e(f"v_lshl_add_u32 v{vA+1}, v42, 5, v41")
    a.e("v_lshrrev_b32 v39, 1, v36")
    a.e("v_lshl_add_u32 v39, v39, 8, v38")
    a.e("v_and_b32 v40, 1, v36")
    a.e("v_lshl_add_u32 v39, v40, 3, v39")
    a.e(f"v_lshl_add_u32 v{vQW}, v33, 10, v39")
    a.e(f"v_add_u32 v{vSR}, {RING + 49152}, v38")
    a.e(f"v_lshl_add_u32 v{vST}, v33, 2, v{vSR}")
    a.e("s_lshl_b32 s50, s46, 12")
    a.e("s_add_u32 s50, s50, 24576")
    for n in range(4):
        a.e(f"v_add_u32 v39, {4*n}, v36")
        a.e("v_xor_b32 v42, v39, v35")
        a.e(f"v_lshl_add_u32 v{vB+n}, v42, 4, v43")
        a.e(f"v_add_u32 v{vKR+n}, s50, v{vB+n}")
    a.e(f"s_mov_b32 s{sG}, 0")
    a.e("s_waitcnt lgkmcnt(0)")
    a.stamp()
    srd(a, SWS, 18, 268435456)
    a.e("s_barrier")
    a.stamp()
    a.lab("K1_GEMM")
    a.e(f"s_mov_b32 s{sN}, 0")
    def rdB(buf, k):
        return [f"ds_read_b128 {R('v', BF(buf,t))}, v{vB+k} offset:{t*4096}" for t in range(6)]
    def rdA(k, off):
        return [f"ds_read_b64_tr_b16 {R('v', AF(k,jt)+2*hh, 2)}, v{vA+jt} offset:{off + hh*1024}" for jt in range(2) for hh in range(2)]
    for x in rdA(0, 0) + rdB(0, 0): a.e(x)
    for i in range(48): a.e(f"v_mov_b32 v{i}, 0")
    a.lab("K1_LOOP")
    for hs in range(2):
        a.e("s_waitcnt lgkmcnt(0)")
        a.e("s_barrier")
        for k in range(2):
            if k == 0:
                nxt = rdA(1, hs*16384 + 8192) + rdB(1, 2*hs + 1)
            else:
                if hs == 1:
                    a.e(f"v_add_u32 v{vB}, 24576, v{vB}")
                    a.e(f"v_xor_b32 v{vA}, 0x38000, v{vA}")
                    a.e(f"v_xor_b32 v{vA+1}, 0x38000, v{vA+1}")
                nxt = rdA(0, 16384*(1 - hs)) + rdB(0, (2*hs + 2) % 4)
                a.e("s_waitcnt lgkmcnt(0)")
            for t in range(6):
                for jt in range(2):
                    a.e(f"v_mfma_f32_16x16x32_bf16 {R('v', ACC(t,jt))}, {R('v', AF(k,jt))}, {R('v', BF(k,t))}, {R('v', ACC(t,jt))}")
                    for _ in range(2):
                        if nxt and t < 3: a.e(nxt.pop(0))
    for k in range(1, 4): a.e(f"v_add_u32 v{vB+k}, 24576, v{vB+k}")
    a.e(f"s_add_u32 s{sN}, s{sN}, 2")
    a.e(f"s_cmp_lt_u32 s{sN}, 8")
    a.e("s_cbranch_scc1 K1_LOOP")
    a.e("s_waitcnt lgkmcnt(0)")
    a.e(f"s_cmp_lg_u32 s{sG}, 0")
    a.e("s_cbranch_scc1 K1_EPI")
    a.lg = []
    a.stamp()
    a.e("s_barrier")
    for t in range(6):
        for jt in range(2):
            b = ACC(t, jt)
            a.e(f"v_cvt_pk_bf16_f32 v{b}, v{b}, v{b+1}")
            a.e(f"v_cvt_pk_bf16_f32 v{b+1}, v{b+2}, v{b+3}")
            a.ds(f"ds_write_b64 v{vQW}, {R('v', b, 2)} offset:{t*4096 + jt*512}", "qw")
    for n in range(4):
        a.e(f"v_add_u32 v{vB+n}, {RING - 24576}, v{vKR+n}")
    a.wait_lg0()
    SB = lambda kt, t: ((kt % 2)*4 + kt//2)*24 + 4*t
    KF = lambda x, u: 192 + 16*x + 4*u
    QF = lambda u: 224 + 4*u
    def kslot(kt):
        return RING + 16384*(kt % 7) if kt < 3 or kt == 7 else 24576 + 16384*(kt - 3)
    def rdQ(t, u):
        a.ds(f"ds_read_b128 {R('v', QF(u))}, v{vL16} offset:{(t*4+u)*1024}", f"q{t}_{u}")
    for G in range(4):
        a.e("s_barrier")
        if G == 0:
            a.stamp()
            for u in range(4): rdQ(0, u)
        for u in range(4):
            for x in range(2):
                kt = 2*G + x
                if kslot(kt) >= RING: a.ds(f"ds_read_b128 {R('v', KF(x,u))}, v{vB+u} offset:{kslot(kt)-RING}", f"kr{u}")
                else: a.ds(f"ds_read_b128 {R('v', KF(x,u))}, v{vKR+u} offset:{kslot(kt)-24576}", f"kr{u}")
        for t in range(6):
            for u in range(4):
                a.wait_lg(f"kr{u}" if t == 0 else f"q{t}_{u}")
                for x in range(2):
                    kt = 2*G + x
                    cin = "0" if u == 0 else R('v', SB(kt, t))
                    a.e(f"v_mfma_f32_16x16x32_bf16 {R('v', SB(kt,t))}, {R('v', KF(x,u))}, {R('v', QF(u))}, {cin}")
                if not (G == 3 and t == 5): rdQ((t+1) % 6, u)
    a.nop(8)
    a.stamp()
    cs = math.log2(math.e) / math.sqrt(128.0)
    a.e(f"s_mov_b32 s50, 0x{f32bits(cs):08x}")
    a.e(f"s_mov_b32 s51, 0x{f32bits(cs):08x}")
    vM = 224
    for t in range(6):
        vals = [SB(kt, t) + r for kt in range(8) for r in range(4)]
        m = vM + 2*t
        a.e(f"v_max3_f32 v{m}, v{vals[0]}, v{vals[1]}, v{vals[2]}")
        a.e(f"v_max3_f32 v{m+1}, v{vals[3]}, v{vals[4]}, v{vals[5]}")
        for i in range(6, 30, 4):
            a.e(f"v_max3_f32 v{m}, v{m}, v{vals[i]}, v{vals[i+1]}")
            a.e(f"v_max3_f32 v{m+1}, v{m+1}, v{vals[i+2]}, v{vals[i+3]}")
        a.e(f"v_max3_f32 v{m}, v{m}, v{vals[30]}, v{vals[31]}")
        a.e(f"v_max_f32 v{m}, v{m}, v{m+1}")
        a.e(f"v_mov_b32 v{m+1}, v{m}")
    for op in ("v_permlane32_swap_b32", "v_permlane16_swap_b32"):
        a.nop(2)
        for t in range(6): a.e(f"{op} v{vM+2*t}, v{vM+2*t+1}")
        for t in range(6): a.e(f"v_max_f32 v{vM+2*t}, v{vM+2*t}, v{vM+2*t+1}")
        if "32" in op[:13]:
            for t in range(6): a.e(f"v_mov_b32 v{vM+2*t+1}, v{vM+2*t}")
    for t in range(6):
        a.ds(f"ds_write_b32 v{vST}, v{vM+2*t} offset:{t*256}", "mw")
    a.e("s_mul_i32 s59, s46, 24576")
    a.e(f"v_add_u32 v{vQW}, s59, v{vL16}")
    for n in range(4):
        a.e(f"v_add_u32 v{vB+n}, {1024*n}, v{vL16}")
    a.wait_lg0()
    a.stamp()
    a.e("s_barrier")
    a.stamp()
    for t in range(6):
        a.ds(f"ds_read_b128 {R('v', 196+4*t)}, v{vSR} offset:{t*256}", f"g{t}")
    for t in range(6):
        b = 196 + 4*t
        a.wait_lg(f"g{t}")
        a.e(f"v_max3_f32 v{b}, v{b}, v{b+1}, v{b+2}")
        a.e(f"v_max_f32 v{b}, v{b}, v{b+3}")
        a.e(f"v_mul_f32 v{vM+2*t}, s50, v{b}")
    for r in range(4):
        a.e(f"v_mov_b32 v{192+r}, 0x3f803f80")
    PB = lambda t, p: 24*p + 4*t
    SUM = lambda t: 196 + 4*t
    def sums(t):
        for p in range(4):
            cin = "0" if p == 0 else R('v', SUM(t))
            a.e(f"v_mfma_f32_16x16x32_bf16 {R('v', SUM(t))}, v[192:195], {R('v', PB(t,p))}, {cin}")
    for t in range(6):
        vals = [SB(kt, t) + r for kt in range(8) for r in range(4)]
        m = vM + 2*t
        for x in vals[::2]:
            a.e(f"v_pk_fma_f32 {R('v',x,2)}, {R('v',x,2)}, s[50:51], {R('v',m,2)} op_sel_hi:[1,1,0] neg_lo:[0,0,1] neg_hi:[0,0,1]")
        if t > 0: sums(t-1)
        for i, x in enumerate(vals):
            a.e(f"v_exp_f32 v{x}, v{x}")
        a.e("s_nop 0")
        for p in range(4):
            e0, e1 = SB(2*p, t), SB(2*p+1, t)
            a.e(f"v_cvt_pk_bf16_f32 v{e0}, v{e0}, v{e0+1}")
            a.e(f"v_cvt_pk_bf16_f32 v{e0+1}, v{e0+2}, v{e0+3}")
            a.e(f"v_cvt_pk_bf16_f32 v{e0+2}, v{e1}, v{e1+1}")
            a.e(f"v_cvt_pk_bf16_f32 v{e0+3}, v{e1+2}, v{e1+3}")
            a.ds(f"ds_write_b128 v{vQW}, {R('v', e0)} offset:{t*4096 + p*1024}", "pw")
    a.nop(2)
    sums(5)
    a.nop(8)
    for t in range(6):
        a.ds(f"ds_write_b32 v{vST}, v{SUM(t)} offset:{2048 + t*256}", "sw")
    a.wait_lg0()
    a.stamp()
    a.e("s_barrier")
    a.stamp()
    for t in range(6):
        a.ds(f"ds_read_b128 {R('v', 192+4*t)}, v{vSR} offset:{2048 + t*256}", f"sr{t}")
    for t in range(6):
        b = 192 + 4*t
        a.wait_lg(f"sr{t}")
        a.e(f"v_add_f32 v{b}, v{b}, v{b+1}")
        a.e(f"v_add_f32 v{b+2}, v{b+2}, v{b+3}")
        a.e(f"v_add_f32 v{b}, v{b}, v{b+2}")
        a.e(f"v_rcp_f32 v{b}, v{b}")
    a.e(f"s_mov_b32 s{sG}, 1")
    a.stamp()
    a.e("s_branch K1_GEMM")
    a.lab("K1_EPI")
    a.stamp()
    a.e("s_lshl_b32 s50, s44, 6")
    a.e("s_add_u32 s50, s50, s45")
    a.e("s_lshl_b32 s50, s50, 2")
    a.e("s_add_u32 s50, s50, s46")
    a.e("s_mul_i32 s50, s50, 3072")
    a.e("s_add_u32 s51, s50, 393216")
    a.nop(4)
    for t in range(6):
        b = ACC(t, 0)
        for r in range(0, 8, 2):
            a.e(f"v_pk_mul_f32 {R('v',b+r,2)}, {R('v',b+r,2)}, {R('v',192+4*t,2)} op_sel_hi:[1,0]")
        for z in range(4):
            a.e(f"v_cvt_pk_bf16_f32 v{48+4*t+z}, v{b+2*z}, v{b+2*z+1}")
        a.e(f"buffer_store_dwordx4 {R('v', 48+4*t)}, v{vL16}, s[{SWS}:{SWS+3}], s{50 + t//3} offen offset:{1024*(t%3)}")
    a.stamp()
    a.dump_stamps(SWS, 46)
    a.e("s_endpgm")
    a.lab("K1_LOADER")
    a.vm = []; a.vmB = []; a.lg = []
    for n in range(4):
        a.e(f"v_lshl_add_u32 v39, v33, 1, {n}")
        a.e("v_and_b32 v39, 3, v39")
        a.e("v_lshl_add_u32 v39, v39, 2, v36")
        a.e("v_xor_b32 v42, v39, v35")
        a.e("v_lshlrev_b32 v42, 4, v42")
        a.e(f"v_lshl_add_u32 v{vXD+n}, v36, 10, v42")
    a.e("s_mul_i32 s57, s44, 98304")
    a.e("s_mul_i32 s51, s46, 24576")
    a.e("s_add_u32 s57, s57, s51")
    a.e("s_mul_i32 s62, s46, 6144")
    a.e("s_waitcnt lgkmcnt(0)")
    srd(a, SX, 4, 786432)
    NE = int(os.environ.get("NE", "16"))
    a.e(os.environ.get("GRPI", "s_and_b32 s63, s44, 1"))
    srd(a, SV, 8, 33554432)
    a.e("v_and_b32 v39, 1, v33")
    a.e("v_lshl_add_u32 v39, v39, 2, v36")
    a.e("v_lshlrev_b32 v39, 1, v39")
    a.e("v_xor_b32 v39, v39, v35")
    a.e("v_lshlrev_b32 v39, 4, v39")
    a.e(f"v_lshl_add_u32 v{vAD}, v36, 13, v39")
    a.e(f"v_lshl_add_u32 v{vVD}, v36, 8, v39")
    a.e("s_lshl_b32 s61, s44, 5")
    a.e("s_add_u32 s61, s61, s45")
    a.e("s_lshl_b32 s61, s61, 17")
    a.e("s_lshl_b32 s59, s46, 15")
    a.e("s_add_u32 s60, s61, s59")
    a.e("s_lshl_b32 s59, s46, 11")
    a.e("s_add_u32 s61, s61, s59")
    a.e("s_lshl_b32 s59, s46, 12")
    VR = lambda n, x: 64 + 16*n + 4*x
    Vqs = [[(n, x) for n in range(8) for x in range(4)] for _ in range(2)]
    def Vld1(q, cnt):
        for _ in range(cnt):
            if not q: return
            n, x = q.pop(0)
            a.e(f"s_add_u32 s50, s61, {n*16384 + (x//2)*8192}")
            a.vmem(f"buffer_load_dwordx4 {R('v', VR(n,x))}, v{vVD}, s[{SV}:{SV+3}], s50 offen offset:{1024*(x%2)}{NT}", f"v{n}")
    def Vld(cnt):
        if NE == 0:
            Vld1(Vqs[0], cnt); return
        for g_ in range(2):
            if Vqs[g_] and cnt: a.only(g_, lambda: Vld1(Vqs[g_], cnt))
    if NE: a.only(1, lambda: Vld1(Vqs[1], NE))
    def Xdma(kb):
        for m in range(6):
            a.e(f"s_add_u32 m0, s62, {kb*24576 + m*1024}")
            a.e(f"s_add_u32 s50, s57, {m*4096 + kb*256}")
            a.vmem(f"buffer_load_dwordx4 v{vXD + m%4}, s[{SX}:{SX+3}], s50 offen lds", f"x{kb}")
    Xdma(0)
    for n in range(4):
        a.e(f"v_add_u32 v39, {4*n}, v36")
        a.e("v_xor_b32 v42, v39, v35")
        a.e("v_lshlrev_b32 v42, 4, v42")
        a.e(f"v_add_u32 v39, {8*n}, v36")
        a.e(f"v_lshl_add_u32 v{vKD+n}, v39, 8, v42")
    a.e(f"s_lshl_b32 s{sAO}, s46, 16")
    a.e("s_lshl_b32 s50, s45, 8")
    a.e(f"s_add_u32 s{sAO}, s{sAO}, s50")
    a.e(f"s_lshl_b32 s58, s46, 11")
    a.e(f"s_add_u32 s58, s58, {RING}")
    srd(a, SA, 10, 4194304)
    def Adma(n):
        for blk in range(2):
            for hh in range(2):
                a.e(f"s_add_u32 m0, s58, {(n%4)*16384 + blk*8192 + hh*1024}")
                a.e("s_nop 0")
                a.vmem(f"buffer_load_dwordx4 v{vAD}, s[{SA}:{SA+3}], s{sAO} offen lds", f"A{n}")
                a.e(f"s_add_u32 s{sAO}, s{sAO}, {32768 if hh == 0 else 32768*7}")
    Adma(0); Adma(1); Xdma(1); Adma(2)
    srd(a, SK, 6, 33554432)
    srd(a, SWO, 12, 4194304)
    srd(a, SWS, 18, 268435456)
    a.e(f"s_mov_b32 s{selLo}, 0x05040100")
    a.e(f"s_mov_b32 s{selHi}, 0x07060302")
    a.e(f"v_add_u32 v{vRW}, s58, v{vL16}")
    a.e("v_lshlrev_b32 v39, 15, v36")
    a.e(f"v_lshl_add_u32 v{vWO}, v35, 3, v39")
    a.e("v_lshrrev_b32 v39, 3, v35")
    a.e("v_lshlrev_b32 v39, 18, v39")
    a.e("v_lshl_add_u32 v39, v36, 11, v39")
    a.e("v_and_b32 v42, 1, v35")
    a.e("v_lshl_add_u32 v39, v42, 10, v39")
    a.e("v_bfe_u32 v42, v35, 1, 2")
    a.e(f"v_lshl_add_u32 v{vWS}, v42, 6, v39")
    def Kdma(kt):
        a.e(f"s_add_u32 m0, s59, {kslot(kt)}")
        a.e(f"s_add_u32 s50, s60, {8192*(kt//2) + 1024*(kt%2)}")
        for n in range(4):
            a.vmem(f"buffer_load_dwordx4 v{vKD+n}, s[{SK}:{SK+3}], s50 offen{NT} lds", f"k{kt}")
            if n < 3:
                a.e("s_add_u32 m0, m0, 1024")
                a.e("s_nop 0")
    def Vwr(n):
        a.wait_vm(f"v{n}")
        for x in range(4):
            a.ds(f"ds_write_b128 v{vRW}, {R('v', VR(n,x))} offset:{(n%4)*16384 + (x//2)*8192 + (x%2)*1024}", "vw")
    a.wait_vm("A0")
    a.e("s_barrier")
    for n in range(8):
        a.wait_vm(f"A{min(n+1, 7)}")
        a.e("s_barrier")
        if n in (1, 3): Xdma(2 + n//2)
        if n < 5: Adma(n + 3)
        else: Kdma(n - 5)
    a.e("s_barrier")
    Kdma(3); Kdma(4)
    a.wait_vm("k1"); a.e("s_barrier")
    Kdma(5); Kdma(6)
    a.wait_vm("k3"); a.e("s_barrier")
    Kdma(7)
    Vld(VB[0])
    a.wait_vm("k5"); a.e("s_barrier")
    Vld(VB[1])
    a.wait_vm("k7"); a.e("s_barrier")
    Vld(VB[2])
    a.e("s_barrier")
    Vld(VB[3])
    for n in range(3): Vwr(n)
    a.wait_lg0()
    a.e("s_barrier")
    Vld(99)
    a.e("s_lshl_b32 s50, s45, 17")
    a.e("s_add_u32 s50, s50, s59")
    a.e("s_lshl_b32 s51, s44, 7")
    a.e("s_add_u32 s50, s50, s51")
    a.e("s_add_u32 s51, s50, 16384")
    for i in range(8):
        so = 50 if i < 4 else 51
        a.vmem(f"buffer_load_dwordx2 {R('v', 192+2*i, 2)}, v{vWO}, s[{SWO}:{SWO+3}], s{so} offen offset:{(i%4)*1024}", "wo")
    for n in range(8):
        a.wait_lg0()
        a.e("s_barrier")
        if n < 5: Vwr(n + 3)
        if n == 5:
            a.e("s_lshl_b32 s50, s44, 6")
            a.e("s_add_u32 s50, s50, s45")
            a.e("s_lshl_b32 s50, s50, 13")
            a.e("s_lshl_b32 s51, s46, 8")
            a.e("s_add_u32 s50, s50, s51")
            a.e(f"s_add_u32 s50, s50, {WS_W}")
            a.wait_vm("wo")
            for e in range(4):
                for z in range(4):
                    sel = selLo if e % 2 == 0 else selHi
                    a.e(f"v_perm_b32 v{208+4*e+z}, v{192+2*(2*z+1)+e//2}, v{192+2*(2*z)+e//2}, s{sel}")
            for e in range(4):
                a.vmem(f"buffer_store_dwordx4 {R('v', 208+4*e)}, v{vWS}, s[{SWS}:{SWS+3}], s50 offen offset:{16*e}", "wst")
    a.lab("K1_END")
    a.e("s_endpgm")
    return a

def kernel2(D=12):
    a = Asm()
    SWS, SO = 20, 24
    a.e("s_cmp_ge_u32 s2, 256")
    a.e("s_cbranch_scc1 K2_END")
    a.e("s_load_dwordx2 s[4:5], s[0:1], 40")
    a.e("s_load_dwordx2 s[6:7], s[0:1], 56")
    a.e("v_lshrrev_b32 v1, 6, v0")
    a.e("v_and_b32 v2, 63, v0")
    a.e("v_readfirstlane_b32 s46, v1")
    a.e("v_lshlrev_b32 v255, 4, v2")
    a.e("s_and_b32 s50, s2, 7")
    a.e("s_lshr_b32 s51, s2, 3")
    a.e("s_lshr_b32 s44, s50, 1")
    a.e("s_lshl_b32 s44, s44, 2")
    a.e("s_lshr_b32 s52, s51, 3")
    a.e("s_add_u32 s44, s44, s52")
    a.e("s_and_b32 s45, s50, 1")
    a.e("s_lshl_b32 s45, s45, 3")
    a.e("s_and_b32 s52, s51, 7")
    a.e("s_add_u32 s45, s45, s52")
    a.e("s_lshl_b32 s52, s46, 5")
    a.e("s_lshl_b32 s53, s44, 7")
    a.e("s_add_u32 s53, s53, s52")
    a.e("s_mul_i32 s53, s53, 3072")
    a.e("s_lshl_b32 s54, s45, 7")
    a.e("s_add_u32 s54, s54, s52")
    a.e("s_lshl_b32 s54, s54, 11")
    a.e(f"s_add_u32 s54, s54, {WS_W}")
    a.e("v_and_b32 v3, 15, v2")
    a.e("v_lshrrev_b32 v4, 4, v2")
    a.e("v_lshlrev_b32 v4, 4, v4")
    a.e("v_lshl_add_u32 v254, v3, 10, v4")
    a.e("s_waitcnt lgkmcnt(0)")
    srd(a, SWS, 6, 268435456)
    srd(a, SO, 4, 786432)
    def ld(ks):
        b = 20*(ks % D)
        for x in range(2):
            a.vmem(f"buffer_load_dwordx4 {R('v', b+4*x)}, v255, s[{SWS}:{SWS+3}], s54 offen offset:{1024*x}", f"k{ks}")
        for x in range(3):
            a.vmem(f"buffer_load_dwordx4 {R('v', b+8+4*x)}, v255, s[{SWS}:{SWS+3}], s53 offen offset:{1024*x}", f"k{ks}")
        a.e("s_add_u32 s54, s54, 2048")
        a.e("s_add_u32 s53, s53, 3072")
    for ks in range(D): ld(ks)
    for ks in range(32):
        b = 20*(ks % D)
        a.wait_vm(f"k{ks}")
        for x in range(2):
            for tt in range(3):
                acc = R('a', 4*(tt*2 + x))
                cin = "0" if ks == 0 else acc
                a.e(f"v_mfma_f32_16x16x32_bf16 {acc}, {R('v', b+4*x)}, {R('v', b+8+4*tt)}, {cin}")
        if ks + D < 32:
            ld(ks + D)
    a.e("s_mul_i32 s52, s46, 6144")
    a.e("v_add_u32 v253, s52, v255")
    a.e("s_lshl_b32 s52, s46, 11")
    a.e("v_add_u32 v252, s52, v255")
    a.nop(8)
    for u in range(6):
        a.ds(f"ds_write_b128 v253, {R('a', 4*u)} offset:{1024*u}", "w")
    a.wait_lg0()
    a.e("s_barrier")
    a.e("s_cmp_eq_u32 s46, 3")
    a.e("s_cbranch_scc1 K2_END")
    for s in range(4):
        for x in range(2):
            a.ds(f"ds_read_b128 {R('v', 8*s+4*x)}, v252 offset:{6144*s + 1024*x}", "r")
    a.e("s_mul_i32 s52, s44, 49152")
    a.e("s_lshl_b32 s53, s46, 14")
    a.e("s_add_u32 s52, s52, s53")
    a.e("s_lshl_b32 s53, s45, 6")
    a.e("s_add_u32 s52, s52, s53")
    a.wait_lg0()
    for i in range(8):
        a.e(f"v_add_f32 v{i}, v{i}, v{8+i}")
        a.e(f"v_add_f32 v{16+i}, v{16+i}, v{24+i}")
    for i in range(8):
        a.e(f"v_add_f32 v{i}, v{i}, v{16+i}")
    for i in range(4):
        a.e(f"v_cvt_pk_bf16_f32 v{32+i}, v{2*i}, v{2*i+1}")
    a.vmem(f"buffer_store_dwordx4 v[32:35], v254, s[{SO}:{SO+3}], s52 offen", "o")
    a.lab("K2_END")
    a.e("s_endpgm")
    return a

def desc(name, nfv, acc):
    return f""".amdhsa_kernel {name}
  .amdhsa_next_free_vgpr {nfv}
  .amdhsa_next_free_sgpr 102
  .amdhsa_accum_offset {acc}
  .amdhsa_group_segment_fixed_size 0
  .amdhsa_kernarg_size 64
  .amdhsa_user_sgpr_count 2
  .amdhsa_user_sgpr_kernarg_segment_ptr 1
  .amdhsa_system_sgpr_workgroup_id_x 1
.end_amdhsa_kernel"""

def main():
    hdr = open("cdna_kernels/" + NAME + ".s.ref").read().split("\n")
    top = [l for l in hdr if l.startswith(";") and "@launch" not in l and "Override" not in l and "grid=ceil" not in l]
    out = list(top)
    out.append(f"; @launch kernel={K1} grid=(256,1,1) block=(512,1,1) lds=163840")
    out.append(f"; @launch kernel={K2} grid=(256,1,1) block=(256,1,1) lds=24576")
    out.append('.amdgcn_target "amdgcn-amd-amdhsa--gfx950"')
    out.append(".text")
    for name, k in ((K1, kernel1()), (K2, kernel2())):
        out += [f".globl {name}", ".p2align 8", f".type {name},@function", f"{name}:"]
        out += k.L
    out += ['.section .rodata,"a"', ".p2align 6", desc(K1, 256, 256), ".p2align 6", desc(K2, 280, 256)]
    path = sys.argv[1] if len(sys.argv) > 1 else "cdna_kernels/" + NAME + ".s"
    open(path, "w").write("\n".join(out) + "\n")

main()
```

```python
import sys, math, struct

NAME = "standalone__gqa_block_cached__near_ridge"
K1 = NAME + "_kernel"
K2 = "oproj_kernel"
import os
STAMP = bool(os.environ.get("STAMP"))
STAMP_OFF = 0
WS_W = 8 * 1024 * 1024

def f32bits(x):
    return struct.unpack("<I", struct.pack("<f", x))[0]

class Asm:
    def __init__(self):
        self.L = []
        self.vm = []
        self.lg = []
        self.ns = 0
        self.vmB = []
        self.cur = None
        self.nl = 0
    def e(self, s):
        self.L.append("    " + s)
    def lab(self, s):
        self.L.append(s + ":")
    def c(self, s):
        self.L.append("    ; " + s)
    def vmem(self, s, tag):
        self.e(s)
        if self.cur in (None, 0): self.vm.append(tag)
        if self.cur in (None, 1): self.vmB.append(tag)
    def only(self, g, fn):
        self.nl += 1
        L = f"K1_G{self.nl}"
        self.e(f"s_cmp_lg_u32 s63, {g}")
        self.e(f"s_cbranch_scc1 {L}")
        self.cur = g
        lg = list(self.lg)
        fn()
        self.e("s_waitcnt lgkmcnt(0)") if self.lg != lg else None
        self.lg = lg
        self.cur = None
        self.lab(L)
    def ds(self, s, tag):
        self.e(s); self.lg.append(tag)
    def wait_vm(self, tag):
        def cnt(l):
            idx = max(i for i, t in enumerate(l) if t == tag)
            return min(len(l) - 1 - idx, 63)
        if self.cur is not None:
            self.e(f"s_waitcnt vmcnt({cnt(self.vm if self.cur == 0 else self.vmB)})"); return
        nA, nB = cnt(self.vm), cnt(self.vmB)
        if nA != nB:
            g = 0 if nA < nB else 1
            self.nl += 1
            L = f"K1_G{self.nl}"
            self.e(f"s_cmp_lg_u32 s63, {g}")
            self.e(f"s_cbranch_scc1 {L}")
            self.e(f"s_waitcnt vmcnt({min(nA,nB)})")
            self.lab(L)
        self.e(f"s_waitcnt vmcnt({max(nA,nB)})")
    def wait_lg(self, tag):
        idx = max(i for i, t in enumerate(self.lg) if t == tag)
        n = min(len(self.lg) - 1 - idx, 15)
        self.e(f"s_waitcnt lgkmcnt({n})")
    def wait_lg0(self):
        self.e("s_waitcnt lgkmcnt(0)")
    def stamp(self):
        if not STAMP: return
        k = self.ns; self.ns += 1
        self.e(f"s_memtime s[{64+2*k}:{65+2*k}]")
        self.e("s_waitcnt lgkmcnt(0)")
    def dump_stamps(self, srd_, wave_s):
        if not STAMP: return
        self.e("s_lshl_b32 s50, s2, 2")
        self.e(f"s_add_u32 s50, s50, s{wave_s}")
        self.e("s_lshl_b32 s50, s50, 7")
        self.e(f"s_add_u32 s50, s50, {16*1024*1024 + STAMP_OFF}")
        self.e("v_mov_b32 v1, 0")
        for k in range(self.ns):
            self.e(f"v_mov_b32 v2, s{64+2*k}")
            self.e(f"buffer_store_dword v2, v1, s[{srd_}:{srd_+3}], s50 offen offset:{4*k}")
            self.e("s_nop 1")
    def nop(self, n):
        while n > 0:
            k = min(n, 16)
            self.e(f"s_nop {k-1}")
            n -= k

def R(kind, b, n=4):
    return f"{kind}[{b}:{b+n-1}]" if n > 1 else f"{kind}{b}"

def srd(a, d, p, nbytes):
    a.e(f"s_mov_b32 s{d}, s{p}")
    a.e(f"s_and_b32 s{d+1}, s{p+1}, 0xffff")
    a.e(f"s_mov_b32 s{d+2}, {nbytes}")
    a.e(f"s_mov_b32 s{d+3}, 0x00020000")

def interleave(a, mf, va, maxper=2, lastfree=2):
    va = list(va)
    n = len(mf)
    slots = max(n - lastfree, 1)
    per = -(-len(va) // slots) if va else 0
    for i, m in enumerate(mf):
        a.e(m)
        if i < slots:
            for _ in range(per):
                if va: a.e(va.pop(0))
    assert not va

def interleave2(a, mf, va, ld, lastfree=2):
    va = list(va); ld = list(ld)
    n = len(mf)
    slots = max(n - lastfree, 1)
    per = -(-len(va) // slots) if va else 0
    nl = len(ld)
    done = 0
    for i, m in enumerate(mf):
        if callable(m): m()
        else: a.e(m)
        if i < slots:
            for _ in range(per):
                if va: a.e(va.pop(0))
        while done < nl and (done + 0.5) * n <= (i + 1) * nl:
            ld[done](); done += 1
    while done < nl:
        ld[done](); done += 1
    assert not va

def kernel1():
    a = Asm()
    SX, SK, SV, SA, SWO, SWS = 20, 24, 28, 32, 36, 40
    selLo, selHi = 48, 49
    NT = " nt" if os.environ.get("NT", "1") == "1" else ""
    RING = 98304
    vL16, vST, vSR, vQW = 255, 254, 253, 252
    vKR, vB, vA = 248, 244, 242
    vAD, vVD, vKD, vXD, vWO, vWS, vRW = 240, 241, 236, 232, 230, 231, 229
    ACC = lambda t, jt: (t*2 + jt)*4
    BF = lambda buf, t: 48 + 24*buf + 4*t
    AF = lambda k, jt: 96 + 8*k + 4*jt
    sN, sG, sAO, sAP, sM = 52, 53, 54, 55, 56
    VB = [int(x) for x in os.environ.get("VB", "6,8,4,10").split(",")]
    a.e("s_cmp_ge_u32 s2, 256")
    a.e("s_cbranch_scc1 K1_END")
    a.e("s_load_dwordx16 s[4:19], s[0:1], 0")
    a.e("v_lshrrev_b32 v32, 6, v0")
    a.e("v_and_b32 v34, 63, v0")
    a.e("v_and_b32 v33, 3, v32")
    a.e("v_readfirstlane_b32 s47, v32")
    a.e("v_readfirstlane_b32 s46, v33")
    a.e("v_and_b32 v35, 15, v34")
    a.e("v_lshrrev_b32 v36, 4, v34")
    a.e("s_lshr_b32 s44, s2, 5")
    a.e("s_and_b32 s50, s2, 7")
    a.e("s_lshl_b32 s50, s50, 2")
    a.e("s_lshr_b32 s51, s2, 3")
    a.e("s_and_b32 s51, s51, 3")
    a.e("s_add_u32 s45, s50, s51")
    a.e(f"v_lshlrev_b32 v{vL16}, 4, v34")
    a.e("v_lshlrev_b32 v38, 4, v35")
    a.e("v_lshlrev_b32 v43, 8, v35")
    a.e("s_cmp_ge_u32 s47, 4")
    a.e("s_cbranch_scc1 K1_LOADER")
    a.e("v_lshrrev_b32 v39, 2, v35")
    a.e("v_and_b32 v40, 1, v36")
    a.e("v_lshl_add_u32 v40, v40, 2, v39")
    a.e("v_lshl_add_u32 v41, v36, 3, v39")
    a.e("v_and_b32 v42, 3, v35")
    a.e("v_lshlrev_b32 v42, 3, v42")
    a.e("v_lshl_add_u32 v41, v41, 8, v42")
    a.e(f"v_add_u32 v41, {RING}, v41")
    a.e("v_lshlrev_b32 v42, 1, v33")
    a.e("v_xor_b32 v42, v42, v40")
    a.e(f"v_lshl_add_u32 v{vA}, v42, 5, v41")
    a.e("v_xor_b32 v42, 1, v42")
    a.e(f"v_lshl_add_u32 v{vA+1}, v42, 5, v41")
    a.e("v_lshrrev_b32 v39, 1, v36")
    a.e("v_lshl_add_u32 v39, v39, 8, v38")
    a.e("v_and_b32 v40, 1, v36")
    a.e("v_lshl_add_u32 v39, v40, 3, v39")
    a.e(f"v_lshl_add_u32 v{vQW}, v33, 10, v39")
    a.e(f"v_add_u32 v{vSR}, {RING + 49152}, v38")
    a.e(f"v_lshl_add_u32 v{vST}, v33, 2, v{vSR}")
    a.e("s_lshl_b32 s50, s46, 12")
    a.e("s_add_u32 s50, s50, 24576")
    for n in range(4):
        a.e(f"v_add_u32 v39, {4*n}, v36")
        a.e("v_xor_b32 v42, v39, v35")
        a.e(f"v_lshl_add_u32 v{vB+n}, v42, 4, v43")
        a.e(f"v_add_u32 v{vKR+n}, s50, v{vB+n}")
    a.e(f"s_mov_b32 s{sG}, 0")
    a.e("s_waitcnt lgkmcnt(0)")
    a.stamp()
    srd(a, SWS, 18, 268435456)
    a.e("s_barrier")
    a.stamp()
    a.lab("K1_GEMM")
    a.e(f"s_mov_b32 s{sN}, 0")
    def rdB(buf, k):
        return [f"ds_read_b128 {R('v', BF(buf,t))}, v{vB+k} offset:{t*4096}" for t in range(6)]
    def rdA(k, off):
        return [f"ds_read_b64_tr_b16 {R('v', AF(k,jt)+2*hh, 2)}, v{vA+jt} offset:{off + hh*1024}" for jt in range(2) for hh in range(2)]
    for x in rdA(0, 0) + rdB(0, 0): a.e(x)
    for i in range(48): a.e(f"v_mov_b32 v{i}, 0")
    a.lab("K1_LOOP")
    for hs in range(2):
        a.e("s_waitcnt lgkmcnt(0)")
        a.e("s_barrier")
        for k in range(2):
            if k == 0:
                nxt = rdA(1, hs*16384 + 8192) + rdB(1, 2*hs + 1)
            else:
                if hs == 1:
                    a.e(f"v_add_u32 v{vB}, 24576, v{vB}")
                    a.e(f"v_xor_b32 v{vA}, 0x38000, v{vA}")
                    a.e(f"v_xor_b32 v{vA+1}, 0x38000, v{vA+1}")
                nxt = rdA(0, 16384*(1 - hs)) + rdB(0, (2*hs + 2) % 4)
                a.e("s_waitcnt lgkmcnt(0)")
            for t in range(6):
                for jt in range(2):
                    a.e(f"v_mfma_f32_16x16x32_bf16 {R('v', ACC(t,jt))}, {R('v', AF(k,jt))}, {R('v', BF(k,t))}, {R('v', ACC(t,jt))}")
                    for _ in range(2):
                        if nxt and t < 3: a.e(nxt.pop(0))
    for k in range(1, 4): a.e(f"v_add_u32 v{vB+k}, 24576, v{vB+k}")
    a.e(f"s_add_u32 s{sN}, s{sN}, 2")
    a.e(f"s_cmp_lt_u32 s{sN}, 8")
    a.e("s_cbranch_scc1 K1_LOOP")
    a.e("s_waitcnt lgkmcnt(0)")
    a.e(f"s_cmp_lg_u32 s{sG}, 0")
    a.e("s_cbranch_scc1 K1_EPI")
    a.lg = []
    a.stamp()
    a.e("s_barrier")
    for t in range(6):
        for jt in range(2):
            b = ACC(t, jt)
            a.e(f"v_cvt_pk_bf16_f32 v{b}, v{b}, v{b+1}")
            a.e(f"v_cvt_pk_bf16_f32 v{b+1}, v{b+2}, v{b+3}")
            a.ds(f"ds_write_b64 v{vQW}, {R('v', b, 2)} offset:{t*4096 + jt*512}", "qw")
    for n in range(4):
        a.e(f"v_add_u32 v{vB+n}, {RING - 24576}, v{vKR+n}")
    a.wait_lg0()
    SB = lambda kt, t: ((kt % 2)*4 + kt//2)*24 + 4*t
    KF = lambda x, u: 192 + 16*x + 4*u
    QF = lambda u: 224 + 4*u
    def kslot(kt):
        return RING + 16384*(kt % 7) if kt < 3 or kt == 7 else 24576 + 16384*(kt - 3)
    def rdQ(t, u):
        a.ds(f"ds_read_b128 {R('v', QF(u))}, v{vL16} offset:{(t*4+u)*1024}", f"q{t}_{u}")
    for G in range(4):
        a.e("s_barrier")
        if G == 0:
            a.stamp()
            for u in range(4): rdQ(0, u)
        for u in range(4):
            for x in range(2):
                kt = 2*G + x
                if kslot(kt) >= RING: a.ds(f"ds_read_b128 {R('v', KF(x,u))}, v{vB+u} offset:{kslot(kt)-RING}", f"kr{u}")
                else: a.ds(f"ds_read_b128 {R('v', KF(x,u))}, v{vKR+u} offset:{kslot(kt)-24576}", f"kr{u}")
        for t in range(6):
            for u in range(4):
                a.wait_lg(f"kr{u}" if t == 0 else f"q{t}_{u}")
                for x in range(2):
                    kt = 2*G + x
                    cin = "0" if u == 0 else R('v', SB(kt, t))
                    a.e(f"v_mfma_f32_16x16x32_bf16 {R('v', SB(kt,t))}, {R('v', KF(x,u))}, {R('v', QF(u))}, {cin}")
                if not (G == 3 and t == 5): rdQ((t+1) % 6, u)
    a.nop(8)
    a.stamp()
    cs = math.log2(math.e) / math.sqrt(128.0)
    a.e(f"s_mov_b32 s50, 0x{f32bits(cs):08x}")
    a.e(f"s_mov_b32 s51, 0x{f32bits(cs):08x}")
    vM = 224
    for t in range(6):
        vals = [SB(kt, t) + r for kt in range(8) for r in range(4)]
        m = vM + 2*t
        a.e(f"v_max3_f32 v{m}, v{vals[0]}, v{vals[1]}, v{vals[2]}")
        a.e(f"v_max3_f32 v{m+1}, v{vals[3]}, v{vals[4]}, v{vals[5]}")
        for i in range(6, 30, 4):
            a.e(f"v_max3_f32 v{m}, v{m}, v{vals[i]}, v{vals[i+1]}")
            a.e(f"v_max3_f32 v{m+1}, v{m+1}, v{vals[i+2]}, v{vals[i+3]}")
        a.e(f"v_max3_f32 v{m}, v{m}, v{vals[30]}, v{vals[31]}")
        a.e(f"v_max_f32 v{m}, v{m}, v{m+1}")
        a.e(f"v_mov_b32 v{m+1}, v{m}")
    for op in ("v_permlane32_swap_b32", "v_permlane16_swap_b32"):
        a.nop(2)
        for t in range(6): a.e(f"{op} v{vM+2*t}, v{vM+2*t+1}")
        for t in range(6): a.e(f"v_max_f32 v{vM+2*t}, v{vM+2*t}, v{vM+2*t+1}")
        if "32" in op[:13]:
            for t in range(6): a.e(f"v_mov_b32 v{vM+2*t+1}, v{vM+2*t}")
    for t in range(6):
        a.ds(f"ds_write_b32 v{vST}, v{vM+2*t} offset:{t*256}", "mw")
    a.e("s_mul_i32 s59, s46, 24576")
    a.e(f"v_add_u32 v{vQW}, s59, v{vL16}")
    for n in range(4):
        a.e(f"v_add_u32 v{vB+n}, {1024*n}, v{vL16}")
    a.wait_lg0()
    a.stamp()
    a.e("s_barrier")
    a.stamp()
    for t in range(6):
        a.ds(f"ds_read_b128 {R('v', 196+4*t)}, v{vSR} offset:{t*256}", f"g{t}")
    for t in range(6):
        b = 196 + 4*t
        a.wait_lg(f"g{t}")
        a.e(f"v_max3_f32 v{b}, v{b}, v{b+1}, v{b+2}")
        a.e(f"v_max_f32 v{b}, v{b}, v{b+3}")
        a.e(f"v_mul_f32 v{vM+2*t}, s50, v{b}")
    for r in range(4):
        a.e(f"v_mov_b32 v{192+r}, 0x3f803f80")
    PB = lambda t, p: 24*p + 4*t
    SUM = lambda t: 196 + 4*t
    def sums(t):
        for p in range(4):
            cin = "0" if p == 0 else R('v', SUM(t))
            a.e(f"v_mfma_f32_16x16x32_bf16 {R('v', SUM(t))}, v[192:195], {R('v', PB(t,p))}, {cin}")
    for t in range(6):
        vals = [SB(kt, t) + r for kt in range(8) for r in range(4)]
        m = vM + 2*t
        for x in vals[::2]:
            a.e(f"v_pk_fma_f32 {R('v',x,2)}, {R('v',x,2)}, s[50:51], {R('v',m,2)} op_sel_hi:[1,1,0] neg_lo:[0,0,1] neg_hi:[0,0,1]")
        if t > 0: sums(t-1)
        for i, x in enumerate(vals):
            a.e(f"v_exp_f32 v{x}, v{x}")
        a.e("s_nop 0")
        for p in range(4):
            e0, e1 = SB(2*p, t), SB(2*p+1, t)
            a.e(f"v_cvt_pk_bf16_f32 v{e0}, v{e0}, v{e0+1}")
            a.e(f"v_cvt_pk_bf16_f32 v{e0+1}, v{e0+2}, v{e0+3}")
            a.e(f"v_cvt_pk_bf16_f32 v{e0+2}, v{e1}, v{e1+1}")
            a.e(f"v_cvt_pk_bf16_f32 v{e0+3}, v{e1+2}, v{e1+3}")
            a.ds(f"ds_write_b128 v{vQW}, {R('v', e0)} offset:{t*4096 + p*1024}", "pw")
    a.nop(2)
    sums(5)
    a.nop(8)
    for t in range(6):
        a.ds(f"ds_write_b32 v{vST}, v{SUM(t)} offset:{2048 + t*256}", "sw")
    a.wait_lg0()
    a.stamp()
    a.e("s_barrier")
    a.stamp()
    for t in range(6):
        a.ds(f"ds_read_b128 {R('v', 192+4*t)}, v{vSR} offset:{2048 + t*256}", f"sr{t}")
    for t in range(6):
        b = 192 + 4*t
        a.wait_lg(f"sr{t}")
        a.e(f"v_add_f32 v{b}, v{b}, v{b+1}")
        a.e(f"v_add_f32 v{b+2}, v{b+2}, v{b+3}")
        a.e(f"v_add_f32 v{b}, v{b}, v{b+2}")
        a.e(f"v_rcp_f32 v{b}, v{b}")
    a.e(f"s_mov_b32 s{sG}, 1")
    a.stamp()
    a.e("s_branch K1_GEMM")
    a.lab("K1_EPI")
    a.stamp()
    a.e("s_lshl_b32 s50, s44, 6")
    a.e("s_add_u32 s50, s50, s45")
    a.e("s_lshl_b32 s50, s50, 2")
    a.e("s_add_u32 s50, s50, s46")
    a.e("s_mul_i32 s50, s50, 3072")
    a.e("s_add_u32 s51, s50, 393216")
    a.nop(4)
    for t in range(6):
        b = ACC(t, 0)
        for r in range(0, 8, 2):
            a.e(f"v_pk_mul_f32 {R('v',b+r,2)}, {R('v',b+r,2)}, {R('v',192+4*t,2)} op_sel_hi:[1,0]")
        for z in range(4):
            a.e(f"v_cvt_pk_bf16_f32 v{48+4*t+z}, v{b+2*z}, v{b+2*z+1}")
        a.e(f"buffer_store_dwordx4 {R('v', 48+4*t)}, v{vL16}, s[{SWS}:{SWS+3}], s{50 + t//3} offen offset:{1024*(t%3)}")
    a.stamp()
    a.dump_stamps(SWS, 46)
    a.e("s_endpgm")
    a.lab("K1_LOADER")
    a.vm = []; a.vmB = []; a.lg = []
    for n in range(4):
        a.e(f"v_lshl_add_u32 v39, v33, 1, {n}")
        a.e("v_and_b32 v39, 3, v39")
        a.e("v_lshl_add_u32 v39, v39, 2, v36")
        a.e("v_xor_b32 v42, v39, v35")
        a.e("v_lshlrev_b32 v42, 4, v42")
        a.e(f"v_lshl_add_u32 v{vXD+n}, v36, 10, v42")
    a.e("s_mul_i32 s57, s44, 98304")
    a.e("s_mul_i32 s51, s46, 24576")
    a.e("s_add_u32 s57, s57, s51")
    a.e("s_mul_i32 s62, s46, 6144")
    a.e("s_waitcnt lgkmcnt(0)")
    srd(a, SX, 4, 786432)
    NE = int(os.environ.get("NE", "0"))
    a.e(os.environ.get("GRPI", "s_and_b32 s63, s44, 1"))
    srd(a, SV, 8, 33554432)
    a.e("v_and_b32 v39, 1, v33")
    a.e("v_lshl_add_u32 v39, v39, 2, v36")
    a.e("v_lshlrev_b32 v39, 1, v39")
    a.e("v_xor_b32 v39, v39, v35")
    a.e("v_lshlrev_b32 v39, 4, v39")
    a.e(f"v_lshl_add_u32 v{vAD}, v36, 13, v39")
    a.e(f"v_lshl_add_u32 v{vVD}, v36, 8, v39")
    a.e("s_lshl_b32 s61, s44, 5")
    a.e("s_add_u32 s61, s61, s45")
    a.e("s_lshl_b32 s61, s61, 17")
    a.e("s_lshl_b32 s59, s46, 15")
    a.e("s_add_u32 s60, s61, s59")
    a.e("s_lshl_b32 s59, s46, 11")
    a.e("s_add_u32 s61, s61, s59")
    a.e("s_lshl_b32 s59, s46, 12")
    VR = lambda n, x: 64 + 16*n + 4*x
    Vqs = [[(n, x) for n in range(8) for x in range(4)] for _ in range(2)]
    def Vld1(q, cnt):
        for _ in range(cnt):
            if not q: return
            n, x = q.pop(0)
            a.e(f"s_add_u32 s50, s61, {n*16384 + (x//2)*8192}")
            a.vmem(f"buffer_load_dwordx4 {R('v', VR(n,x))}, v{vVD}, s[{SV}:{SV+3}], s50 offen offset:{1024*(x%2)}{NT}", f"v{n}")
    def Vld(cnt):
        if NE == 0:
            Vld1(Vqs[0], cnt); return
        for g_ in range(2):
            if Vqs[g_] and cnt: a.only(g_, lambda: Vld1(Vqs[g_], cnt))
    KE = int(os.environ.get("KE", "1"))
    srd(a, SK, 6, 33554432)
    for n in range(4):
        a.e(f"v_add_u32 v39, {4*n}, v36")
        a.e("v_xor_b32 v42, v39, v35")
        a.e("v_lshlrev_b32 v42, 4, v42")
        a.e(f"v_add_u32 v39, {8*n}, v36")
        a.e(f"v_lshl_add_u32 v{vKD+n}, v39, 8, v42")
    a.e(f"v_add_u32 v227, s59, v{vL16}")
    a.e(f"v_add_u32 v228, {RING}, v227")
    a.e(f"v_add_u32 v227, 24576, v227")
    def Kearly():
        for kt in range(8):
            a.e(f"s_add_u32 s50, s60, {8192*(kt//2) + 1024*(kt%2)}")
            for n in range(4):
                a.vmem(f"buffer_load_dwordx4 {R('v', VR(kt,n))}, v{vKD+n}, s[{SK}:{SK+3}], s50 offen{NT}", f"k{kt}")
    def Kwr(kt):
        for n in range(4):
            if kslot(kt) >= RING: a.ds(f"ds_write_b128 v228, {R('v', VR(kt,n))} offset:{kslot(kt) - RING + 1024*n}", "kw")
            else: a.ds(f"ds_write_b128 v227, {R('v', VR(kt,n))} offset:{kslot(kt) - 24576 + 1024*n}", "kw")
        a.wait_lg0()
        Vld1(Vqs[1], 4)
    if KE: a.only(1, Kearly)
    def Xdma(kb):
        for m in range(6):
            a.e(f"s_add_u32 m0, s62, {kb*24576 + m*1024}")
            a.e(f"s_add_u32 s50, s57, {m*4096 + kb*256}")
            a.vmem(f"buffer_load_dwordx4 v{vXD + m%4}, s[{SX}:{SX+3}], s50 offen lds", f"x{kb}")
    Xdma(0)
    a.e(f"s_lshl_b32 s{sAO}, s46, 16")
    a.e("s_lshl_b32 s50, s45, 8")
    a.e(f"s_add_u32 s{sAO}, s{sAO}, s50")
    a.e(f"s_lshl_b32 s58, s46, 11")
    a.e(f"s_add_u32 s58, s58, {RING}")
    srd(a, SA, 10, 4194304)
    def Adma(n):
        for blk in range(2):
            for hh in range(2):
                a.e(f"s_add_u32 m0, s58, {(n%4)*16384 + blk*8192 + hh*1024}")
                a.e("s_nop 0")
                a.vmem(f"buffer_load_dwordx4 v{vAD}, s[{SA}:{SA+3}], s{sAO} offen lds", f"A{n}")
                a.e(f"s_add_u32 s{sAO}, s{sAO}, {32768 if hh == 0 else 32768*7}")
    Adma(0); Adma(1); Xdma(1); Adma(2)
    srd(a, SWO, 12, 4194304)
    srd(a, SWS, 18, 268435456)
    a.e(f"s_mov_b32 s{selLo}, 0x05040100")
    a.e(f"s_mov_b32 s{selHi}, 0x07060302")
    a.e(f"v_add_u32 v{vRW}, s58, v{vL16}")
    a.e("v_lshlrev_b32 v39, 15, v36")
    a.e(f"v_lshl_add_u32 v{vWO}, v35, 3, v39")
    a.e("v_lshrrev_b32 v39, 3, v35")
    a.e("v_lshlrev_b32 v39, 18, v39")
    a.e("v_lshl_add_u32 v39, v36, 11, v39")
    a.e("v_and_b32 v42, 1, v35")
    a.e("v_lshl_add_u32 v39, v42, 10, v39")
    a.e("v_bfe_u32 v42, v35, 1, 2")
    a.e(f"v_lshl_add_u32 v{vWS}, v42, 6, v39")
    def Kdma(kt):
        a.e(f"s_add_u32 m0, s59, {kslot(kt)}")
        a.e(f"s_add_u32 s50, s60, {8192*(kt//2) + 1024*(kt%2)}")
        for n in range(4):
            a.vmem(f"buffer_load_dwordx4 v{vKD+n}, s[{SK}:{SK+3}], s50 offen{NT} lds", f"k{kt}")
            if n < 3:
                a.e("s_add_u32 m0, m0, 1024")
                a.e("s_nop 0")
    Kdma0 = Kdma
    def Kdma(kt):
        if not KE: Kdma0(kt); return
        a.only(0, lambda: Kdma0(kt))
        a.only(1, lambda: Kwr(kt))
    def Vld(cnt):
        if not KE: Vld1(Vqs[0], cnt)
        elif Vqs[0]: a.only(0, lambda: Vld1(Vqs[0], cnt))
    def Vwr(n):
        a.wait_vm(f"v{n}")
        for x in range(4):
            a.ds(f"ds_write_b128 v{vRW}, {R('v', VR(n,x))} offset:{(n%4)*16384 + (x//2)*8192 + (x%2)*1024}", "vw")
    a.wait_vm("A0")
    a.e("s_barrier")
    for n in range(8):
        a.wait_vm(f"A{min(n+1, 7)}")
        a.e("s_barrier")
        if n in (1, 3): Xdma(2 + n//2)
        if n < 5: Adma(n + 3)
        else: Kdma(n - 5)
    a.e("s_barrier")
    Kdma(3); Kdma(4)
    a.wait_vm("k1"); a.e("s_barrier")
    Kdma(5); Kdma(6)
    a.wait_vm("k3"); a.e("s_barrier")
    Kdma(7)
    Vld(VB[0])
    a.wait_vm("k5"); a.e("s_barrier")
    Vld(VB[1])
    a.wait_vm("k7"); a.e("s_barrier")
    Vld(VB[2])
    a.e("s_barrier")
    Vld(VB[3])
    for n in range(3): Vwr(n)
    a.wait_lg0()
    a.e("s_barrier")
    Vld(99)
    a.e("s_lshl_b32 s50, s45, 17")
    a.e("s_add_u32 s50, s50, s59")
    a.e("s_lshl_b32 s51, s44, 7")
    a.e("s_add_u32 s50, s50, s51")
    a.e("s_add_u32 s51, s50, 16384")
    for i in range(8):
        so = 50 if i < 4 else 51
        a.vmem(f"buffer_load_dwordx2 {R('v', 192+2*i, 2)}, v{vWO}, s[{SWO}:{SWO+3}], s{so} offen offset:{(i%4)*1024}", "wo")
    for n in range(8):
        a.wait_lg0()
        a.e("s_barrier")
        if n < 5: Vwr(n + 3)
        if n == 5:
            a.e("s_lshl_b32 s50, s44, 6")
            a.e("s_add_u32 s50, s50, s45")
            a.e("s_lshl_b32 s50, s50, 13")
            a.e("s_lshl_b32 s51, s46, 8")
            a.e("s_add_u32 s50, s50, s51")
            a.e(f"s_add_u32 s50, s50, {WS_W}")
            a.wait_vm("wo")
            for e in range(4):
                for z in range(4):
                    sel = selLo if e % 2 == 0 else selHi
                    a.e(f"v_perm_b32 v{208+4*e+z}, v{192+2*(2*z+1)+e//2}, v{192+2*(2*z)+e//2}, s{sel}")
            for e in range(4):
                a.vmem(f"buffer_store_dwordx4 {R('v', 208+4*e)}, v{vWS}, s[{SWS}:{SWS+3}], s50 offen offset:{16*e}", "wst")
    a.lab("K1_END")
    a.e("s_endpgm")
    return a

def kernel2(D=12):
    a = Asm()
    SWS, SO = 20, 24
    a.e("s_cmp_ge_u32 s2, 256")
    a.e("s_cbranch_scc1 K2_END")
    a.e("s_load_dwordx2 s[4:5], s[0:1], 40")
    a.e("s_load_dwordx2 s[6:7], s[0:1], 56")
    a.e("v_lshrrev_b32 v1, 6, v0")
    a.e("v_and_b32 v2, 63, v0")
    a.e("v_readfirstlane_b32 s46, v1")
    a.e("v_lshlrev_b32 v255, 4, v2")
    a.e("s_and_b32 s50, s2, 7")
    a.e("s_lshr_b32 s51, s2, 3")
    a.e("s_lshr_b32 s44, s50, 1")
    a.e("s_lshl_b32 s44, s44, 2")
    a.e("s_lshr_b32 s52, s51, 3")
    a.e("s_add_u32 s44, s44, s52")
    a.e("s_and_b32 s45, s50, 1")
    a.e("s_lshl_b32 s45, s45, 3")
    a.e("s_and_b32 s52, s51, 7")
    a.e("s_add_u32 s45, s45, s52")
    a.e("s_lshl_b32 s52, s46, 5")
    a.e("s_lshl_b32 s53, s44, 7")
    a.e("s_add_u32 s53, s53, s52")
    a.e("s_mul_i32 s53, s53, 3072")
    a.e("s_lshl_b32 s54, s45, 7")
    a.e("s_add_u32 s54, s54, s52")
    a.e("s_lshl_b32 s54, s54, 11")
    a.e(f"s_add_u32 s54, s54, {WS_W}")
    a.e("v_and_b32 v3, 15, v2")
    a.e("v_lshrrev_b32 v4, 4, v2")
    a.e("v_lshlrev_b32 v4, 4, v4")
    a.e("v_lshl_add_u32 v254, v3, 10, v4")
    a.e("s_waitcnt lgkmcnt(0)")
    srd(a, SWS, 6, 268435456)
    srd(a, SO, 4, 786432)
    def ld(ks):
        b = 20*(ks % D)
        for x in range(2):
            a.vmem(f"buffer_load_dwordx4 {R('v', b+4*x)}, v255, s[{SWS}:{SWS+3}], s54 offen offset:{1024*x}", f"k{ks}")
        for x in range(3):
            a.vmem(f"buffer_load_dwordx4 {R('v', b+8+4*x)}, v255, s[{SWS}:{SWS+3}], s53 offen offset:{1024*x}", f"k{ks}")
        a.e("s_add_u32 s54, s54, 2048")
        a.e("s_add_u32 s53, s53, 3072")
    for ks in range(D): ld(ks)
    for ks in range(32):
        b = 20*(ks % D)
        a.wait_vm(f"k{ks}")
        for x in range(2):
            for tt in range(3):
                acc = R('a', 4*(tt*2 + x))
                cin = "0" if ks == 0 else acc
                a.e(f"v_mfma_f32_16x16x32_bf16 {acc}, {R('v', b+4*x)}, {R('v', b+8+4*tt)}, {cin}")
        if ks + D < 32:
            ld(ks + D)
    a.e("s_mul_i32 s52, s46, 6144")
    a.e("v_add_u32 v253, s52, v255")
    a.e("s_lshl_b32 s52, s46, 11")
    a.e("v_add_u32 v252, s52, v255")
    a.nop(8)
    for u in range(6):
        a.ds(f"ds_write_b128 v253, {R('a', 4*u)} offset:{1024*u}", "w")
    a.wait_lg0()
    a.e("s_barrier")
    a.e("s_cmp_eq_u32 s46, 3")
    a.e("s_cbranch_scc1 K2_END")
    for s in range(4):
        for x in range(2):
            a.ds(f"ds_read_b128 {R('v', 8*s+4*x)}, v252 offset:{6144*s + 1024*x}", "r")
    a.e("s_mul_i32 s52, s44, 49152")
    a.e("s_lshl_b32 s53, s46, 14")
    a.e("s_add_u32 s52, s52, s53")
    a.e("s_lshl_b32 s53, s45, 6")
    a.e("s_add_u32 s52, s52, s53")
    a.wait_lg0()
    for i in range(8):
        a.e(f"v_add_f32 v{i}, v{i}, v{8+i}")
        a.e(f"v_add_f32 v{16+i}, v{16+i}, v{24+i}")
    for i in range(8):
        a.e(f"v_add_f32 v{i}, v{i}, v{16+i}")
    for i in range(4):
        a.e(f"v_cvt_pk_bf16_f32 v{32+i}, v{2*i}, v{2*i+1}")
    a.vmem(f"buffer_store_dwordx4 v[32:35], v254, s[{SO}:{SO+3}], s52 offen", "o")
    a.lab("K2_END")
    a.e("s_endpgm")
    return a

def desc(name, nfv, acc):
    return f""".amdhsa_kernel {name}
  .amdhsa_next_free_vgpr {nfv}
  .amdhsa_next_free_sgpr 102
  .amdhsa_accum_offset {acc}
  .amdhsa_group_segment_fixed_size 0
  .amdhsa_kernarg_size 64
  .amdhsa_user_sgpr_count 2
  .amdhsa_user_sgpr_kernarg_segment_ptr 1
  .amdhsa_system_sgpr_workgroup_id_x 1
.end_amdhsa_kernel"""

def main():
    hdr = open("cdna_kernels/" + NAME + ".s.ref").read().split("\n")
    top = [l for l in hdr if l.startswith(";") and "@launch" not in l and "Override" not in l and "grid=ceil" not in l]
    out = list(top)
    out.append(f"; @launch kernel={K1} grid=(256,1,1) block=(512,1,1) lds=163840")
    out.append(f"; @launch kernel={K2} grid=(256,1,1) block=(256,1,1) lds=24576")
    out.append('.amdgcn_target "amdgcn-amd-amdhsa--gfx950"')
    out.append(".text")
    for name, k in ((K1, kernel1()), (K2, kernel2())):
        out += [f".globl {name}", ".p2align 8", f".type {name},@function", f"{name}:"]
        out += k.L
    out += ['.section .rodata,"a"', ".p2align 6", desc(K1, 256, 256), ".p2align 6", desc(K2, 280, 256)]
    path = sys.argv[1] if len(sys.argv) > 1 else "cdna_kernels/" + NAME + ".s"
    open(path, "w").write("\n".join(out) + "\n")

main()
```

```python
import sys, math, struct

NAME = "standalone__gqa_block_cached__near_ridge"
K1 = NAME + "_kernel"
K2 = "oproj_kernel"
import os
STAMP = bool(os.environ.get("STAMP"))
STAMP_OFF = 0
STF = os.environ.get('STF', '')
STW = os.environ.get('STW', '')
WS_W = 8 * 1024 * 1024

def f32bits(x):
    return struct.unpack("<I", struct.pack("<f", x))[0]

class Asm:
    def __init__(self):
        self.L = []
        self.vm = []
        self.lg = []
        self.ns = 0
        self.vmB = []
        self.cur = None
        self.nl = 0
    def e(self, s):
        self.L.append("    " + s)
    def lab(self, s):
        self.L.append(s + ":")
    def c(self, s):
        self.L.append("    ; " + s)
    def vmem(self, s, tag):
        self.e(s)
        if self.cur in (None, 0): self.vm.append(tag)
        if self.cur in (None, 1): self.vmB.append(tag)
    def only(self, g, fn):
        self.nl += 1
        L = f"K1_G{self.nl}"
        self.e(f"s_cmp_lg_u32 s63, {g}")
        self.e(f"s_cbranch_scc1 {L}")
        self.cur = g
        lg = list(self.lg)
        fn()
        self.e("s_waitcnt lgkmcnt(0)") if self.lg != lg else None
        self.lg = lg
        self.cur = None
        self.lab(L)
    def ds(self, s, tag):
        self.e(s); self.lg.append(tag)
    def wait_vm(self, tag):
        def cnt(l):
            idx = max(i for i, t in enumerate(l) if t == tag)
            return min(len(l) - 1 - idx, 63)
        if self.cur is not None:
            self.e(f"s_waitcnt vmcnt({cnt(self.vm if self.cur == 0 else self.vmB)})"); return
        nA, nB = cnt(self.vm), cnt(self.vmB)
        if nA != nB:
            g = 0 if nA < nB else 1
            self.nl += 1
            L = f"K1_G{self.nl}"
            self.e(f"s_cmp_lg_u32 s63, {g}")
            self.e(f"s_cbranch_scc1 {L}")
            self.e(f"s_waitcnt vmcnt({min(nA,nB)})")
            self.lab(L)
        self.e(f"s_waitcnt vmcnt({max(nA,nB)})")
    def wait_lg(self, tag):
        idx = max(i for i, t in enumerate(self.lg) if t == tag)
        n = min(len(self.lg) - 1 - idx, 15)
        self.e(f"s_waitcnt lgkmcnt({n})")
    def wait_lg0(self):
        self.e("s_waitcnt lgkmcnt(0)")
    def stamp(self):
        if not STAMP: return
        k = self.ns; self.ns += 1
        self.e(f"s_memtime s[{64+2*k}:{65+2*k}]")
        self.e("s_waitcnt lgkmcnt(0)")
    def dump_stamps(self, srd_, wave_s):
        if not STAMP: return
        self.e("s_lshl_b32 s50, s2, 2")
        self.e(f"s_add_u32 s50, s50, s{wave_s}")
        self.e("s_lshl_b32 s50, s50, 7")
        self.e(f"s_add_u32 s50, s50, {16*1024*1024 + STAMP_OFF}")
        self.e("v_mov_b32 v1, 0")
        for k in range(self.ns):
            self.e(f"v_mov_b32 v2, s{64+2*k}")
            self.e(f"buffer_store_dword v2, v1, s[{srd_}:{srd_+3}], s50 offen offset:{4*k}")
            self.e("s_nop 1")
    def nop(self, n):
        while n > 0:
            k = min(n, 16)
            self.e(f"s_nop {k-1}")
            n -= k

def R(kind, b, n=4):
    return f"{kind}[{b}:{b+n-1}]" if n > 1 else f"{kind}{b}"

def srd(a, d, p, nbytes):
    a.e(f"s_mov_b32 s{d}, s{p}")
    a.e(f"s_and_b32 s{d+1}, s{p+1}, 0xffff")
    a.e(f"s_mov_b32 s{d+2}, {nbytes}")
    a.e(f"s_mov_b32 s{d+3}, 0x00020000")

def interleave(a, mf, va, maxper=2, lastfree=2):
    va = list(va)
    n = len(mf)
    slots = max(n - lastfree, 1)
    per = -(-len(va) // slots) if va else 0
    for i, m in enumerate(mf):
        a.e(m)
        if i < slots:
            for _ in range(per):
                if va: a.e(va.pop(0))
    assert not va

def interleave2(a, mf, va, ld, lastfree=2):
    va = list(va); ld = list(ld)
    n = len(mf)
    slots = max(n - lastfree, 1)
    per = -(-len(va) // slots) if va else 0
    nl = len(ld)
    done = 0
    for i, m in enumerate(mf):
        if callable(m): m()
        else: a.e(m)
        if i < slots:
            for _ in range(per):
                if va: a.e(va.pop(0))
        while done < nl and (done + 0.5) * n <= (i + 1) * nl:
            ld[done](); done += 1
    while done < nl:
        ld[done](); done += 1
    assert not va

def kernel1():
    a = Asm()
    SX, SK, SV, SA, SWO, SWS = 20, 24, 28, 32, 36, 40
    selLo, selHi = 48, 49
    NT = " nt" if os.environ.get("NT", "1") == "1" else ""
    RING = 98304
    vL16, vST, vSR, vQW = 255, 254, 253, 252
    vKR, vB, vA = 248, 244, 242
    vAD, vVD, vKD, vXD, vWO, vWS, vRW = 240, 241, 236, 232, 230, 231, 229
    ACC = lambda t, jt: (t*2 + jt)*4
    BF = lambda buf, t: 48 + 24*buf + 4*t
    AF = lambda k, jt: 96 + 8*k + 4*jt
    sN, sG, sAO, sAP, sM = 52, 53, 54, 55, 56
    VB = [int(x) for x in os.environ.get("VB", "6,8,4,10").split(",")]
    a.e("s_cmp_ge_u32 s2, 256")
    a.e("s_cbranch_scc1 K1_END")
    a.e("s_load_dwordx16 s[4:19], s[0:1], 0")
    a.e("v_lshrrev_b32 v32, 6, v0")
    a.e("v_and_b32 v34, 63, v0")
    a.e("v_and_b32 v33, 3, v32")
    a.e("v_readfirstlane_b32 s47, v32")
    a.e("v_readfirstlane_b32 s46, v33")
    a.e("v_and_b32 v35, 15, v34")
    a.e("v_lshrrev_b32 v36, 4, v34")
    a.e("s_lshr_b32 s44, s2, 5")
    a.e("s_and_b32 s50, s2, 7")
    a.e("s_lshl_b32 s50, s50, 2")
    a.e("s_lshr_b32 s51, s2, 3")
    a.e("s_and_b32 s51, s51, 3")
    a.e("s_add_u32 s45, s50, s51")
    a.e(f"v_lshlrev_b32 v{vL16}, 4, v34")
    a.e("v_lshlrev_b32 v38, 4, v35")
    a.e("v_lshlrev_b32 v43, 8, v35")
    a.e("s_cmp_ge_u32 s47, 4")
    a.e("s_cbranch_scc1 K1_LOADER")
    a.e("v_lshrrev_b32 v39, 2, v35")
    a.e("v_and_b32 v40, 1, v36")
    a.e("v_lshl_add_u32 v40, v40, 2, v39")
    a.e("v_lshl_add_u32 v41, v36, 3, v39")
    a.e("v_and_b32 v42, 3, v35")
    a.e("v_lshlrev_b32 v42, 3, v42")
    a.e("v_lshl_add_u32 v41, v41, 8, v42")
    a.e(f"v_add_u32 v41, {RING}, v41")
    a.e("v_lshlrev_b32 v42, 1, v33")
    a.e("v_xor_b32 v42, v42, v40")
    a.e(f"v_lshl_add_u32 v{vA}, v42, 5, v41")
    a.e("v_xor_b32 v42, 1, v42")
    a.e(f"v_lshl_add_u32 v{vA+1}, v42, 5, v41")
    a.e("v_lshrrev_b32 v39, 1, v36")
    a.e("v_lshl_add_u32 v39, v39, 8, v38")
    a.e("v_and_b32 v40, 1, v36")
    a.e("v_lshl_add_u32 v39, v40, 3, v39")
    a.e(f"v_lshl_add_u32 v{vQW}, v33, 10, v39")
    a.e(f"v_add_u32 v{vSR}, {RING + 49152}, v38")
    a.e(f"v_lshl_add_u32 v{vST}, v33, 2, v{vSR}")
    a.e("s_lshl_b32 s50, s46, 12")
    a.e("s_add_u32 s50, s50, 24576")
    for n in range(4):
        a.e(f"v_add_u32 v39, {4*n}, v36")
        a.e("v_xor_b32 v42, v39, v35")
        a.e(f"v_lshl_add_u32 v{vB+n}, v42, 4, v43")
        a.e(f"v_add_u32 v{vKR+n}, s50, v{vB+n}")
    a.e(f"s_mov_b32 s{sG}, 0")
    a.e("s_waitcnt lgkmcnt(0)")
    a.stamp()
    srd(a, SWS, 18, 268435456)
    a.e("s_barrier")
    a.stamp()
    a.lab("K1_GEMM")
    a.e(f"s_mov_b32 s{sN}, 0")
    def rdB(buf, k):
        return [f"ds_read_b128 {R('v', BF(buf,t))}, v{vB+k} offset:{t*4096}" for t in range(6)]
    def rdA(k, off):
        return [f"ds_read_b64_tr_b16 {R('v', AF(k,jt)+2*hh, 2)}, v{vA+jt} offset:{off + hh*1024}" for jt in range(2) for hh in range(2)]
    for x in rdA(0, 0) + rdB(0, 0): a.e(x)
    for i in range(48): a.e(f"v_mov_b32 v{i}, 0")
    a.lab("K1_LOOP")
    for hs in range(2):
        a.e("s_waitcnt lgkmcnt(0)")
        a.e("s_barrier")
        for k in range(2):
            if k == 0:
                nxt = rdA(1, hs*16384 + 8192) + rdB(1, 2*hs + 1)
            else:
                if hs == 1:
                    a.e(f"v_add_u32 v{vB}, 24576, v{vB}")
                    a.e(f"v_xor_b32 v{vA}, 0x38000, v{vA}")
                    a.e(f"v_xor_b32 v{vA+1}, 0x38000, v{vA+1}")
                nxt = rdA(0, 16384*(1 - hs)) + rdB(0, (2*hs + 2) % 4)
                a.e("s_waitcnt lgkmcnt(0)")
            for t in range(6):
                for jt in range(2):
                    a.e(f"v_mfma_f32_16x16x32_bf16 {R('v', ACC(t,jt))}, {R('v', AF(k,jt))}, {R('v', BF(k,t))}, {R('v', ACC(t,jt))}")
                    for _ in range(2):
                        if nxt and t < 3: a.e(nxt.pop(0))
    for k in range(1, 4): a.e(f"v_add_u32 v{vB+k}, 24576, v{vB+k}")
    a.e(f"s_add_u32 s{sN}, s{sN}, 2")
    a.e(f"s_cmp_lt_u32 s{sN}, 8")
    a.e("s_cbranch_scc1 K1_LOOP")
    a.e("s_waitcnt lgkmcnt(0)")
    a.e(f"s_cmp_lg_u32 s{sG}, 0")
    a.e("s_cbranch_scc1 K1_EPI")
    a.lg = []
    a.stamp()
    a.e("s_barrier")
    for t in range(6):
        for jt in range(2):
            b = ACC(t, jt)
            a.e(f"v_cvt_pk_bf16_f32 v{b}, v{b}, v{b+1}")
            a.e(f"v_cvt_pk_bf16_f32 v{b+1}, v{b+2}, v{b+3}")
            a.ds(f"ds_write_b64 v{vQW}, {R('v', b, 2)} offset:{t*4096 + jt*512}", "qw")
    for n in range(4):
        a.e(f"v_add_u32 v{vB+n}, {RING - 24576}, v{vKR+n}")
    a.wait_lg0()
    SB = lambda kt, t: ((kt % 2)*4 + kt//2)*24 + 4*t
    KF = lambda x, u: 192 + 16*x + 4*u
    QF = lambda u: 224 + 4*u
    def kslot(kt):
        return RING + 16384*(kt % 7) if kt < 3 or kt == 7 else 24576 + 16384*(kt - 3)
    def QB(G, t, u):
        if t % 2 == 0 or (G == 3 and t == 5): return QF(u)
        return SB(6 + u % 2, 4 + u // 2)
    def rdQ(G, t, u):
        a.ds(f"ds_read_b128 {R('v', QB(G,t,u))}, v{vL16} offset:{(t*4+u)*1024}", f"q{t}_{u}")
    for G in range(4):
        a.e("s_barrier")
        if G == 0:
            a.stamp()
            for u in range(4): rdQ(0, 0, u)
        for u in range(4):
            for x in range(2):
                kt = 2*G + x
                if kslot(kt) >= RING: a.ds(f"ds_read_b128 {R('v', KF(x,u))}, v{vB+u} offset:{kslot(kt)-RING}", f"kr{u}")
                else: a.ds(f"ds_read_b128 {R('v', KF(x,u))}, v{vKR+u} offset:{kslot(kt)-24576}", f"kr{u}")
        for t in range(6):
            late = (G == 3 and t == 4)
            if not late and not (G == 3 and t == 5):
                for u in range(4): rdQ(G + (t+1)//6, (t+1) % 6, u)
            for u in range(4):
                a.wait_lg(f"kr{u}" if t == 0 else f"q{t}_{u}")
                for x in range(2):
                    kt = 2*G + x
                    cin = "0" if u == 0 else R('v', SB(kt, t))
                    a.e(f"v_mfma_f32_16x16x32_bf16 {R('v', SB(kt,t))}, {R('v', KF(x,u))}, {R('v', QB(G,t,u))}, {cin}")
                if late: rdQ(3, 5, u)
    a.nop(8)
    a.stamp()
    cs = math.log2(math.e) / math.sqrt(128.0)
    a.e(f"s_mov_b32 s50, 0x{f32bits(cs):08x}")
    a.e(f"s_mov_b32 s51, 0x{f32bits(cs):08x}")
    vM = 224
    for t in range(6):
        vals = [SB(kt, t) + r for kt in range(8) for r in range(4)]
        m = vM + 2*t
        a.e(f"v_max3_f32 v{m}, v{vals[0]}, v{vals[1]}, v{vals[2]}")
        a.e(f"v_max3_f32 v{m+1}, v{vals[3]}, v{vals[4]}, v{vals[5]}")
        for i in range(6, 30, 4):
            a.e(f"v_max3_f32 v{m}, v{m}, v{vals[i]}, v{vals[i+1]}")
            a.e(f"v_max3_f32 v{m+1}, v{m+1}, v{vals[i+2]}, v{vals[i+3]}")
        a.e(f"v_max3_f32 v{m}, v{m}, v{vals[30]}, v{vals[31]}")
        a.e(f"v_max_f32 v{m}, v{m}, v{m+1}")
        a.e(f"v_mov_b32 v{m+1}, v{m}")
    for op in ("v_permlane32_swap_b32", "v_permlane16_swap_b32"):
        a.nop(2)
        for t in range(6): a.e(f"{op} v{vM+2*t}, v{vM+2*t+1}")
        for t in range(6): a.e(f"v_max_f32 v{vM+2*t}, v{vM+2*t}, v{vM+2*t+1}")
        if "32" in op[:13]:
            for t in range(6): a.e(f"v_mov_b32 v{vM+2*t+1}, v{vM+2*t}")
    for t in range(6):
        a.ds(f"ds_write_b32 v{vST}, v{vM+2*t} offset:{t*256}", "mw")
    a.e("s_mul_i32 s59, s46, 24576")
    a.e(f"v_add_u32 v{vQW}, s59, v{vL16}")
    for n in range(4):
        a.e(f"v_add_u32 v{vB+n}, {1024*n}, v{vL16}")
    a.wait_lg0()
    a.stamp()
    a.e("s_barrier")
    a.stamp()
    for t in range(6):
        a.ds(f"ds_read_b128 {R('v', 196+4*t)}, v{vSR} offset:{t*256}", f"g{t}")
    for t in range(6):
        b = 196 + 4*t
        a.wait_lg(f"g{t}")
        a.e(f"v_max3_f32 v{b}, v{b}, v{b+1}, v{b+2}")
        a.e(f"v_max_f32 v{b}, v{b}, v{b+3}")
        a.e(f"v_mul_f32 v{vM+2*t}, s50, v{b}")
    for r in range(4):
        a.e(f"v_mov_b32 v{192+r}, 0x3f803f80")
    PB = lambda t, p: 24*p + 4*t
    SUM = lambda t: 196 + 4*t
    def sums(t):
        for p in range(4):
            cin = "0" if p == 0 else R('v', SUM(t))
            a.e(f"v_mfma_f32_16x16x32_bf16 {R('v', SUM(t))}, v[192:195], {R('v', PB(t,p))}, {cin}")
    for t in range(6):
        vals = [SB(kt, t) + r for kt in range(8) for r in range(4)]
        m = vM + 2*t
        for x in vals[::2]:
            a.e(f"v_pk_fma_f32 {R('v',x,2)}, {R('v',x,2)}, s[50:51], {R('v',m,2)} op_sel_hi:[1,1,0] neg_lo:[0,0,1] neg_hi:[0,0,1]")
        if t > 0: sums(t-1)
        for i, x in enumerate(vals):
            a.e(f"v_exp_f32 v{x}, v{x}")
        a.e("s_nop 0")
        for p in range(4):
            e0, e1 = SB(2*p, t), SB(2*p+1, t)
            a.e(f"v_cvt_pk_bf16_f32 v{e0}, v{e0}, v{e0+1}")
            a.e(f"v_cvt_pk_bf16_f32 v{e0+1}, v{e0+2}, v{e0+3}")
            a.e(f"v_cvt_pk_bf16_f32 v{e0+2}, v{e1}, v{e1+1}")
            a.e(f"v_cvt_pk_bf16_f32 v{e0+3}, v{e1+2}, v{e1+3}")
            a.ds(f"ds_write_b128 v{vQW}, {R('v', e0)} offset:{t*4096 + p*1024}", "pw")
    a.nop(2)
    sums(5)
    a.nop(8)
    for t in range(6):
        a.ds(f"ds_write_b32 v{vST}, v{SUM(t)} offset:{2048 + t*256}", "sw")
    a.wait_lg0()
    a.stamp()
    a.e("s_barrier")
    a.stamp()
    for t in range(6):
        a.ds(f"ds_read_b128 {R('v', 192+4*t)}, v{vSR} offset:{2048 + t*256}", f"sr{t}")
    for t in range(6):
        b = 192 + 4*t
        a.wait_lg(f"sr{t}")
        a.e(f"v_add_f32 v{b}, v{b}, v{b+1}")
        a.e(f"v_add_f32 v{b+2}, v{b+2}, v{b+3}")
        a.e(f"v_add_f32 v{b}, v{b}, v{b+2}")
        a.e(f"v_rcp_f32 v{b}, v{b}")
    a.e(f"s_mov_b32 s{sG}, 1")
    a.stamp()
    a.e("s_branch K1_GEMM")
    a.lab("K1_EPI")
    a.stamp()
    a.e("s_lshl_b32 s50, s44, 6")
    a.e("s_add_u32 s50, s50, s45")
    a.e("s_lshl_b32 s50, s50, 2")
    a.e("s_add_u32 s50, s50, s46")
    a.e("s_mul_i32 s50, s50, 3072")
    a.e("s_add_u32 s51, s50, 393216")
    a.nop(4)
    for t in range(6):
        b = ACC(t, 0)
        for r in range(0, 8, 2):
            a.e(f"v_pk_mul_f32 {R('v',b+r,2)}, {R('v',b+r,2)}, {R('v',192+4*t,2)} op_sel_hi:[1,0]")
        for z in range(4):
            a.e(f"v_cvt_pk_bf16_f32 v{48+4*t+z}, v{b+2*z}, v{b+2*z+1}")
        a.e(f"buffer_store_dwordx4 {R('v', 48+4*t)}, v{vL16}, s[{SWS}:{SWS+3}], s{50 + t//3} offen offset:{1024*(t%3)}{STF}")
    a.stamp()
    a.dump_stamps(SWS, 46)
    a.e("s_endpgm")
    a.lab("K1_LOADER")
    a.vm = []; a.vmB = []; a.lg = []
    for n in range(4):
        a.e(f"v_lshl_add_u32 v39, v33, 1, {n}")
        a.e("v_and_b32 v39, 3, v39")
        a.e("v_lshl_add_u32 v39, v39, 2, v36")
        a.e("v_xor_b32 v42, v39, v35")
        a.e("v_lshlrev_b32 v42, 4, v42")
        a.e(f"v_lshl_add_u32 v{vXD+n}, v36, 10, v42")
    a.e("s_mul_i32 s57, s44, 98304")
    a.e("s_mul_i32 s51, s46, 24576")
    a.e("s_add_u32 s57, s57, s51")
    a.e("s_mul_i32 s62, s46, 6144")
    a.e("s_waitcnt lgkmcnt(0)")
    srd(a, SX, 4, 786432)
    NE = int(os.environ.get("NE", "0"))
    a.e(os.environ.get("GRPI", "s_and_b32 s63, s44, 1"))
    srd(a, SV, 8, 33554432)
    a.e("v_and_b32 v39, 1, v33")
    a.e("v_lshl_add_u32 v39, v39, 2, v36")
    a.e("v_lshlrev_b32 v39, 1, v39")
    a.e("v_xor_b32 v39, v39, v35")
    a.e("v_lshlrev_b32 v39, 4, v39")
    a.e(f"v_lshl_add_u32 v{vAD}, v36, 13, v39")
    a.e(f"v_lshl_add_u32 v{vVD}, v36, 8, v39")
    a.e("s_lshl_b32 s61, s44, 5")
    a.e("s_add_u32 s61, s61, s45")
    a.e("s_lshl_b32 s61, s61, 17")
    a.e("s_lshl_b32 s59, s46, 15")
    a.e("s_add_u32 s60, s61, s59")
    a.e("s_lshl_b32 s59, s46, 11")
    a.e("s_add_u32 s61, s61, s59")
    a.e("s_lshl_b32 s59, s46, 12")
    VR = lambda n, x: 64 + 16*n + 4*x
    Vqs = [[(n, x) for n in range(8) for x in range(4)] for _ in range(2)]
    def Vld1(q, cnt):
        for _ in range(cnt):
            if not q: return
            n, x = q.pop(0)
            a.e(f"s_add_u32 s50, s61, {n*16384 + (x//2)*8192}")
            a.vmem(f"buffer_load_dwordx4 {R('v', VR(n,x))}, v{vVD}, s[{SV}:{SV+3}], s50 offen offset:{1024*(x%2)}{NT}", f"v{n}")
    def Vld(cnt):
        if NE == 0:
            Vld1(Vqs[0], cnt); return
        for g_ in range(2):
            if Vqs[g_] and cnt: a.only(g_, lambda: Vld1(Vqs[g_], cnt))
    KE = int(os.environ.get("KE", "4"))
    KET = list(range(7 - KE, 7))
    VB1 = [int(x) for x in os.environ.get("VB1", "4,4,4,4,4,10").split(",")]
    srd(a, SK, 6, 33554432)
    for n in range(4):
        a.e(f"v_add_u32 v39, {4*n}, v36")
        a.e("v_xor_b32 v42, v39, v35")
        a.e("v_lshlrev_b32 v42, 4, v42")
        a.e(f"v_add_u32 v39, {8*n}, v36")
        a.e(f"v_lshl_add_u32 v{vKD+n}, v39, 8, v42")
    a.e(f"v_add_u32 v227, s59, v{vL16}")
    a.e(f"v_add_u32 v228, {RING}, v227")
    a.e(f"v_add_u32 v227, 24576, v227")
    def Kearly():
        for kt in KET:
            a.e(f"s_add_u32 s50, s60, {8192*(kt//2) + 1024*(kt%2)}")
            for n in range(4):
                a.vmem(f"buffer_load_dwordx4 {R('v', VR(kt,n))}, v{vKD+n}, s[{SK}:{SK+3}], s50 offen{NT}", f"k{kt}")
    def Kwr(kt):
        for n in range(4):
            if kslot(kt) >= RING: a.ds(f"ds_write_b128 v228, {R('v', VR(kt,n))} offset:{kslot(kt) - RING + 1024*n}", "kw")
            else: a.ds(f"ds_write_b128 v227, {R('v', VR(kt,n))} offset:{kslot(kt) - 24576 + 1024*n}", "kw")
    if KE: a.only(1, Kearly)
    def Xdma(kb):
        for m in range(6):
            a.e(f"s_add_u32 m0, s62, {kb*24576 + m*1024}")
            a.e(f"s_add_u32 s50, s57, {m*4096 + kb*256}")
            a.vmem(f"buffer_load_dwordx4 v{vXD + m%4}, s[{SX}:{SX+3}], s50 offen lds", f"x{kb}")
    Xdma(0)
    a.e(f"s_lshl_b32 s{sAO}, s46, 16")
    a.e("s_lshl_b32 s50, s45, 8")
    a.e(f"s_add_u32 s{sAO}, s{sAO}, s50")
    a.e(f"s_lshl_b32 s58, s46, 11")
    a.e(f"s_add_u32 s58, s58, {RING}")
    srd(a, SA, 10, 4194304)
    def Adma(n):
        for blk in range(2):
            for hh in range(2):
                a.e(f"s_add_u32 m0, s58, {(n%4)*16384 + blk*8192 + hh*1024}")
                a.e("s_nop 0")
                a.vmem(f"buffer_load_dwordx4 v{vAD}, s[{SA}:{SA+3}], s{sAO} offen lds", f"A{n}")
                a.e(f"s_add_u32 s{sAO}, s{sAO}, {32768 if hh == 0 else 32768*7}")
    Adma(0); Adma(1); Xdma(1); Adma(2)
    srd(a, SWO, 12, 4194304)
    srd(a, SWS, 18, 268435456)
    a.e(f"s_mov_b32 s{selLo}, 0x05040100")
    a.e(f"s_mov_b32 s{selHi}, 0x07060302")
    a.e(f"v_add_u32 v{vRW}, s58, v{vL16}")
    a.e("v_lshlrev_b32 v39, 15, v36")
    a.e(f"v_lshl_add_u32 v{vWO}, v35, 3, v39")
    a.e("v_lshrrev_b32 v39, 3, v35")
    a.e("v_lshlrev_b32 v39, 18, v39")
    a.e("v_lshl_add_u32 v39, v36, 11, v39")
    a.e("v_and_b32 v42, 1, v35")
    a.e("v_lshl_add_u32 v39, v42, 10, v39")
    a.e("v_bfe_u32 v42, v35, 1, 2")
    a.e(f"v_lshl_add_u32 v{vWS}, v42, 6, v39")
    def Kdma(kt):
        a.e(f"s_add_u32 m0, s59, {kslot(kt)}")
        a.e(f"s_add_u32 s50, s60, {8192*(kt//2) + 1024*(kt%2)}")
        for n in range(4):
            a.vmem(f"buffer_load_dwordx4 v{vKD+n}, s[{SK}:{SK+3}], s50 offen{NT} lds", f"k{kt}")
            if n < 3:
                a.e("s_add_u32 m0, m0, 1024")
                a.e("s_nop 0")
    Kdma0 = Kdma
    def Kdma(kt):
        if kt not in KET: Kdma0(kt); return
        a.only(0, lambda: Kdma0(kt))
        a.only(1, lambda: Kwr(kt))
    def Vld(cnt, cnt1=0):
        if not KE: Vld1(Vqs[0], cnt); return
        if Vqs[0] and cnt: a.only(0, lambda: Vld1(Vqs[0], cnt))
        if Vqs[1] and cnt1: a.only(1, lambda: Vld1(Vqs[1], cnt1))
    def Vwr(n):
        a.wait_vm(f"v{n}")
        for x in range(4):
            a.ds(f"ds_write_b128 v{vRW}, {R('v', VR(n,x))} offset:{(n%4)*16384 + (x//2)*8192 + (x%2)*1024}", "vw")
    a.wait_vm("A0")
    a.e("s_barrier")
    for n in range(8):
        a.wait_vm(f"A{min(n+1, 7)}")
        a.e("s_barrier")
        if n in (1, 3): Xdma(2 + n//2)
        if n < 5: Adma(n + 3)
        else: Kdma(n - 5)
    a.e("s_barrier")
    Kdma(3); Kdma(4)
    Vld(0, VB1[0])
    a.wait_vm("k1"); a.e("s_barrier")
    Kdma(5); Kdma(6)
    Vld(0, VB1[1])
    a.wait_vm("k3"); a.e("s_barrier")
    Kdma(7)
    Vld(VB[0], VB1[2])
    a.wait_vm("k5"); a.e("s_barrier")
    Vld(VB[1], VB1[3])
    a.wait_vm("k7"); a.e("s_barrier")
    Vld(VB[2], VB1[4])
    a.e("s_barrier")
    Vld(VB[3], VB1[5])
    for n in range(3): Vwr(n)
    a.wait_lg0()
    a.e("s_barrier")
    Vld(99, 99)
    a.e("s_lshl_b32 s50, s45, 17")
    a.e("s_add_u32 s50, s50, s59")
    a.e("s_lshl_b32 s51, s44, 7")
    a.e("s_add_u32 s50, s50, s51")
    a.e("s_add_u32 s51, s50, 16384")
    for i in range(8):
        so = 50 if i < 4 else 51
        a.vmem(f"buffer_load_dwordx2 {R('v', 192+2*i, 2)}, v{vWO}, s[{SWO}:{SWO+3}], s{so} offen offset:{(i%4)*1024}", "wo")
    for n in range(8):
        a.wait_lg0()
        a.e("s_barrier")
        if n < 5: Vwr(n + 3)
        if n == 5:
            a.e("s_lshl_b32 s50, s44, 6")
            a.e("s_add_u32 s50, s50, s45")
            a.e("s_lshl_b32 s50, s50, 13")
            a.e("s_lshl_b32 s51, s46, 8")
            a.e("s_add_u32 s50, s50, s51")
            a.e(f"s_add_u32 s50, s50, {WS_W}")
            a.wait_vm("wo")
            for e in range(4):
                for z in range(4):
                    sel = selLo if e % 2 == 0 else selHi
                    a.e(f"v_perm_b32 v{208+4*e+z}, v{192+2*(2*z+1)+e//2}, v{192+2*(2*z)+e//2}, s{sel}")
            for e in range(4):
                a.vmem(f"buffer_store_dwordx4 {R('v', 208+4*e)}, v{vWS}, s[{SWS}:{SWS+3}], s50 offen offset:{16*e}{STW}", "wst")
    a.lab("K1_END")
    a.e("s_endpgm")
    return a

K2NW = int(os.environ.get("K2NW", "4"))
def kernel2():
    D = int(os.environ.get("K2D", "4"))
    ROT = int(os.environ.get("K2ROT", "0"))
    NW = K2NW
    NK = 128 // NW
    a = Asm()
    SWS, SO = 20, 24
    AC = 20*D
    vL, vO, vW, vR = AC+24, AC+25, AC+26, AC+27
    a.e("s_cmp_ge_u32 s2, 256")
    a.e("s_cbranch_scc1 K2_END")
    a.e("s_load_dwordx2 s[4:5], s[0:1], 40")
    a.e("s_load_dwordx2 s[6:7], s[0:1], 56")
    a.e("v_lshrrev_b32 v1, 6, v0")
    a.e("v_and_b32 v2, 63, v0")
    a.e("v_readfirstlane_b32 s46, v1")
    a.e(f"v_lshlrev_b32 v{vL}, 4, v2")
    a.e("s_and_b32 s50, s2, 7")
    a.e("s_lshr_b32 s51, s2, 3")
    a.e("s_lshr_b32 s44, s50, 1")
    a.e("s_lshl_b32 s44, s44, 2")
    a.e("s_lshr_b32 s52, s51, 3")
    a.e("s_add_u32 s44, s44, s52")
    a.e("s_and_b32 s45, s50, 1")
    a.e("s_lshl_b32 s45, s45, 3")
    a.e("s_and_b32 s52, s51, 7")
    a.e("s_add_u32 s45, s45, s52")
    a.e(f"s_mul_i32 s52, s46, {NK}")
    a.e("s_lshl_b32 s53, s44, 7")
    a.e("s_add_u32 s53, s53, s52")
    a.e("s_mul_i32 s53, s53, 3072")
    a.e("s_lshl_b32 s54, s45, 7")
    a.e("s_add_u32 s54, s54, s52")
    a.e("s_lshl_b32 s54, s54, 11")
    a.e(f"s_add_u32 s54, s54, {WS_W}")
    if ROT == 1:
        a.e(f"s_mul_i32 s55, s51, {max(NK//32,1)}")
        a.e(f"s_lshr_b32 s55, s55, {1 if NK < 32 else 0}")
    elif ROT == 2:
        a.e("s_and_b32 s55, s51, 7")
        a.e(f"s_mul_i32 s55, s55, {NK//8}")
    else: a.e("s_mov_b32 s55, 0")
    a.e(f"s_and_b32 s55, s55, {NK-1}")
    a.e("v_and_b32 v3, 15, v2")
    a.e("v_lshrrev_b32 v4, 4, v2")
    a.e("v_lshlrev_b32 v4, 4, v4")
    a.e(f"v_lshl_add_u32 v{vO}, v3, 10, v4")
    a.e("s_mul_i32 s52, s46, 6144")
    a.e(f"v_add_u32 v{vW}, s52, v{vL}")
    a.e("s_lshl_b32 s52, s46, 11")
    a.e(f"v_add_u32 v{vR}, s52, v{vL}")
    a.e("s_waitcnt lgkmcnt(0)")
    srd(a, SWS, 6, 268435456)
    def ld(sl):
        b = 20*sl
        a.e("s_lshl_b32 s56, s55, 11")
        a.e("s_add_u32 s56, s56, s54")
        a.e("s_mul_i32 s57, s55, 3072")
        a.e("s_add_u32 s57, s57, s53")
        for x in range(2):
            a.e(f"buffer_load_dwordx4 {R('v', b+4*x)}, v{vL}, s[{SWS}:{SWS+3}], s56 offen offset:{1024*x}")
        for x in range(3):
            a.e(f"buffer_load_dwordx4 {R('v', b+8+4*x)}, v{vL}, s[{SWS}:{SWS+3}], s57 offen offset:{1024*x}")
        a.e("s_add_u32 s55, s55, 1")
        a.e(f"s_and_b32 s55, s55, {NK-1}")
    for sl in range(D): ld(sl)
    srd(a, SO, 4, 786432)
    for i in range(24): a.e(f"v_mov_b32 v{AC+i}, 0")
    a.e(f"s_mov_b32 s58, {NK//D - 1}")
    def mm(sl):
        b = 20*sl
        for x in range(2):
            for tt in range(3):
                acc = R('v', AC + 4*(tt*2 + x))
                a.e(f"v_mfma_f32_16x16x32_bf16 {acc}, {R('v', b+4*x)}, {R('v', b+8+4*tt)}, {acc}")
    a.lab("K2_LOOP")
    for sl in range(D):
        a.e(f"s_waitcnt vmcnt({5*(D-1)})")
        mm(sl); ld(sl)
    a.e("s_sub_u32 s58, s58, 1")
    a.e("s_cmp_lg_u32 s58, 0")
    a.e("s_cbranch_scc1 K2_LOOP")
    for sl in range(D):
        a.e(f"s_waitcnt vmcnt({5*(D-1-sl)})")
        mm(sl)
    a.e("s_mul_i32 s52, s44, 49152")
    a.e("s_lshl_b32 s53, s46, 14")
    a.e("s_add_u32 s52, s52, s53")
    a.e("s_lshl_b32 s53, s45, 6")
    a.e("s_add_u32 s52, s52, s53")
    a.nop(6)
    for u in range(6):
        a.e(f"ds_write_b128 v{vW}, {R('v', AC+4*u)} offset:{1024*u}")
    a.wait_lg0()
    a.e("s_barrier")
    a.e("s_cmp_ge_u32 s46, 3")
    a.e("s_cbranch_scc1 K2_END")
    for s in range(NW):
        for x in range(2):
            a.e(f"ds_read_b128 {R('v', 8*s+4*x)}, v{vR} offset:{6144*s + 1024*x}")
    a.wait_lg0()
    n = NW
    while n > 1:
        n //= 2
        for s in range(n):
            for i in range(0, 8, 2):
                a.e(f"v_pk_add_f32 {R('v',8*s+i,2)}, {R('v',8*s+i,2)}, {R('v',8*(s+n)+i,2)}")
    for i in range(4):
        a.e(f"v_cvt_pk_bf16_f32 v{8+i}, v{2*i}, v{2*i+1}")
    a.e(f"buffer_store_dwordx4 v[8:11], v{vO}, s[{SO}:{SO+3}], s52 offen")
    a.lab("K2_END")
    a.e("s_endpgm")
    return a

def desc(name, nfv, acc):
    return f""".amdhsa_kernel {name}
  .amdhsa_next_free_vgpr {nfv}
  .amdhsa_next_free_sgpr 102
  .amdhsa_accum_offset {acc}
  .amdhsa_group_segment_fixed_size 0
  .amdhsa_kernarg_size 64
  .amdhsa_user_sgpr_count 2
  .amdhsa_user_sgpr_kernarg_segment_ptr 1
  .amdhsa_system_sgpr_workgroup_id_x 1
.end_amdhsa_kernel"""

def main():
    hdr = open("cdna_kernels/" + NAME + ".s.ref").read().split("\n")
    top = [l for l in hdr if l.startswith(";") and "@launch" not in l and "Override" not in l and "grid=ceil" not in l]
    out = list(top)
    out.append(f"; @launch kernel={K1} grid=(256,1,1) block=(512,1,1) lds=163840")
    out.append(f"; @launch kernel={K2} grid=(256,1,1) block=({K2NW*64},1,1) lds={K2NW*6144}")
    out.append('.amdgcn_target "amdgcn-amd-amdhsa--gfx950"')
    out.append(".text")
    for name, k in ((K1, kernel1()), (K2, kernel2())):
        out += [f".globl {name}", ".p2align 8", f".type {name},@function", f"{name}:"]
        out += k.L
    out += ['.section .rodata,"a"', ".p2align 6", desc(K1, 256, 256), ".p2align 6", desc(K2, 256, 256)]
    path = sys.argv[1] if len(sys.argv) > 1 else "cdna_kernels/" + NAME + ".s"
    open(path, "w").write("\n".join(out) + "\n")

main()
```

```python
import sys, math, struct

NAME = "standalone__gqa_block_cached__near_ridge"
K1 = NAME + "_kernel"
K2 = "oproj_kernel"
import os
STAMP = bool(os.environ.get("STAMP"))
STAMP_OFF = 0
STF = os.environ.get('STF', '')
STW = os.environ.get('STW', '')
WS_W = 8 * 1024 * 1024

def f32bits(x):
    return struct.unpack("<I", struct.pack("<f", x))[0]

class Asm:
    def __init__(self):
        self.L = []
        self.vm = []
        self.lg = []
        self.ns = 0
        self.vmB = []
        self.cur = None
        self.nl = 0
    def e(self, s):
        self.L.append("    " + s)
    def lab(self, s):
        self.L.append(s + ":")
    def c(self, s):
        self.L.append("    ; " + s)
    def vmem(self, s, tag):
        self.e(s)
        if self.cur in (None, 0): self.vm.append(tag)
        if self.cur in (None, 1): self.vmB.append(tag)
    def only(self, g, fn):
        self.nl += 1
        L = f"K1_G{self.nl}"
        self.e(f"s_cmp_lg_u32 s63, {g}")
        self.e(f"s_cbranch_scc1 {L}")
        self.cur = g
        lg = list(self.lg)
        fn()
        self.e("s_waitcnt lgkmcnt(0)") if self.lg != lg else None
        self.lg = lg
        self.cur = None
        self.lab(L)
    def ds(self, s, tag):
        self.e(s); self.lg.append(tag)
    def wait_vm(self, tag):
        def cnt(l):
            idx = max(i for i, t in enumerate(l) if t == tag)
            return min(len(l) - 1 - idx, 63)
        if self.cur is not None:
            self.e(f"s_waitcnt vmcnt({cnt(self.vm if self.cur == 0 else self.vmB)})"); return
        nA, nB = cnt(self.vm), cnt(self.vmB)
        if nA != nB:
            g = 0 if nA < nB else 1
            self.nl += 1
            L = f"K1_G{self.nl}"
            self.e(f"s_cmp_lg_u32 s63, {g}")
            self.e(f"s_cbranch_scc1 {L}")
            self.e(f"s_waitcnt vmcnt({min(nA,nB)})")
            self.lab(L)
        self.e(f"s_waitcnt vmcnt({max(nA,nB)})")
    def wait_lg(self, tag):
        idx = max(i for i, t in enumerate(self.lg) if t == tag)
        n = min(len(self.lg) - 1 - idx, 15)
        self.e(f"s_waitcnt lgkmcnt({n})")
    def wait_lg0(self):
        self.e("s_waitcnt lgkmcnt(0)")
    def stamp(self):
        if not STAMP: return
        k = self.ns; self.ns += 1
        self.e(f"s_memtime s[{64+2*k}:{65+2*k}]")
        self.e("s_waitcnt lgkmcnt(0)")
    def dump_stamps(self, srd_, wave_s):
        if not STAMP: return
        self.e("s_lshl_b32 s50, s2, 2")
        self.e(f"s_add_u32 s50, s50, s{wave_s}")
        self.e("s_lshl_b32 s50, s50, 7")
        self.e(f"s_add_u32 s50, s50, {16*1024*1024 + STAMP_OFF}")
        self.e("v_mov_b32 v1, 0")
        for k in range(self.ns):
            self.e(f"v_mov_b32 v2, s{64+2*k}")
            self.e(f"buffer_store_dword v2, v1, s[{srd_}:{srd_+3}], s50 offen offset:{4*k}")
            self.e("s_nop 1")
    def nop(self, n):
        while n > 0:
            k = min(n, 16)
            self.e(f"s_nop {k-1}")
            n -= k

def R(kind, b, n=4):
    return f"{kind}[{b}:{b+n-1}]" if n > 1 else f"{kind}{b}"

def srd(a, d, p, nbytes):
    a.e(f"s_mov_b32 s{d}, s{p}")
    a.e(f"s_and_b32 s{d+1}, s{p+1}, 0xffff")
    a.e(f"s_mov_b32 s{d+2}, {nbytes}")
    a.e(f"s_mov_b32 s{d+3}, 0x00020000")

def interleave(a, mf, va, maxper=2, lastfree=2):
    va = list(va)
    n = len(mf)
    slots = max(n - lastfree, 1)
    per = -(-len(va) // slots) if va else 0
    for i, m in enumerate(mf):
        a.e(m)
        if i < slots:
            for _ in range(per):
                if va: a.e(va.pop(0))
    assert not va

def interleave2(a, mf, va, ld, lastfree=2):
    va = list(va); ld = list(ld)
    n = len(mf)
    slots = max(n - lastfree, 1)
    per = -(-len(va) // slots) if va else 0
    nl = len(ld)
    done = 0
    for i, m in enumerate(mf):
        if callable(m): m()
        else: a.e(m)
        if i < slots:
            for _ in range(per):
                if va: a.e(va.pop(0))
        while done < nl and (done + 0.5) * n <= (i + 1) * nl:
            ld[done](); done += 1
    while done < nl:
        ld[done](); done += 1
    assert not va

def kernel1():
    a = Asm()
    SX, SK, SV, SA, SWO, SWS = 20, 24, 28, 32, 36, 40
    selLo, selHi = 48, 49
    NT = " nt" if os.environ.get("NT", "1") == "1" else ""
    RING = 98304
    vL16, vST, vSR, vQW = 255, 254, 253, 252
    vKR, vB, vA = 248, 244, 242
    vAD, vVD, vKD, vXD, vWO, vWS, vRW = 240, 241, 236, 232, 230, 231, 229
    ACC = lambda t, jt: (t*2 + jt)*4
    BF = lambda buf, t: 48 + 24*buf + 4*t
    AF = lambda k, jt: 96 + 8*k + 4*jt
    sN, sG, sAO, sAP, sM = 52, 53, 54, 55, 56
    VB = [int(x) for x in os.environ.get("VB", "4,6,4,6").split(",")]
    a.e("s_cmp_ge_u32 s2, 256")
    a.e("s_cbranch_scc1 K1_END")
    a.e("s_load_dwordx16 s[4:19], s[0:1], 0")
    a.e("v_lshrrev_b32 v32, 6, v0")
    a.e("v_and_b32 v34, 63, v0")
    a.e("v_and_b32 v33, 3, v32")
    a.e("v_readfirstlane_b32 s47, v32")
    a.e("v_readfirstlane_b32 s46, v33")
    a.e("v_and_b32 v35, 15, v34")
    a.e("v_lshrrev_b32 v36, 4, v34")
    a.e("s_lshr_b32 s44, s2, 5")
    a.e("s_and_b32 s50, s2, 7")
    a.e("s_lshl_b32 s50, s50, 2")
    a.e("s_lshr_b32 s51, s2, 3")
    a.e("s_and_b32 s51, s51, 3")
    a.e("s_add_u32 s45, s50, s51")
    a.e(f"v_lshlrev_b32 v{vL16}, 4, v34")
    a.e("v_lshlrev_b32 v38, 4, v35")
    a.e("v_lshlrev_b32 v43, 8, v35")
    a.e("s_cmp_ge_u32 s47, 4")
    a.e("s_cbranch_scc1 K1_LOADER")
    a.e("v_lshrrev_b32 v39, 2, v35")
    a.e("v_and_b32 v40, 1, v36")
    a.e("v_lshl_add_u32 v40, v40, 2, v39")
    a.e("v_lshl_add_u32 v41, v36, 3, v39")
    a.e("v_and_b32 v42, 3, v35")
    a.e("v_lshlrev_b32 v42, 3, v42")
    a.e("v_lshl_add_u32 v41, v41, 8, v42")
    a.e(f"v_add_u32 v41, {RING}, v41")
    a.e("v_lshlrev_b32 v42, 1, v33")
    a.e("v_xor_b32 v42, v42, v40")
    a.e(f"v_lshl_add_u32 v{vA}, v42, 5, v41")
    a.e("v_xor_b32 v42, 1, v42")
    a.e(f"v_lshl_add_u32 v{vA+1}, v42, 5, v41")
    a.e("v_lshrrev_b32 v39, 1, v36")
    a.e("v_lshl_add_u32 v39, v39, 8, v38")
    a.e("v_and_b32 v40, 1, v36")
    a.e("v_lshl_add_u32 v39, v40, 3, v39")
    a.e(f"v_lshl_add_u32 v{vQW}, v33, 10, v39")
    a.e(f"v_add_u32 v{vSR}, {RING + 49152}, v38")
    a.e(f"v_lshl_add_u32 v{vST}, v33, 2, v{vSR}")
    a.e("s_lshl_b32 s50, s46, 12")
    a.e("s_add_u32 s50, s50, 24576")
    for n in range(4):
        a.e(f"v_add_u32 v39, {4*n}, v36")
        a.e("v_xor_b32 v42, v39, v35")
        a.e(f"v_lshl_add_u32 v{vB+n}, v42, 4, v43")
        a.e(f"v_add_u32 v{vKR+n}, s50, v{vB+n}")
    a.e(f"s_mov_b32 s{sG}, 0")
    a.e("s_waitcnt lgkmcnt(0)")
    a.stamp()
    srd(a, SWS, 18, 268435456)
    a.e("s_barrier")
    a.stamp()
    a.lab("K1_GEMM")
    a.e(f"s_mov_b32 s{sN}, 0")
    def rdB(buf, k):
        return [f"ds_read_b128 {R('v', BF(buf,t))}, v{vB+k} offset:{t*4096}" for t in range(6)]
    def rdA(k, off):
        return [f"ds_read_b64_tr_b16 {R('v', AF(k,jt)+2*hh, 2)}, v{vA+jt} offset:{off + hh*1024}" for jt in range(2) for hh in range(2)]
    for x in rdA(0, 0) + rdB(0, 0): a.e(x)
    for i in range(48): a.e(f"v_mov_b32 v{i}, 0")
    a.lab("K1_LOOP")
    for hs in range(2):
        a.e("s_waitcnt lgkmcnt(0)")
        a.e("s_barrier")
        for k in range(2):
            if k == 0:
                nxt = rdA(1, hs*16384 + 8192) + rdB(1, 2*hs + 1)
            else:
                if hs == 1:
                    a.e(f"v_add_u32 v{vB}, 24576, v{vB}")
                    a.e(f"v_xor_b32 v{vA}, 0x38000, v{vA}")
                    a.e(f"v_xor_b32 v{vA+1}, 0x38000, v{vA+1}")
                nxt = rdA(0, 16384*(1 - hs)) + rdB(0, (2*hs + 2) % 4)
                a.e("s_waitcnt lgkmcnt(0)")
            for t in range(6):
                for jt in range(2):
                    a.e(f"v_mfma_f32_16x16x32_bf16 {R('v', ACC(t,jt))}, {R('v', AF(k,jt))}, {R('v', BF(k,t))}, {R('v', ACC(t,jt))}")
                    for _ in range(2):
                        if nxt and t < 3: a.e(nxt.pop(0))
    for k in range(1, 4): a.e(f"v_add_u32 v{vB+k}, 24576, v{vB+k}")
    a.e(f"s_add_u32 s{sN}, s{sN}, 2")
    a.e(f"s_cmp_lt_u32 s{sN}, 8")
    a.e("s_cbranch_scc1 K1_LOOP")
    a.e("s_waitcnt lgkmcnt(0)")
    a.lg = []
    a.stamp()
    a.e("s_barrier")
    for t in range(6):
        for jt in range(2):
            b = ACC(t, jt)
            a.e(f"v_cvt_pk_bf16_f32 v{b}, v{b}, v{b+1}")
            a.e(f"v_cvt_pk_bf16_f32 v{b+1}, v{b+2}, v{b+3}")
            a.ds(f"ds_write_b64 v{vQW}, {R('v', b, 2)} offset:{t*4096 + jt*512}", "qw")
    for n in range(4):
        a.e(f"v_add_u32 v{vB+n}, {RING - 24576}, v{vKR+n}")
    a.wait_lg0()
    SB = lambda kt, t: ((kt % 2)*4 + kt//2)*24 + 4*t
    KF = lambda x, u: 192 + 16*x + 4*u
    QF = lambda u: 224 + 4*u
    def kslot(kt):
        return RING + 16384*(kt % 7) if kt < 3 or kt == 7 else 24576 + 16384*(kt - 3)
    def QB(G, t, u):
        if t % 2 == 0 or (G == 3 and t == 5): return QF(u)
        return SB(6 + u % 2, 4 + u // 2)
    def rdQ(G, t, u):
        a.ds(f"ds_read_b128 {R('v', QB(G,t,u))}, v{vL16} offset:{(t*4+u)*1024}", f"q{t}_{u}")
    for G in range(4):
        a.e("s_barrier")
        if G == 0:
            a.stamp()
            for u in range(4): rdQ(0, 0, u)
        for u in range(4):
            for x in range(2):
                kt = 2*G + x
                if kslot(kt) >= RING: a.ds(f"ds_read_b128 {R('v', KF(x,u))}, v{vB+u} offset:{kslot(kt)-RING}", f"kr{u}")
                else: a.ds(f"ds_read_b128 {R('v', KF(x,u))}, v{vKR+u} offset:{kslot(kt)-24576}", f"kr{u}")
        for t in range(6):
            late = (G == 3 and t == 4)
            if not late and not (G == 3 and t == 5):
                for u in range(4): rdQ(G + (t+1)//6, (t+1) % 6, u)
            for u in range(4):
                a.wait_lg(f"kr{u}" if t == 0 else f"q{t}_{u}")
                for x in range(2):
                    kt = 2*G + x
                    cin = "0" if u == 0 else R('v', SB(kt, t))
                    a.e(f"v_mfma_f32_16x16x32_bf16 {R('v', SB(kt,t))}, {R('v', KF(x,u))}, {R('v', QB(G,t,u))}, {cin}")
                if late: rdQ(3, 5, u)
    a.nop(8)
    a.stamp()
    cs = math.log2(math.e) / math.sqrt(128.0)
    a.e(f"s_mov_b32 s50, 0x{f32bits(cs):08x}")
    a.e(f"s_mov_b32 s51, 0x{f32bits(cs):08x}")
    vM = 224
    for t in range(6):
        vals = [SB(kt, t) + r for kt in range(8) for r in range(4)]
        m = vM + 2*t
        a.e(f"v_max3_f32 v{m}, v{vals[0]}, v{vals[1]}, v{vals[2]}")
        a.e(f"v_max3_f32 v{m+1}, v{vals[3]}, v{vals[4]}, v{vals[5]}")
        for i in range(6, 30, 4):
            a.e(f"v_max3_f32 v{m}, v{m}, v{vals[i]}, v{vals[i+1]}")
            a.e(f"v_max3_f32 v{m+1}, v{m+1}, v{vals[i+2]}, v{vals[i+3]}")
        a.e(f"v_max3_f32 v{m}, v{m}, v{vals[30]}, v{vals[31]}")
        a.e(f"v_max_f32 v{m}, v{m}, v{m+1}")
        a.e(f"v_mov_b32 v{m+1}, v{m}")
    for op in ("v_permlane32_swap_b32", "v_permlane16_swap_b32"):
        a.nop(2)
        for t in range(6): a.e(f"{op} v{vM+2*t}, v{vM+2*t+1}")
        for t in range(6): a.e(f"v_max_f32 v{vM+2*t}, v{vM+2*t}, v{vM+2*t+1}")
        if "32" in op[:13]:
            for t in range(6): a.e(f"v_mov_b32 v{vM+2*t+1}, v{vM+2*t}")
    for t in range(6):
        a.ds(f"ds_write_b32 v{vST}, v{vM+2*t} offset:{t*256}", "mw")
    a.e("s_mul_i32 s59, s46, 24576")
    a.e(f"v_add_u32 v{vQW}, s59, v{vL16}")
    MR = [236, 238, 240, 244, 246, 248]
    a.e(f"v_add_u32 v237, 49152, v{vL16}")
    a.e(f"v_and_b32 v{vB+1}, 0xf0, v{vL16}")
    a.e(f"v_lshlrev_b32 v{vB+1}, 1, v{vB+1}")
    a.e(f"v_add_u32 v239, s59, v{vB+1}")
    a.e(f"v_add_u32 v{vB+3}, 49152, v{vB+1}")
    a.wait_lg0()
    a.stamp()
    a.e("s_barrier")
    a.stamp()
    for t in range(6):
        a.ds(f"ds_read_b128 {R('v', 196+4*t)}, v{vSR} offset:{t*256}", f"g{t}")
    for t in range(6):
        b = 196 + 4*t
        a.wait_lg(f"g{t}")
        a.e(f"v_max3_f32 v{b}, v{b}, v{b+1}, v{b+2}")
        a.e(f"v_max_f32 v{b}, v{b}, v{b+3}")
        a.e(f"v_mul_f32 v{MR[t]}, s50, v{b}")
    for r in range(4):
        a.e(f"v_mov_b32 v{192+r}, 0x3f803f80")
    PB = lambda t, p: 24*p + 4*t
    SUM = lambda t: 196 + 4*t
    def E(p):
        out = []; pend = None
        for t in range(6):
            e0, e1 = SB(2*p, t), SB(2*p+1, t)
            osel = "op_sel_hi:[1,1,0]"
            for x in (e0, e0+2, e1, e1+2):
                out.append(f"v_pk_fma_f32 {R('v',x,2)}, {R('v',x,2)}, s[50:51], {R('v',MR[t],2)} {osel} neg_lo:[0,0,1] neg_hi:[0,0,1]")
            if pend: out.append(pend)
            for x in list(range(e0, e0+4)) + list(range(e1, e1+4)):
                out.append(f"v_exp_f32 v{x}, v{x}")
            out.append(f"v_cvt_pk_bf16_f32 v{e0}, v{e0}, v{e0+1}")
            out.append(f"v_cvt_pk_bf16_f32 v{e0+1}, v{e0+2}, v{e0+3}")
            out.append(f"v_cvt_pk_bf16_f32 v{e0+2}, v{e1}, v{e1+1}")
            out.append(f"v_cvt_pk_bf16_f32 v{e0+3}, v{e1+2}, v{e1+3}")
            out.append(f"ds_write_b128 v{vQW}, {R('v', e0)} offset:{t*4096 + p*1024}")
            cin = "0" if p == 0 else R('v', SUM(t))
            pend = f"v_mfma_f32_16x16x32_bf16 {R('v', SUM(t))}, v[192:195], {R('v', e0)}, {cin}"
        out += ["s_nop 1", pend]
        return out
    AC2 = lambda t, jt: (8*t if t < 3 else 96 + 8*(t-3)) + 4*jt
    BF2 = lambda buf, t: (24 if buf == 0 else 120) + 4*t
    AF2 = lambda buf, jt: 220 + 8*buf + 4*jt
    def rd2(p, kb):
        buf = kb % 2
        off = ((2*p + kb//2) % 4)*16384 + (kb % 2)*8192
        o = [f"ds_read_b64_tr_b16 {R('v', AF2(buf,jt)+2*hh, 2)}, v{vA+jt} offset:{off + hh*1024}" for jt in range(2) for hh in range(2)]
        o += [f"ds_read_b128 {R('v', BF2(buf,t))}, v{vL16 if kb < 2 else 237} offset:{(kb%2)*24576 + t*4096 + p*1024}" for t in range(6)]
        return o
    for x in E(0) + E(1): a.e(x)
    a.stamp()
    for p in range(4):
        ev = E(p + 2) if p < 2 else []
        a.e("s_waitcnt lgkmcnt(0)")
        a.e("s_barrier")
        if p == 2:
            for t in range(6):
                a.e(f"ds_write_b32 v239, v{SUM(t)} offset:{4*t}")
        for x in rd2(p, 0): a.e(x)
        if p == 3:
            for wv in range(4):
                ad = f"v{vB+1 if wv < 2 else vB+3}"
                a.e(f"ds_read_b128 {R('v', 48+8*wv)}, {ad} offset:{(wv%2)*24576}")
                a.e(f"ds_read_b64 {R('v', 52+8*wv, 2)}, {ad} offset:{(wv%2)*24576 + 16}")
        for _ in range(14):
            if ev: a.e(ev.pop(0))
        per = -(-len(ev) // 44)
        for kb in range(4):
            nxt = rd2(p, kb+1) if kb < 3 else []
            a.e("s_waitcnt lgkmcnt(0)")
            for t in range(6):
                for jt in range(2):
                    cin = "0" if (p == 0 and kb == 0) else R('v', AC2(t,jt))
                    a.e(f"v_mfma_f32_16x16x32_bf16 {R('v', AC2(t,jt))}, {R('v', AF2(kb%2,jt))}, {R('v', BF2(kb%2,t))}, {cin}")
                    for _ in range(2):
                        if nxt and t < 3: a.e(nxt.pop(0))
                    for _ in range(per):
                        if ev: a.e(ev.pop(0))
            if p == 3 and kb == 1:
                for t in range(0, 6, 2):
                    a.e(f"v_pk_add_f32 {R('v',48+t,2)}, {R('v',48+t,2)}, {R('v',56+t,2)}")
                    a.e(f"v_pk_add_f32 {R('v',64+t,2)}, {R('v',64+t,2)}, {R('v',72+t,2)}")
                    a.e(f"v_pk_add_f32 {R('v',48+t,2)}, {R('v',48+t,2)}, {R('v',64+t,2)}")
                for t in range(6): a.e(f"v_rcp_f32 v{80+2*t}, v{48+t}")
        assert not ev
        if p == 1: a.nop(8)
    a.stamp()
    a.e("s_lshl_b32 s50, s44, 6")
    a.e("s_add_u32 s50, s50, s45")
    a.e("s_lshl_b32 s50, s50, 2")
    a.e("s_add_u32 s50, s50, s46")
    a.e("s_mul_i32 s50, s50, 3072")
    a.e("s_add_u32 s51, s50, 393216")
    a.nop(4)
    for t in range(6):
        b = AC2(t, 0)
        osel = "op_sel_hi:[1,0]"
        for r in range(0, 8, 2):
            a.e(f"v_pk_mul_f32 {R('v',b+r,2)}, {R('v',b+r,2)}, {R('v',80+2*t,2)} {osel}")
        for z in range(4):
            a.e(f"v_cvt_pk_bf16_f32 v{144+4*t+z}, v{b+2*z}, v{b+2*z+1}")
        a.e(f"buffer_store_dwordx4 {R('v', 144+4*t)}, v{vL16}, s[{SWS}:{SWS+3}], s{50 + t//3} offen offset:{1024*(t%3)}{STF}")
    a.stamp()
    a.dump_stamps(SWS, 46)
    a.e("s_endpgm")
    a.lab("K1_LOADER")
    a.vm = []; a.vmB = []; a.lg = []
    for n in range(4):
        a.e(f"v_lshl_add_u32 v39, v33, 1, {n}")
        a.e("v_and_b32 v39, 3, v39")
        a.e("v_lshl_add_u32 v39, v39, 2, v36")
        a.e("v_xor_b32 v42, v39, v35")
        a.e("v_lshlrev_b32 v42, 4, v42")
        a.e(f"v_lshl_add_u32 v{vXD+n}, v36, 10, v42")
    a.e("s_mul_i32 s57, s44, 98304")
    a.e("s_mul_i32 s51, s46, 24576")
    a.e("s_add_u32 s57, s57, s51")
    a.e("s_mul_i32 s62, s46, 6144")
    a.e("s_waitcnt lgkmcnt(0)")
    srd(a, SX, 4, 786432)
    NE = int(os.environ.get("NE", "0"))
    a.e(os.environ.get("GRPI", "s_and_b32 s63, s44, 1"))
    srd(a, SV, 8, 33554432)
    a.e("v_and_b32 v39, 1, v33")
    a.e("v_lshl_add_u32 v39, v39, 2, v36")
    a.e("v_lshlrev_b32 v39, 1, v39")
    a.e("v_xor_b32 v39, v39, v35")
    a.e("v_lshlrev_b32 v39, 4, v39")
    a.e(f"v_lshl_add_u32 v{vAD}, v36, 13, v39")
    a.e(f"v_lshl_add_u32 v{vVD}, v36, 8, v39")
    a.e("s_lshl_b32 s61, s44, 5")
    a.e("s_add_u32 s61, s61, s45")
    a.e("s_lshl_b32 s61, s61, 17")
    a.e("s_lshl_b32 s59, s46, 15")
    a.e("s_add_u32 s60, s61, s59")
    a.e("s_lshl_b32 s59, s46, 11")
    a.e("s_add_u32 s61, s61, s59")
    a.e("s_lshl_b32 s59, s46, 12")
    VR = lambda n, x: 64 + 16*n + 4*x
    Vqs = [[(n, x) for n in range(8) for x in range(4)] for _ in range(2)]
    def Vld1(q, cnt):
        for _ in range(cnt):
            if not q: return
            n, x = q.pop(0)
            a.e(f"s_add_u32 s50, s61, {(2*(n%2) + x//2)*32768 + (n//2)*8192}")
            a.vmem(f"buffer_load_dwordx4 {R('v', VR(n,x))}, v{vVD}, s[{SV}:{SV+3}], s50 offen offset:{1024*(x%2)}{NT}", f"v{n}")
    def Vld(cnt):
        if NE == 0:
            Vld1(Vqs[0], cnt); return
        for g_ in range(2):
            if Vqs[g_] and cnt: a.only(g_, lambda: Vld1(Vqs[g_], cnt))
    KE = int(os.environ.get("KE", "5"))
    KET = list(range(7 - KE, 7))
    VB1 = [int(x) for x in os.environ.get("VB1", "2,2,4,4,4,6").split(",")]
    srd(a, SK, 6, 33554432)
    for n in range(4):
        a.e(f"v_add_u32 v39, {4*n}, v36")
        a.e("v_xor_b32 v42, v39, v35")
        a.e("v_lshlrev_b32 v42, 4, v42")
        a.e(f"v_add_u32 v39, {8*n}, v36")
        a.e(f"v_lshl_add_u32 v{vKD+n}, v39, 8, v42")
    a.e(f"v_add_u32 v227, s59, v{vL16}")
    a.e(f"v_add_u32 v228, {RING}, v227")
    a.e(f"v_add_u32 v227, 24576, v227")
    def Kearly():
        for kt in KET:
            a.e(f"s_add_u32 s50, s60, {8192*(kt//2) + 1024*(kt%2)}")
            for n in range(4):
                a.vmem(f"buffer_load_dwordx4 {R('v', VR(kt,n))}, v{vKD+n}, s[{SK}:{SK+3}], s50 offen{NT}", f"k{kt}")
    def Kwr(kt):
        for n in range(4):
            if kslot(kt) >= RING: a.ds(f"ds_write_b128 v228, {R('v', VR(kt,n))} offset:{kslot(kt) - RING + 1024*n}", "kw")
            else: a.ds(f"ds_write_b128 v227, {R('v', VR(kt,n))} offset:{kslot(kt) - 24576 + 1024*n}", "kw")
    if KE: a.only(1, Kearly)
    def Xdma(kb):
        for m in range(6):
            a.e(f"s_add_u32 m0, s62, {kb*24576 + m*1024}")
            a.e(f"s_add_u32 s50, s57, {m*4096 + kb*256}")
            a.vmem(f"buffer_load_dwordx4 v{vXD + m%4}, s[{SX}:{SX+3}], s50 offen lds", f"x{kb}")
    Xdma(0)
    a.e(f"s_lshl_b32 s{sAO}, s46, 16")
    a.e("s_lshl_b32 s50, s45, 8")
    a.e(f"s_add_u32 s{sAO}, s{sAO}, s50")
    a.e(f"s_lshl_b32 s58, s46, 11")
    a.e(f"s_add_u32 s58, s58, {RING}")
    srd(a, SA, 10, 4194304)
    def Adma(n):
        for blk in range(2):
            for hh in range(2):
                a.e(f"s_add_u32 m0, s58, {(n%4)*16384 + blk*8192 + hh*1024}")
                a.e("s_nop 0")
                a.vmem(f"buffer_load_dwordx4 v{vAD}, s[{SA}:{SA+3}], s{sAO} offen lds", f"A{n}")
                a.e(f"s_add_u32 s{sAO}, s{sAO}, {32768 if hh == 0 else 32768*7}")
    Adma(0); Adma(1); Xdma(1); Adma(2)
    srd(a, SWO, 12, 4194304)
    srd(a, SWS, 18, 268435456)
    a.e(f"s_mov_b32 s{selLo}, 0x05040100")
    a.e(f"s_mov_b32 s{selHi}, 0x07060302")
    a.e(f"v_add_u32 v{vRW}, s58, v{vL16}")
    a.e("v_lshlrev_b32 v39, 15, v36")
    a.e(f"v_lshl_add_u32 v{vWO}, v35, 3, v39")
    a.e("v_lshrrev_b32 v39, 3, v35")
    a.e("v_lshlrev_b32 v39, 18, v39")
    a.e("v_lshl_add_u32 v39, v36, 11, v39")
    a.e("v_and_b32 v42, 1, v35")
    a.e("v_lshl_add_u32 v39, v42, 10, v39")
    a.e("v_bfe_u32 v42, v35, 1, 2")
    a.e(f"v_lshl_add_u32 v{vWS}, v42, 6, v39")
    def Kdma(kt):
        a.e(f"s_add_u32 m0, s59, {kslot(kt)}")
        a.e(f"s_add_u32 s50, s60, {8192*(kt//2) + 1024*(kt%2)}")
        for n in range(4):
            a.vmem(f"buffer_load_dwordx4 v{vKD+n}, s[{SK}:{SK+3}], s50 offen{NT} lds", f"k{kt}")
            if n < 3:
                a.e("s_add_u32 m0, m0, 1024")
                a.e("s_nop 0")
    Kdma0 = Kdma
    def Kdma(kt):
        if kt not in KET: Kdma0(kt); return
        a.only(0, lambda: Kdma0(kt))
        a.only(1, lambda: Kwr(kt))
    def Vld(cnt, cnt1=0):
        if not KE: Vld1(Vqs[0], cnt); return
        if Vqs[0] and cnt: a.only(0, lambda: Vld1(Vqs[0], cnt))
        if Vqs[1] and cnt1: a.only(1, lambda: Vld1(Vqs[1], cnt1))
    def Vwr(n):
        a.wait_vm(f"v{n}")
        for x in range(4):
            a.ds(f"ds_write_b128 v{vRW}, {R('v', VR(n,x))} offset:{(n%4)*16384 + (x//2)*8192 + (x%2)*1024}", "vw")
    a.wait_vm("A0")
    a.e("s_barrier")
    for n in range(8):
        a.wait_vm(f"A{min(n+1, 7)}")
        a.e("s_barrier")
        if n in (1, 3): Xdma(2 + n//2)
        if n < 5: Adma(n + 3)
        else: Kdma(n - 5)
    a.e("s_barrier")
    Kdma(3); Kdma(4)
    Vld(0, VB1[0])
    a.wait_vm("k1"); a.e("s_barrier")
    Kdma(5); Kdma(6)
    Vld(0, VB1[1])
    a.wait_vm("k3"); a.e("s_barrier")
    Kdma(7)
    Vld(VB[0], VB1[2])
    a.wait_vm("k5"); a.e("s_barrier")
    Vld(VB[1], VB1[3])
    a.wait_vm("k7"); a.e("s_barrier")
    Vld(VB[2], VB1[4])
    a.e("s_barrier")
    Vld(VB[3], VB1[5])
    for n in range(2): Vwr(n)
    a.wait_lg0()
    a.e("s_barrier")
    def wo_loads():
        a.e("s_lshl_b32 s50, s45, 17")
        a.e("s_add_u32 s50, s50, s59")
        a.e("s_lshl_b32 s51, s44, 7")
        a.e("s_add_u32 s50, s50, s51")
        a.e("s_add_u32 s51, s50, 16384")
        for i in range(8):
            so = 50 if i < 4 else 51
            a.vmem(f"buffer_load_dwordx2 {R('v', 192+2*i, 2)}, v{vWO}, s[{SWO}:{SWO+3}], s{so} offen offset:{(i%4)*1024}", "wo")
    for n in range(3):
        Vwr(2*n + 2); Vwr(2*n + 3)
        if n == 0: Vld(6, 6)
        if n == 1: Vld(99, 99); wo_loads()
        a.wait_lg0()
        a.e("s_barrier")
        if n == 2:
            a.e("s_lshl_b32 s50, s44, 6")
            a.e("s_add_u32 s50, s50, s45")
            a.e("s_lshl_b32 s50, s50, 13")
            a.e("s_lshl_b32 s51, s46, 8")
            a.e("s_add_u32 s50, s50, s51")
            a.e(f"s_add_u32 s50, s50, {WS_W}")
            a.wait_vm("wo")
            for e in range(4):
                for z in range(4):
                    sel = selLo if e % 2 == 0 else selHi
                    a.e(f"v_perm_b32 v{208+4*e+z}, v{192+2*(2*z+1)+e//2}, v{192+2*(2*z)+e//2}, s{sel}")
            for e in range(4):
                a.vmem(f"buffer_store_dwordx4 {R('v', 208+4*e)}, v{vWS}, s[{SWS}:{SWS+3}], s50 offen offset:{16*e}{STW}", "wst")
    a.lab("K1_END")
    a.e("s_endpgm")
    return a

K2NW = int(os.environ.get("K2NW", "4"))
def kernel2():
    D = int(os.environ.get("K2D", "4"))
    ROT = int(os.environ.get("K2ROT", "0"))
    NW = K2NW
    NK = 128 // NW
    a = Asm()
    SWS, SO = 20, 24
    AC = 20*D
    vL, vO, vW, vR = AC+24, AC+25, AC+26, AC+27
    a.e("s_cmp_ge_u32 s2, 256")
    a.e("s_cbranch_scc1 K2_END")
    a.e("s_load_dwordx2 s[4:5], s[0:1], 40")
    a.e("s_load_dwordx2 s[6:7], s[0:1], 56")
    a.e("v_lshrrev_b32 v1, 6, v0")
    a.e("v_and_b32 v2, 63, v0")
    a.e("v_readfirstlane_b32 s46, v1")
    a.e(f"v_lshlrev_b32 v{vL}, 4, v2")
    a.e("s_and_b32 s50, s2, 7")
    a.e("s_lshr_b32 s51, s2, 3")
    a.e("s_lshr_b32 s44, s50, 1")
    a.e("s_lshl_b32 s44, s44, 2")
    a.e("s_lshr_b32 s52, s51, 3")
    a.e("s_add_u32 s44, s44, s52")
    a.e("s_and_b32 s45, s50, 1")
    a.e("s_lshl_b32 s45, s45, 3")
    a.e("s_and_b32 s52, s51, 7")
    a.e("s_add_u32 s45, s45, s52")
    a.e(f"s_mul_i32 s52, s46, {NK}")
    a.e("s_lshl_b32 s53, s44, 7")
    a.e("s_add_u32 s53, s53, s52")
    a.e("s_mul_i32 s53, s53, 3072")
    a.e("s_lshl_b32 s54, s45, 7")
    a.e("s_add_u32 s54, s54, s52")
    a.e("s_lshl_b32 s54, s54, 11")
    a.e(f"s_add_u32 s54, s54, {WS_W}")
    if ROT == 1:
        a.e(f"s_mul_i32 s55, s51, {max(NK//32,1)}")
        a.e(f"s_lshr_b32 s55, s55, {1 if NK < 32 else 0}")
    elif ROT == 2:
        a.e("s_and_b32 s55, s51, 7")
        a.e(f"s_mul_i32 s55, s55, {NK//8}")
    else: a.e("s_mov_b32 s55, 0")
    a.e(f"s_and_b32 s55, s55, {NK-1}")
    a.e("v_and_b32 v3, 15, v2")
    a.e("v_lshrrev_b32 v4, 4, v2")
    a.e("v_lshlrev_b32 v4, 4, v4")
    a.e(f"v_lshl_add_u32 v{vO}, v3, 10, v4")
    a.e("s_mul_i32 s52, s46, 6144")
    a.e(f"v_add_u32 v{vW}, s52, v{vL}")
    a.e("s_lshl_b32 s52, s46, 11")
    a.e(f"v_add_u32 v{vR}, s52, v{vL}")
    a.e("s_waitcnt lgkmcnt(0)")
    srd(a, SWS, 6, 268435456)
    def ld(sl):
        b = 20*sl
        a.e("s_lshl_b32 s56, s55, 11")
        a.e("s_add_u32 s56, s56, s54")
        a.e("s_mul_i32 s57, s55, 3072")
        a.e("s_add_u32 s57, s57, s53")
        for x in range(2):
            a.e(f"buffer_load_dwordx4 {R('v', b+4*x)}, v{vL}, s[{SWS}:{SWS+3}], s56 offen offset:{1024*x}")
        for x in range(3):
            a.e(f"buffer_load_dwordx4 {R('v', b+8+4*x)}, v{vL}, s[{SWS}:{SWS+3}], s57 offen offset:{1024*x}")
        a.e("s_add_u32 s55, s55, 1")
        a.e(f"s_and_b32 s55, s55, {NK-1}")
    for sl in range(D): ld(sl)
    srd(a, SO, 4, 786432)
    for i in range(24): a.e(f"v_mov_b32 v{AC+i}, 0")
    a.e(f"s_mov_b32 s58, {NK//D - 1}")
    def mm(sl):
        b = 20*sl
        for x in range(2):
            for tt in range(3):
                acc = R('v', AC + 4*(tt*2 + x))
                a.e(f"v_mfma_f32_16x16x32_bf16 {acc}, {R('v', b+4*x)}, {R('v', b+8+4*tt)}, {acc}")
    a.lab("K2_LOOP")
    for sl in range(D):
        a.e(f"s_waitcnt vmcnt({5*(D-1)})")
        mm(sl); ld(sl)
    a.e("s_sub_u32 s58, s58, 1")
    a.e("s_cmp_lg_u32 s58, 0")
    a.e("s_cbranch_scc1 K2_LOOP")
    for sl in range(D):
        a.e(f"s_waitcnt vmcnt({5*(D-1-sl)})")
        mm(sl)
    a.e("s_mul_i32 s52, s44, 49152")
    a.e("s_lshl_b32 s53, s46, 14")
    a.e("s_add_u32 s52, s52, s53")
    a.e("s_lshl_b32 s53, s45, 6")
    a.e("s_add_u32 s52, s52, s53")
    a.nop(6)
    for u in range(6):
        a.e(f"ds_write_b128 v{vW}, {R('v', AC+4*u)} offset:{1024*u}")
    a.wait_lg0()
    a.e("s_barrier")
    a.e("s_cmp_ge_u32 s46, 3")
    a.e("s_cbranch_scc1 K2_END")
    for s in range(NW):
        for x in range(2):
            a.e(f"ds_read_b128 {R('v', 8*s+4*x)}, v{vR} offset:{6144*s + 1024*x}")
    a.wait_lg0()
    n = NW
    while n > 1:
        n //= 2
        for s in range(n):
            for i in range(0, 8, 2):
                a.e(f"v_pk_add_f32 {R('v',8*s+i,2)}, {R('v',8*s+i,2)}, {R('v',8*(s+n)+i,2)}")
    for i in range(4):
        a.e(f"v_cvt_pk_bf16_f32 v{8+i}, v{2*i}, v{2*i+1}")
    a.e(f"buffer_store_dwordx4 v[8:11], v{vO}, s[{SO}:{SO+3}], s52 offen")
    a.lab("K2_END")
    a.e("s_endpgm")
    return a

def desc(name, nfv, acc):
    return f""".amdhsa_kernel {name}
  .amdhsa_next_free_vgpr {nfv}
  .amdhsa_next_free_sgpr 102
  .amdhsa_accum_offset {acc}
  .amdhsa_group_segment_fixed_size 0
  .amdhsa_kernarg_size 64
  .amdhsa_user_sgpr_count 2
  .amdhsa_user_sgpr_kernarg_segment_ptr 1
  .amdhsa_system_sgpr_workgroup_id_x 1
.end_amdhsa_kernel"""

def main():
    hdr = open("cdna_kernels/" + NAME + ".s.ref").read().split("\n")
    top = [l for l in hdr if l.startswith(";") and "@launch" not in l and "Override" not in l and "grid=ceil" not in l]
    out = list(top)
    out.append(f"; @launch kernel={K1} grid=(256,1,1) block=(512,1,1) lds=163840")
    out.append(f"; @launch kernel={K2} grid=(256,1,1) block=({K2NW*64},1,1) lds={K2NW*6144}")
    out.append('.amdgcn_target "amdgcn-amd-amdhsa--gfx950"')
    out.append(".text")
    for name, k in ((K1, kernel1()), (K2, kernel2())):
        out += [f".globl {name}", ".p2align 8", f".type {name},@function", f"{name}:"]
        out += k.L
    out += ['.section .rodata,"a"', ".p2align 6", desc(K1, 256, 256), ".p2align 6", desc(K2, 256, 256)]
    path = sys.argv[1] if len(sys.argv) > 1 else "cdna_kernels/" + NAME + ".s"
    open(path, "w").write("\n".join(out) + "\n")

main()
```

```python
import sys, math, struct

NAME = "standalone__gqa_block_cached__near_ridge"
K1 = NAME + "_kernel"
K2 = "oproj_kernel"
import os
STAMP = bool(os.environ.get("STAMP"))
STAMP_OFF = 0
STF = os.environ.get('STF', ' sc1')
STW = os.environ.get('STW', '')
WS_W = 8 * 1024 * 1024

def f32bits(x):
    return struct.unpack("<I", struct.pack("<f", x))[0]

class Asm:
    def __init__(self):
        self.L = []
        self.vm = []
        self.lg = []
        self.ns = 0
        self.vmB = []
        self.cur = None
        self.nl = 0
    def e(self, s):
        self.L.append("    " + s)
    def lab(self, s):
        self.L.append(s + ":")
    def c(self, s):
        self.L.append("    ; " + s)
    def vmem(self, s, tag):
        self.e(s)
        if self.cur in (None, 0): self.vm.append(tag)
        if self.cur in (None, 1): self.vmB.append(tag)
    def only(self, g, fn):
        self.nl += 1
        L = f"K1_G{self.nl}"
        self.e(f"s_cmp_lg_u32 s63, {g}")
        self.e(f"s_cbranch_scc1 {L}")
        self.cur = g
        lg = list(self.lg)
        fn()
        self.e("s_waitcnt lgkmcnt(0)") if self.lg != lg else None
        self.lg = lg
        self.cur = None
        self.lab(L)
    def ds(self, s, tag):
        self.e(s); self.lg.append(tag)
    def wait_vm(self, tag):
        def cnt(l):
            idx = max(i for i, t in enumerate(l) if t == tag)
            return min(len(l) - 1 - idx, 63)
        if self.cur is not None:
            self.e(f"s_waitcnt vmcnt({cnt(self.vm if self.cur == 0 else self.vmB)})"); return
        nA, nB = cnt(self.vm), cnt(self.vmB)
        if nA != nB:
            g = 0 if nA < nB else 1
            self.nl += 1
            L = f"K1_G{self.nl}"
            self.e(f"s_cmp_lg_u32 s63, {g}")
            self.e(f"s_cbranch_scc1 {L}")
            self.e(f"s_waitcnt vmcnt({min(nA,nB)})")
            self.lab(L)
        self.e(f"s_waitcnt vmcnt({max(nA,nB)})")
    def wait_lg(self, tag):
        idx = max(i for i, t in enumerate(self.lg) if t == tag)
        n = min(len(self.lg) - 1 - idx, 15)
        self.e(f"s_waitcnt lgkmcnt({n})")
    def wait_lg0(self):
        self.e("s_waitcnt lgkmcnt(0)")
    def stamp(self):
        if not STAMP: return
        k = self.ns; self.ns += 1
        self.e(f"s_memtime s[{64+2*k}:{65+2*k}]")
        self.e("s_waitcnt lgkmcnt(0)")
    def dump_stamps(self, srd_, wave_s):
        if not STAMP: return
        self.e("s_lshl_b32 s50, s2, 2")
        self.e(f"s_add_u32 s50, s50, s{wave_s}")
        self.e("s_lshl_b32 s50, s50, 7")
        self.e(f"s_add_u32 s50, s50, {16*1024*1024 + STAMP_OFF}")
        self.e("v_mov_b32 v1, 0")
        for k in range(self.ns):
            self.e(f"v_mov_b32 v2, s{64+2*k}")
            self.e(f"buffer_store_dword v2, v1, s[{srd_}:{srd_+3}], s50 offen offset:{4*k}")
            self.e("s_nop 1")
    def nop(self, n):
        while n > 0:
            k = min(n, 16)
            self.e(f"s_nop {k-1}")
            n -= k

def R(kind, b, n=4):
    return f"{kind}[{b}:{b+n-1}]" if n > 1 else f"{kind}{b}"

def srd(a, d, p, nbytes):
    a.e(f"s_mov_b32 s{d}, s{p}")
    a.e(f"s_and_b32 s{d+1}, s{p+1}, 0xffff")
    a.e(f"s_mov_b32 s{d+2}, {nbytes}")
    a.e(f"s_mov_b32 s{d+3}, 0x00020000")

def interleave(a, mf, va, maxper=2, lastfree=2):
    va = list(va)
    n = len(mf)
    slots = max(n - lastfree, 1)
    per = -(-len(va) // slots) if va else 0
    for i, m in enumerate(mf):
        a.e(m)
        if i < slots:
            for _ in range(per):
                if va: a.e(va.pop(0))
    assert not va

def interleave2(a, mf, va, ld, lastfree=2):
    va = list(va); ld = list(ld)
    n = len(mf)
    slots = max(n - lastfree, 1)
    per = -(-len(va) // slots) if va else 0
    nl = len(ld)
    done = 0
    for i, m in enumerate(mf):
        if callable(m): m()
        else: a.e(m)
        if i < slots:
            for _ in range(per):
                if va: a.e(va.pop(0))
        while done < nl and (done + 0.5) * n <= (i + 1) * nl:
            ld[done](); done += 1
    while done < nl:
        ld[done](); done += 1
    assert not va

def kernel1():
    a = Asm()
    SX, SK, SV, SA, SWO, SWS = 20, 24, 28, 32, 36, 40
    selLo, selHi = 48, 49
    NT = " nt" if os.environ.get("NT", "1") == "1" else ""
    RING = 98304
    vL16, vST, vSR, vQW = 255, 254, 253, 252
    vKR, vB, vA = 248, 244, 242
    vAD, vVD, vKD, vXD, vWO, vWS, vRW = 240, 241, 236, 232, 230, 231, 229
    ACC = lambda t, jt: (t*2 + jt)*4
    BF = lambda buf, t: 48 + 24*buf + 4*t
    AF = lambda k, jt: 96 + 8*k + 4*jt
    sN, sG, sAO, sAP, sM = 52, 53, 54, 55, 56
    VB = [int(x) for x in os.environ.get("VB", "4,6,4,6").split(",")]
    a.e("s_cmp_ge_u32 s2, 256")
    a.e("s_cbranch_scc1 K1_END")
    a.e("s_load_dwordx16 s[4:19], s[0:1], 0")
    a.e("v_lshrrev_b32 v32, 6, v0")
    a.e("v_and_b32 v34, 63, v0")
    a.e("v_and_b32 v33, 3, v32")
    a.e("v_readfirstlane_b32 s47, v32")
    a.e("v_readfirstlane_b32 s46, v33")
    a.e("v_and_b32 v35, 15, v34")
    a.e("v_lshrrev_b32 v36, 4, v34")
    a.e("s_lshr_b32 s44, s2, 5")
    a.e("s_and_b32 s50, s2, 7")
    a.e("s_lshl_b32 s50, s50, 2")
    a.e("s_lshr_b32 s51, s2, 3")
    a.e("s_and_b32 s51, s51, 3")
    a.e("s_add_u32 s45, s50, s51")
    a.e(f"v_lshlrev_b32 v{vL16}, 4, v34")
    a.e("v_lshlrev_b32 v38, 4, v35")
    a.e("v_lshlrev_b32 v43, 8, v35")
    a.e("s_cmp_ge_u32 s47, 4")
    a.e("s_cbranch_scc1 K1_LOADER")
    a.e("v_lshrrev_b32 v39, 2, v35")
    a.e("v_and_b32 v40, 1, v36")
    a.e("v_lshl_add_u32 v40, v40, 2, v39")
    a.e("v_lshl_add_u32 v41, v36, 3, v39")
    a.e("v_and_b32 v42, 3, v35")
    a.e("v_lshlrev_b32 v42, 3, v42")
    a.e("v_lshl_add_u32 v41, v41, 8, v42")
    a.e(f"v_add_u32 v41, {RING}, v41")
    a.e("v_lshlrev_b32 v42, 1, v33")
    a.e("v_xor_b32 v42, v42, v40")
    a.e(f"v_lshl_add_u32 v{vA}, v42, 5, v41")
    a.e("v_xor_b32 v42, 1, v42")
    a.e(f"v_lshl_add_u32 v{vA+1}, v42, 5, v41")
    a.e("v_lshrrev_b32 v39, 1, v36")
    a.e("v_lshl_add_u32 v39, v39, 8, v38")
    a.e("v_and_b32 v40, 1, v36")
    a.e("v_lshl_add_u32 v39, v40, 3, v39")
    a.e(f"v_lshl_add_u32 v{vQW}, v33, 10, v39")
    a.e(f"v_add_u32 v{vSR}, {RING + 49152}, v38")
    a.e(f"v_lshl_add_u32 v{vST}, v33, 2, v{vSR}")
    a.e("s_lshl_b32 s50, s46, 12")
    a.e("s_add_u32 s50, s50, 24576")
    for n in range(4):
        a.e(f"v_add_u32 v39, {4*n}, v36")
        a.e("v_xor_b32 v42, v39, v35")
        a.e(f"v_lshl_add_u32 v{vB+n}, v42, 4, v43")
        a.e(f"v_add_u32 v{vKR+n}, s50, v{vB+n}")
    a.e(f"s_mov_b32 s{sG}, 0")
    a.e("s_waitcnt lgkmcnt(0)")
    a.stamp()
    srd(a, SWS, 18, 268435456)
    a.e("s_barrier")
    a.stamp()
    a.lab("K1_GEMM")
    a.e(f"s_mov_b32 s{sN}, 0")
    def rdB(buf, k):
        return [f"ds_read_b128 {R('v', BF(buf,t))}, v{vB+k} offset:{t*4096}" for t in range(6)]
    def rdA(k, off):
        return [f"ds_read_b64_tr_b16 {R('v', AF(k,jt)+2*hh, 2)}, v{vA+jt} offset:{off + hh*1024}" for jt in range(2) for hh in range(2)]
    for x in rdA(0, 0) + rdB(0, 0): a.e(x)
    for i in range(48): a.e(f"v_mov_b32 v{i}, 0")
    a.lab("K1_LOOP")
    for hs in range(2):
        a.e("s_waitcnt lgkmcnt(0)")
        a.e("s_barrier")
        for k in range(2):
            if k == 0:
                nxt = rdA(1, hs*16384 + 8192) + rdB(1, 2*hs + 1)
            else:
                if hs == 1:
                    a.e(f"v_add_u32 v{vB}, 24576, v{vB}")
                    a.e(f"v_xor_b32 v{vA}, 0x38000, v{vA}")
                    a.e(f"v_xor_b32 v{vA+1}, 0x38000, v{vA+1}")
                nxt = rdA(0, 16384*(1 - hs)) + rdB(0, (2*hs + 2) % 4)
                a.e("s_waitcnt lgkmcnt(0)")
            for t in range(6):
                for jt in range(2):
                    a.e(f"v_mfma_f32_16x16x32_bf16 {R('v', ACC(t,jt))}, {R('v', AF(k,jt))}, {R('v', BF(k,t))}, {R('v', ACC(t,jt))}")
                    for _ in range(2):
                        if nxt and t < 3: a.e(nxt.pop(0))
    for k in range(1, 4): a.e(f"v_add_u32 v{vB+k}, 24576, v{vB+k}")
    a.e(f"s_add_u32 s{sN}, s{sN}, 2")
    a.e(f"s_cmp_lt_u32 s{sN}, 8")
    a.e("s_cbranch_scc1 K1_LOOP")
    a.e("s_waitcnt lgkmcnt(0)")
    a.lg = []
    a.stamp()
    a.e("s_barrier")
    for t in range(6):
        for jt in range(2):
            b = ACC(t, jt)
            a.e(f"v_cvt_pk_bf16_f32 v{b}, v{b}, v{b+1}")
            a.e(f"v_cvt_pk_bf16_f32 v{b+1}, v{b+2}, v{b+3}")
            a.ds(f"ds_write_b64 v{vQW}, {R('v', b, 2)} offset:{t*4096 + jt*512}", "qw")
    for n in range(4):
        a.e(f"v_add_u32 v{vB+n}, {RING - 24576}, v{vKR+n}")
    a.wait_lg0()
    SB = lambda kt, t: ((kt % 2)*4 + kt//2)*24 + 4*t
    KF = lambda x, u: 192 + 16*x + 4*u
    QF = lambda u: 224 + 4*u
    def kslot(kt):
        return RING + 16384*(kt % 7) if kt < 3 or kt == 7 else 24576 + 16384*(kt - 3)
    def QB(G, t, u):
        if t % 2 == 0 or (G == 3 and t == 5): return QF(u)
        return SB(6 + u % 2, 4 + u // 2)
    def rdQ(G, t, u):
        a.ds(f"ds_read_b128 {R('v', QB(G,t,u))}, v{vL16} offset:{(t*4+u)*1024}", f"q{t}_{u}")
    for G in range(4):
        a.e("s_barrier")
        if G == 0:
            a.stamp()
            for u in range(4): rdQ(0, 0, u)
        for u in range(4):
            for x in range(2):
                kt = 2*G + x
                if kslot(kt) >= RING: a.ds(f"ds_read_b128 {R('v', KF(x,u))}, v{vB+u} offset:{kslot(kt)-RING}", f"kr{u}")
                else: a.ds(f"ds_read_b128 {R('v', KF(x,u))}, v{vKR+u} offset:{kslot(kt)-24576}", f"kr{u}")
        for t in range(6):
            late = (G == 3 and t == 4)
            if not late and not (G == 3 and t == 5):
                for u in range(4): rdQ(G + (t+1)//6, (t+1) % 6, u)
            for u in range(4):
                a.wait_lg(f"kr{u}" if t == 0 else f"q{t}_{u}")
                for x in range(2):
                    kt = 2*G + x
                    cin = "0" if u == 0 else R('v', SB(kt, t))
                    a.e(f"v_mfma_f32_16x16x32_bf16 {R('v', SB(kt,t))}, {R('v', KF(x,u))}, {R('v', QB(G,t,u))}, {cin}")
                if late: rdQ(3, 5, u)
    a.nop(8)
    a.stamp()
    cs = math.log2(math.e) / math.sqrt(128.0)
    a.e(f"s_mov_b32 s50, 0x{f32bits(cs):08x}")
    a.e(f"s_mov_b32 s51, 0x{f32bits(cs):08x}")
    vM = 224
    for t in range(6):
        vals = [SB(kt, t) + r for kt in range(8) for r in range(4)]
        m = vM + 2*t
        a.e(f"v_max3_f32 v{m}, v{vals[0]}, v{vals[1]}, v{vals[2]}")
        a.e(f"v_max3_f32 v{m+1}, v{vals[3]}, v{vals[4]}, v{vals[5]}")
        for i in range(6, 30, 4):
            a.e(f"v_max3_f32 v{m}, v{m}, v{vals[i]}, v{vals[i+1]}")
            a.e(f"v_max3_f32 v{m+1}, v{m+1}, v{vals[i+2]}, v{vals[i+3]}")
        a.e(f"v_max3_f32 v{m}, v{m}, v{vals[30]}, v{vals[31]}")
        a.e(f"v_max_f32 v{m}, v{m}, v{m+1}")
        a.e(f"v_mov_b32 v{m+1}, v{m}")
    for op in ("v_permlane32_swap_b32", "v_permlane16_swap_b32"):
        a.nop(2)
        for t in range(6): a.e(f"{op} v{vM+2*t}, v{vM+2*t+1}")
        for t in range(6): a.e(f"v_max_f32 v{vM+2*t}, v{vM+2*t}, v{vM+2*t+1}")
        if "32" in op[:13]:
            for t in range(6): a.e(f"v_mov_b32 v{vM+2*t+1}, v{vM+2*t}")
    for t in range(6):
        a.ds(f"ds_write_b32 v{vST}, v{vM+2*t} offset:{t*256}", "mw")
    a.e("s_mul_i32 s59, s46, 24576")
    a.e(f"v_add_u32 v{vQW}, s59, v{vL16}")
    MR = [236, 238, 240, 244, 246, 248]
    a.e(f"v_add_u32 v237, 49152, v{vL16}")
    a.e(f"v_and_b32 v{vB+1}, 0xf0, v{vL16}")
    a.e(f"v_lshlrev_b32 v{vB+1}, 1, v{vB+1}")
    a.e(f"v_add_u32 v239, s59, v{vB+1}")
    a.e(f"v_add_u32 v{vB+3}, 49152, v{vB+1}")
    a.wait_lg0()
    a.stamp()
    a.e("s_barrier")
    a.stamp()
    for t in range(6):
        a.ds(f"ds_read_b128 {R('v', 196+4*t)}, v{vSR} offset:{t*256}", f"g{t}")
    for t in range(6):
        b = 196 + 4*t
        a.wait_lg(f"g{t}")
        a.e(f"v_max3_f32 v{b}, v{b}, v{b+1}, v{b+2}")
        a.e(f"v_max_f32 v{b}, v{b}, v{b+3}")
        a.e(f"v_mul_f32 v{MR[t]}, s50, v{b}")
    for r in range(4):
        a.e(f"v_mov_b32 v{192+r}, 0x3f803f80")
    PB = lambda t, p: 24*p + 4*t
    SUM = lambda t: 196 + 4*t
    def E(p):
        out = []; pend = None
        for t in range(6):
            e0, e1 = SB(2*p, t), SB(2*p+1, t)
            osel = "op_sel_hi:[1,1,0]"
            for x in (e0, e0+2, e1, e1+2):
                out.append(f"v_pk_fma_f32 {R('v',x,2)}, {R('v',x,2)}, s[50:51], {R('v',MR[t],2)} {osel} neg_lo:[0,0,1] neg_hi:[0,0,1]")
            if pend: out.append(pend)
            for x in list(range(e0, e0+4)) + list(range(e1, e1+4)):
                out.append(f"v_exp_f32 v{x}, v{x}")
            out.append(f"v_cvt_pk_bf16_f32 v{e0}, v{e0}, v{e0+1}")
            out.append(f"v_cvt_pk_bf16_f32 v{e0+1}, v{e0+2}, v{e0+3}")
            out.append(f"v_cvt_pk_bf16_f32 v{e0+2}, v{e1}, v{e1+1}")
            out.append(f"v_cvt_pk_bf16_f32 v{e0+3}, v{e1+2}, v{e1+3}")
            out.append(f"ds_write_b128 v{vQW}, {R('v', e0)} offset:{t*4096 + p*1024}")
            cin = "0" if p == 0 else R('v', SUM(t))
            pend = f"v_mfma_f32_16x16x32_bf16 {R('v', SUM(t))}, v[192:195], {R('v', e0)}, {cin}"
        out += ["s_nop 1", pend]
        return out
    AC2 = lambda t, jt: (8*t if t < 3 else 96 + 8*(t-3)) + 4*jt
    BF2 = lambda buf, t: (24 if buf == 0 else 120) + 4*t
    AF2 = lambda buf, jt: 220 + 8*buf + 4*jt
    def rd2(p, kb):
        buf = kb % 2
        off = ((2*p + kb//2) % 4)*16384 + (kb % 2)*8192
        o = [f"ds_read_b64_tr_b16 {R('v', AF2(buf,jt)+2*hh, 2)}, v{vA+jt} offset:{off + hh*1024}" for jt in range(2) for hh in range(2)]
        o += [f"ds_read_b128 {R('v', BF2(buf,t))}, v{vL16 if kb < 2 else 237} offset:{(kb%2)*24576 + t*4096 + p*1024}" for t in range(6)]
        return o
    for x in E(0) + E(1): a.e(x)
    a.stamp()
    for p in range(4):
        ev = E(p + 2) if p < 2 else []
        a.e("s_waitcnt lgkmcnt(0)")
        a.e("s_barrier")
        if p == 2:
            for t in range(6):
                a.e(f"ds_write_b32 v239, v{SUM(t)} offset:{4*t}")
        for x in rd2(p, 0): a.e(x)
        if p == 3:
            for wv in range(4):
                ad = f"v{vB+1 if wv < 2 else vB+3}"
                a.e(f"ds_read_b128 {R('v', 48+8*wv)}, {ad} offset:{(wv%2)*24576}")
                a.e(f"ds_read_b64 {R('v', 52+8*wv, 2)}, {ad} offset:{(wv%2)*24576 + 16}")
        for _ in range(14):
            if ev: a.e(ev.pop(0))
        per = -(-len(ev) // 44)
        for kb in range(4):
            nxt = rd2(p, kb+1) if kb < 3 else []
            a.e("s_waitcnt lgkmcnt(0)")
            for t in range(6):
                for jt in range(2):
                    cin = "0" if (p == 0 and kb == 0) else R('v', AC2(t,jt))
                    a.e(f"v_mfma_f32_16x16x32_bf16 {R('v', AC2(t,jt))}, {R('v', AF2(kb%2,jt))}, {R('v', BF2(kb%2,t))}, {cin}")
                    for _ in range(2):
                        if nxt and t < 3: a.e(nxt.pop(0))
                    for _ in range(per):
                        if ev: a.e(ev.pop(0))
            if p == 3 and kb == 1:
                for t in range(0, 6, 2):
                    a.e(f"v_pk_add_f32 {R('v',48+t,2)}, {R('v',48+t,2)}, {R('v',56+t,2)}")
                    a.e(f"v_pk_add_f32 {R('v',64+t,2)}, {R('v',64+t,2)}, {R('v',72+t,2)}")
                    a.e(f"v_pk_add_f32 {R('v',48+t,2)}, {R('v',48+t,2)}, {R('v',64+t,2)}")
                for t in range(6): a.e(f"v_rcp_f32 v{80+2*t}, v{48+t}")
        assert not ev
        if p == 1: a.nop(8)
    a.stamp()
    a.e("s_lshl_b32 s50, s44, 6")
    a.e("s_add_u32 s50, s50, s45")
    a.e("s_lshl_b32 s50, s50, 2")
    a.e("s_add_u32 s50, s50, s46")
    a.e("s_mul_i32 s50, s50, 3072")
    a.e("s_add_u32 s51, s50, 393216")
    a.nop(4)
    for t in range(6):
        b = AC2(t, 0)
        osel = "op_sel_hi:[1,0]"
        for r in range(0, 8, 2):
            a.e(f"v_pk_mul_f32 {R('v',b+r,2)}, {R('v',b+r,2)}, {R('v',80+2*t,2)} {osel}")
        for z in range(4):
            a.e(f"v_cvt_pk_bf16_f32 v{144+4*t+z}, v{b+2*z}, v{b+2*z+1}")
        a.e(f"buffer_store_dwordx4 {R('v', 144+4*t)}, v{vL16}, s[{SWS}:{SWS+3}], s{50 + t//3} offen offset:{1024*(t%3)}{STF}")
    a.stamp()
    a.dump_stamps(SWS, 46)
    a.e("s_endpgm")
    a.lab("K1_LOADER")
    if os.environ.get("PRIO"): a.e(f"s_setprio {os.environ['PRIO']}")
    a.vm = []; a.vmB = []; a.lg = []
    for n in range(4):
        a.e(f"v_lshl_add_u32 v39, v33, 1, {n}")
        a.e("v_and_b32 v39, 3, v39")
        a.e("v_lshl_add_u32 v39, v39, 2, v36")
        a.e("v_xor_b32 v42, v39, v35")
        a.e("v_lshlrev_b32 v42, 4, v42")
        a.e(f"v_lshl_add_u32 v{vXD+n}, v36, 10, v42")
    a.e("s_mul_i32 s57, s44, 98304")
    a.e("s_mul_i32 s51, s46, 24576")
    a.e("s_add_u32 s57, s57, s51")
    a.e("s_mul_i32 s62, s46, 6144")
    a.e("s_waitcnt lgkmcnt(0)")
    srd(a, SX, 4, 786432)
    NE = int(os.environ.get("NE", "0"))
    a.e(os.environ.get("GRPI", "s_and_b32 s63, s44, 1"))
    srd(a, SV, 8, 33554432)
    a.e("v_and_b32 v39, 1, v33")
    a.e("v_lshl_add_u32 v39, v39, 2, v36")
    a.e("v_lshlrev_b32 v39, 1, v39")
    a.e("v_xor_b32 v39, v39, v35")
    a.e("v_lshlrev_b32 v39, 4, v39")
    a.e(f"v_lshl_add_u32 v{vAD}, v36, 13, v39")
    a.e(f"v_lshl_add_u32 v{vVD}, v36, 8, v39")
    a.e("s_lshl_b32 s61, s44, 5")
    a.e("s_add_u32 s61, s61, s45")
    a.e("s_lshl_b32 s61, s61, 17")
    a.e("s_lshl_b32 s59, s46, 15")
    a.e("s_add_u32 s60, s61, s59")
    a.e("s_lshl_b32 s59, s46, 11")
    a.e("s_add_u32 s61, s61, s59")
    a.e("s_lshl_b32 s59, s46, 12")
    VR = lambda n, x: 64 + 16*n + 4*x
    Vqs = [[(n, x) for n in range(8) for x in range(4)] for _ in range(2)]
    def Vld1(q, cnt):
        for _ in range(cnt):
            if not q: return
            n, x = q.pop(0)
            a.e(f"s_add_u32 s50, s61, {(2*(n%2) + x//2)*32768 + (n//2)*8192}")
            a.vmem(f"buffer_load_dwordx4 {R('v', VR(n,x))}, v{vVD}, s[{SV}:{SV+3}], s50 offen offset:{1024*(x%2)}{NT}", f"v{n}")
    def Vld(cnt):
        if NE == 0:
            Vld1(Vqs[0], cnt); return
        for g_ in range(2):
            if Vqs[g_] and cnt: a.only(g_, lambda: Vld1(Vqs[g_], cnt))
    KE = int(os.environ.get("KE", "5"))
    KET = list(range(7 - KE, 7))
    VB1 = [int(x) for x in os.environ.get("VB1", "2,2,4,4,4,6").split(",")]
    srd(a, SK, 6, 33554432)
    for n in range(4):
        a.e(f"v_add_u32 v39, {4*n}, v36")
        a.e("v_xor_b32 v42, v39, v35")
        a.e("v_lshlrev_b32 v42, 4, v42")
        a.e(f"v_add_u32 v39, {8*n}, v36")
        a.e(f"v_lshl_add_u32 v{vKD+n}, v39, 8, v42")
    a.e(f"v_add_u32 v227, s59, v{vL16}")
    a.e(f"v_add_u32 v228, {RING}, v227")
    a.e(f"v_add_u32 v227, 24576, v227")
    def Kearly():
        for kt in KET:
            a.e(f"s_add_u32 s50, s60, {8192*(kt//2) + 1024*(kt%2)}")
            for n in range(4):
                a.vmem(f"buffer_load_dwordx4 {R('v', VR(kt,n))}, v{vKD+n}, s[{SK}:{SK+3}], s50 offen{NT}", f"k{kt}")
    def Kwr(kt):
        for n in range(4):
            if kslot(kt) >= RING: a.ds(f"ds_write_b128 v228, {R('v', VR(kt,n))} offset:{kslot(kt) - RING + 1024*n}", "kw")
            else: a.ds(f"ds_write_b128 v227, {R('v', VR(kt,n))} offset:{kslot(kt) - 24576 + 1024*n}", "kw")
    if KE: a.only(1, Kearly)
    def Xdma(kb):
        for m in range(6):
            a.e(f"s_add_u32 m0, s62, {kb*24576 + m*1024}")
            a.e(f"s_add_u32 s50, s57, {m*4096 + kb*256}")
            a.vmem(f"buffer_load_dwordx4 v{vXD + m%4}, s[{SX}:{SX+3}], s50 offen lds", f"x{kb}")
    Xdma(0)
    a.e(f"s_lshl_b32 s{sAO}, s46, 16")
    a.e("s_lshl_b32 s50, s45, 8")
    a.e(f"s_add_u32 s{sAO}, s{sAO}, s50")
    a.e(f"s_lshl_b32 s58, s46, 11")
    a.e(f"s_add_u32 s58, s58, {RING}")
    srd(a, SA, 10, 4194304)
    def Adma(n):
        for blk in range(2):
            for hh in range(2):
                a.e(f"s_add_u32 m0, s58, {(n%4)*16384 + blk*8192 + hh*1024}")
                a.e("s_nop 0")
                a.vmem(f"buffer_load_dwordx4 v{vAD}, s[{SA}:{SA+3}], s{sAO} offen lds", f"A{n}")
                a.e(f"s_add_u32 s{sAO}, s{sAO}, {32768 if hh == 0 else 32768*7}")
    Adma(0); Adma(1); Xdma(1); Adma(2)
    srd(a, SWO, 12, 4194304)
    srd(a, SWS, 18, 268435456)
    a.e(f"s_mov_b32 s{selLo}, 0x05040100")
    a.e(f"s_mov_b32 s{selHi}, 0x07060302")
    a.e(f"v_add_u32 v{vRW}, s58, v{vL16}")
    a.e("v_lshlrev_b32 v39, 15, v36")
    a.e(f"v_lshl_add_u32 v{vWO}, v35, 3, v39")
    a.e("v_lshrrev_b32 v39, 3, v35")
    a.e("v_lshlrev_b32 v39, 18, v39")
    a.e("v_lshl_add_u32 v39, v36, 11, v39")
    a.e("v_and_b32 v42, 1, v35")
    a.e("v_lshl_add_u32 v39, v42, 10, v39")
    a.e("v_bfe_u32 v42, v35, 1, 2")
    a.e(f"v_lshl_add_u32 v{vWS}, v42, 6, v39")
    def Kdma(kt):
        a.e(f"s_add_u32 m0, s59, {kslot(kt)}")
        a.e(f"s_add_u32 s50, s60, {8192*(kt//2) + 1024*(kt%2)}")
        for n in range(4):
            a.vmem(f"buffer_load_dwordx4 v{vKD+n}, s[{SK}:{SK+3}], s50 offen{NT} lds", f"k{kt}")
            if n < 3:
                a.e("s_add_u32 m0, m0, 1024")
                a.e("s_nop 0")
    Kdma0 = Kdma
    def Kdma(kt):
        if kt not in KET: Kdma0(kt); return
        a.only(0, lambda: Kdma0(kt))
        a.only(1, lambda: Kwr(kt))
    def Vld(cnt, cnt1=0):
        if not KE: Vld1(Vqs[0], cnt); return
        if Vqs[0] and cnt: a.only(0, lambda: Vld1(Vqs[0], cnt))
        if Vqs[1] and cnt1: a.only(1, lambda: Vld1(Vqs[1], cnt1))
    def Vwr(n):
        a.wait_vm(f"v{n}")
        for x in range(4):
            a.ds(f"ds_write_b128 v{vRW}, {R('v', VR(n,x))} offset:{(n%4)*16384 + (x//2)*8192 + (x%2)*1024}", "vw")
    def wo_loads():
        a.e("s_lshl_b32 s50, s45, 17")
        a.e("s_add_u32 s50, s50, s59")
        a.e("s_lshl_b32 s51, s44, 7")
        a.e("s_add_u32 s50, s50, s51")
        a.e("s_add_u32 s51, s50, 16384")
        for i in range(8):
            so = 50 if i < 4 else 51
            a.vmem(f"buffer_load_dwordx2 {R('v', 192+2*i, 2)}, v{vWO}, s[{SWO}:{SWO+3}], s{so} offen offset:{(i%4)*1024}", "wo")
    def wo_job():
        a.e("s_lshl_b32 s50, s44, 6")
        a.e("s_add_u32 s50, s50, s45")
        a.e("s_lshl_b32 s50, s50, 13")
        a.e("s_lshl_b32 s51, s46, 8")
        a.e("s_add_u32 s50, s50, s51")
        a.e(f"s_add_u32 s50, s50, {WS_W}")
        a.wait_vm("wo")
        for e in range(4):
            for z in range(4):
                sel = selLo if e % 2 == 0 else selHi
                a.e(f"v_perm_b32 v{208+4*e+z}, v{192+2*(2*z+1)+e//2}, v{192+2*(2*z)+e//2}, s{sel}")
        for e in range(4):
            a.vmem(f"buffer_store_dwordx4 {R('v', 208+4*e)}, v{vWS}, s[{SWS}:{SWS+3}], s50 offen offset:{16*e}{STW}", "wst")
    a.wait_vm("A0")
    a.e("s_barrier")
    for n in range(8):
        a.wait_vm(f"A{min(n+1, 7)}")
        a.e("s_barrier")
        if n in (1, 3): Xdma(2 + n//2)
        if n < 5: Adma(n + 3)
        if n == 4: wo_loads()
        if n < 5: pass
        else: Kdma(n - 5)
    a.e("s_barrier")
    Kdma(3); Kdma(4)
    Vld(0, VB1[0])
    a.wait_vm("k0"); a.wait_vm("k1"); a.e("s_barrier")
    Kdma(5); Kdma(6)
    wo_job()
    Vld(0, VB1[1])
    a.wait_vm("k2"); a.wait_vm("k3"); a.e("s_barrier")
    Kdma(7)
    Vld(VB[0], VB1[2])
    a.wait_vm("k4"); a.wait_vm("k5"); a.e("s_barrier")
    Vld(VB[1], VB1[3])
    a.wait_vm("k6"); a.wait_vm("k7"); a.e("s_barrier")
    Vld(VB[2], VB1[4])
    a.e("s_barrier")
    Vld(VB[3], VB1[5])
    for n in range(2): Vwr(n)
    a.wait_lg0()
    a.e("s_barrier")
    for n in range(3):
        Vwr(2*n + 2); Vwr(2*n + 3)
        if n == 0: Vld(6, 6)
        if n == 1: Vld(99, 99)
        a.wait_lg0()
        a.e("s_barrier")
    a.lab("K1_END")
    a.e("s_endpgm")
    return a

K2NW = 4
TM = int(os.environ.get("TM", "4")); TN = int(os.environ.get("TN", "1"))
K2G = (48 // TM) * (16 // TN)
K2LDS = 4 * TM * TN * 2048
def kernel2():
    D = 4
    NK = 32
    a = Asm()
    SWS, SO = 20, 24
    SL = 4*(TM + 2*TN)
    NU = TM*TN*2
    AC = SL*D
    vL, vO, vW, vR = AC+4*NU, AC+4*NU+1, AC+4*NU+2, AC+4*NU+3
    per = K2G // 8
    ncol = 8 // TN
    a.e(f"s_cmp_ge_u32 s2, {K2G}")
    a.e("s_cbranch_scc1 K2_END")
    a.e("s_load_dwordx2 s[4:5], s[0:1], 40")
    a.e("s_load_dwordx2 s[6:7], s[0:1], 56")
    a.e("v_lshrrev_b32 v1, 6, v0")
    a.e("v_and_b32 v2, 63, v0")
    a.e("v_readfirstlane_b32 s46, v1")
    a.e(f"v_lshlrev_b32 v{vL}, 4, v2")
    a.e("s_and_b32 s50, s2, 7")
    a.e("s_lshr_b32 s51, s2, 3")
    a.e("s_lshr_b32 s44, s50, 1")
    a.e("s_mul_i32 s44, s44, 12")
    a.e(f"s_lshr_b32 s52, s51, {ncol.bit_length()-1}")
    a.e(f"s_mul_i32 s52, s52, {TM}")
    a.e("s_add_u32 s44, s44, s52")
    a.e("s_and_b32 s45, s50, 1")
    a.e("s_lshl_b32 s45, s45, 3")
    a.e(f"s_and_b32 s52, s51, {ncol-1}")
    a.e(f"s_mul_i32 s52, s52, {TN}")
    a.e("s_add_u32 s45, s45, s52")
    a.e("s_mul_i32 s52, s46, 98304")
    for x in range(TM):
        a.e(f"s_add_u32 s53, s44, {x}")
        a.e("s_mul_hi_u32 s54, s53, 0x55555556")
        a.e("s_mul_i32 s55, s54, 3")
        a.e("s_sub_u32 s55, s53, s55")
        a.e("s_mul_i32 s54, s54, 393216")
        a.e("s_lshl_b32 s55, s55, 10")
        a.e("s_add_u32 s54, s54, s55")
        a.e(f"s_add_u32 s{60+x}, s54, s52")
    a.e("s_lshl_b32 s54, s45, 18")
    a.e("s_lshl_b32 s55, s46, 16")
    a.e("s_add_u32 s54, s54, s55")
    for y in range(TN):
        a.e(f"s_add_u32 s{64+y}, s54, {WS_W + 262144*y}")
    a.e("v_and_b32 v3, 15, v2")
    a.e("v_lshrrev_b32 v4, 4, v2")
    a.e("v_lshlrev_b32 v4, 4, v4")
    a.e(f"v_lshl_add_u32 v{vO}, v3, 10, v4")
    a.e(f"s_mul_i32 s52, s46, {NU*1024}")
    a.e(f"v_add_u32 v{vW}, s52, v{vL}")
    a.e(f"s_mul_i32 s52, s46, {TN*2048}")
    a.e(f"v_add_u32 v{vR}, s52, v{vL}")
    a.e("s_waitcnt lgkmcnt(0)")
    srd(a, SWS, 6, 268435456)
    def ld(sl):
        b = SL*sl
        for y in range(TN):
            for x in range(2):
                a.e(f"buffer_load_dwordx4 {R('v', b+8*y+4*x)}, v{vL}, s[{SWS}:{SWS+3}], s{64+y} offen offset:{1024*x}")
            a.e(f"s_add_u32 s{64+y}, s{64+y}, 2048")
        for x in range(TM):
            a.e(f"buffer_load_dwordx4 {R('v', b+8*TN+4*x)}, v{vL}, s[{SWS}:{SWS+3}], s{60+x} offen")
            a.e(f"s_add_u32 s{60+x}, s{60+x}, 3072")
    NL = TM + 2*TN
    for sl in range(D): ld(sl)
    srd(a, SO, 4, 786432)
    for i in range(4*NU): a.e(f"v_mov_b32 v{AC+i}, 0")
    a.e(f"s_mov_b32 s58, {NK//D - 1}")
    def mm(sl):
        b = SL*sl
        for tt in range(TM):
            for x in range(2*TN):
                acc = R('v', AC + 4*(tt*2*TN + x))
                a.e(f"v_mfma_f32_16x16x32_bf16 {acc}, {R('v', b+4*x)}, {R('v', b+8*TN+4*tt)}, {acc}")
    a.lab("K2_LOOP")
    for sl in range(D):
        a.e(f"s_waitcnt vmcnt({NL*(D-1)})")
        mm(sl); ld(sl)
    a.e("s_sub_u32 s58, s58, 1")
    a.e("s_cmp_lg_u32 s58, 0")
    a.e("s_cbranch_scc1 K2_LOOP")
    for sl in range(D):
        a.e(f"s_waitcnt vmcnt({NL*(D-1-sl)})")
        mm(sl)
    a.e("s_add_u32 s52, s44, s46")
    a.e("s_lshl_b32 s52, s52, 14")
    a.e("s_lshl_b32 s53, s45, 6")
    a.e("s_add_u32 s52, s52, s53")
    a.nop(8)
    for u in range(NU):
        a.e(f"ds_write_b128 v{vW}, {R('v', AC+4*u)} offset:{1024*u}")
    a.wait_lg0()
    a.e("s_barrier")
    a.e(f"s_cmp_ge_u32 s46, {TM}")
    a.e("s_cbranch_scc1 K2_END")
    W8 = 8*TN
    for s_ in range(4):
        for x in range(2*TN):
            a.e(f"ds_read_b128 {R('v', W8*s_+4*x)}, v{vR} offset:{NU*1024*s_ + 1024*x}")
    a.wait_lg0()
    for n in (2, 1):
        for s_ in range(n):
            for i in range(0, W8, 2):
                a.e(f"v_pk_add_f32 {R('v',W8*s_+i,2)}, {R('v',W8*s_+i,2)}, {R('v',W8*(s_+n)+i,2)}")
    for i in range(4*TN):
        a.e(f"v_cvt_pk_bf16_f32 v{W8+i}, v{2*i}, v{2*i+1}")
    for y in range(TN):
        a.e(f"buffer_store_dwordx4 {R('v', W8+4*y)}, v{vO}, s[{SO}:{SO+3}], s52 offen offset:{64*y}")
    a.lab("K2_END")
    a.e("s_endpgm")
    return a

def desc(name, nfv, acc):
    return f""".amdhsa_kernel {name}
  .amdhsa_next_free_vgpr {nfv}
  .amdhsa_next_free_sgpr 102
  .amdhsa_accum_offset {acc}
  .amdhsa_group_segment_fixed_size 0
  .amdhsa_kernarg_size 64
  .amdhsa_user_sgpr_count 2
  .amdhsa_user_sgpr_kernarg_segment_ptr 1
  .amdhsa_system_sgpr_workgroup_id_x 1
.end_amdhsa_kernel"""

def main():
    hdr = open("cdna_kernels/" + NAME + ".s.ref").read().split("\n")
    top = [l for l in hdr if l.startswith(";") and "@launch" not in l and "Override" not in l and "grid=ceil" not in l]
    out = list(top)
    out.append(f"; @launch kernel={K1} grid=(256,1,1) block=(512,1,1) lds=163840")
    out.append(f"; @launch kernel={K2} grid=({K2G},1,1) block=(256,1,1) lds={K2LDS}")
    out.append('.amdgcn_target "amdgcn-amd-amdhsa--gfx950"')
    out.append(".text")
    for name, k in ((K1, kernel1()), (K2, kernel2())):
        out += [f".globl {name}", ".p2align 8", f".type {name},@function", f"{name}:"]
        out += k.L
    out += ['.section .rodata,"a"', ".p2align 6", desc(K1, 256, 256), ".p2align 6", desc(K2, 256, 256)]
    path = sys.argv[1] if len(sys.argv) > 1 else "cdna_kernels/" + NAME + ".s"
    open(path, "w").write("\n".join(out) + "\n")

main()
```

```python
import sys, math, struct

NAME = "standalone__gqa_block_cached__near_ridge"
K1 = NAME + "_kernel"
K2 = "oproj_kernel"
import os
STAMP = bool(os.environ.get("STAMP"))
STAMP_OFF = 0
STF = os.environ.get('STF', ' sc1')
STW = os.environ.get('STW', '')
WS_W = 8 * 1024 * 1024

def f32bits(x):
    return struct.unpack("<I", struct.pack("<f", x))[0]

class Asm:
    def __init__(self):
        self.L = []
        self.vm = []
        self.lg = []
        self.ns = 0
        self.vmB = []
        self.cur = None
        self.nl = 0
    def e(self, s):
        self.L.append("    " + s)
    def lab(self, s):
        self.L.append(s + ":")
    def c(self, s):
        self.L.append("    ; " + s)
    def vmem(self, s, tag):
        self.e(s)
        if self.cur in (None, 0): self.vm.append(tag)
        if self.cur in (None, 1): self.vmB.append(tag)
    def only(self, g, fn):
        self.nl += 1
        L = f"K1_G{self.nl}"
        self.e(f"s_cmp_lg_u32 s63, {g}")
        self.e(f"s_cbranch_scc1 {L}")
        self.cur = g
        lg = list(self.lg)
        fn()
        self.e("s_waitcnt lgkmcnt(0)") if self.lg != lg else None
        self.lg = lg
        self.cur = None
        self.lab(L)
    def ds(self, s, tag):
        self.e(s); self.lg.append(tag)
    def wait_vm(self, tag):
        def cnt(l):
            idx = max(i for i, t in enumerate(l) if t == tag)
            return min(len(l) - 1 - idx, 63)
        if self.cur is not None:
            self.e(f"s_waitcnt vmcnt({cnt(self.vm if self.cur == 0 else self.vmB)})"); return
        nA, nB = cnt(self.vm), cnt(self.vmB)
        if nA != nB:
            g = 0 if nA < nB else 1
            self.nl += 1
            L = f"K1_G{self.nl}"
            self.e(f"s_cmp_lg_u32 s63, {g}")
            self.e(f"s_cbranch_scc1 {L}")
            self.e(f"s_waitcnt vmcnt({min(nA,nB)})")
            self.lab(L)
        self.e(f"s_waitcnt vmcnt({max(nA,nB)})")
    def wait_lg(self, tag):
        idx = max(i for i, t in enumerate(self.lg) if t == tag)
        n = min(len(self.lg) - 1 - idx, 15)
        self.e(f"s_waitcnt lgkmcnt({n})")
    def wait_lg0(self):
        self.e("s_waitcnt lgkmcnt(0)")
    def stamp(self):
        if not STAMP: return
        k = self.ns; self.ns += 1
        self.e(f"s_memtime s[{64+2*k}:{65+2*k}]")
        self.e("s_waitcnt lgkmcnt(0)")
    def dump_stamps(self, srd_, wave_s):
        if not STAMP: return
        self.e("s_lshl_b32 s50, s2, 2")
        self.e(f"s_add_u32 s50, s50, s{wave_s}")
        self.e("s_lshl_b32 s50, s50, 7")
        self.e(f"s_add_u32 s50, s50, {16*1024*1024 + STAMP_OFF}")
        self.e("v_mov_b32 v1, 0")
        for k in range(self.ns):
            self.e(f"v_mov_b32 v2, s{64+2*k}")
            self.e(f"buffer_store_dword v2, v1, s[{srd_}:{srd_+3}], s50 offen offset:{4*k}")
            self.e("s_nop 1")
    def nop(self, n):
        while n > 0:
            k = min(n, 16)
            self.e(f"s_nop {k-1}")
            n -= k

def R(kind, b, n=4):
    return f"{kind}[{b}:{b+n-1}]" if n > 1 else f"{kind}{b}"

def srd(a, d, p, nbytes):
    a.e(f"s_mov_b32 s{d}, s{p}")
    a.e(f"s_and_b32 s{d+1}, s{p+1}, 0xffff")
    a.e(f"s_mov_b32 s{d+2}, {nbytes}")
    a.e(f"s_mov_b32 s{d+3}, 0x00020000")

def interleave(a, mf, va, maxper=2, lastfree=2):
    va = list(va)
    n = len(mf)
    slots = max(n - lastfree, 1)
    per = -(-len(va) // slots) if va else 0
    for i, m in enumerate(mf):
        a.e(m)
        if i < slots:
            for _ in range(per):
                if va: a.e(va.pop(0))
    assert not va

def interleave2(a, mf, va, ld, lastfree=2):
    va = list(va); ld = list(ld)
    n = len(mf)
    slots = max(n - lastfree, 1)
    per = -(-len(va) // slots) if va else 0
    nl = len(ld)
    done = 0
    for i, m in enumerate(mf):
        if callable(m): m()
        else: a.e(m)
        if i < slots:
            for _ in range(per):
                if va: a.e(va.pop(0))
        while done < nl and (done + 0.5) * n <= (i + 1) * nl:
            ld[done](); done += 1
    while done < nl:
        ld[done](); done += 1
    assert not va

def kernel1():
    a = Asm()
    SX, SK, SV, SA, SWO, SWS = 20, 24, 28, 32, 36, 40
    selLo, selHi = 48, 49
    NT = " nt" if os.environ.get("NT", "1") == "1" else ""
    RING = 98304
    vL16, vST, vSR, vQW = 255, 254, 253, 252
    vKR, vB, vA = 248, 244, 242
    vAD, vVD, vKD, vXD, vWO, vWS, vRW = 240, 241, 236, 232, 230, 231, 229
    ACC = lambda t, jt: (t*2 + jt)*4
    BF = lambda buf, t: 48 + 24*buf + 4*t
    AF = lambda k, jt: 96 + 8*k + 4*jt
    sN, sG, sAO, sAP, sM = 52, 53, 54, 55, 56
    VB = [int(x) for x in os.environ.get("VB", "4,6,4,6").split(",")]
    a.e("s_cmp_ge_u32 s2, 256")
    a.e("s_cbranch_scc1 K1_END")
    a.e("s_load_dwordx16 s[4:19], s[0:1], 0")
    a.e("v_lshrrev_b32 v32, 6, v0")
    a.e("v_and_b32 v34, 63, v0")
    a.e("v_and_b32 v33, 3, v32")
    a.e("v_readfirstlane_b32 s47, v32")
    a.e("v_readfirstlane_b32 s46, v33")
    a.e("v_and_b32 v35, 15, v34")
    a.e("v_lshrrev_b32 v36, 4, v34")
    a.e("s_lshr_b32 s44, s2, 5")
    a.e("s_and_b32 s50, s2, 7")
    a.e("s_lshl_b32 s50, s50, 2")
    a.e("s_lshr_b32 s51, s2, 3")
    a.e("s_and_b32 s51, s51, 3")
    a.e("s_add_u32 s45, s50, s51")
    a.e(f"v_lshlrev_b32 v{vL16}, 4, v34")
    a.e("v_lshlrev_b32 v38, 4, v35")
    a.e("v_lshlrev_b32 v43, 8, v35")
    a.e("s_cmp_ge_u32 s47, 4")
    a.e("s_cbranch_scc1 K1_LOADER")
    a.e("v_lshrrev_b32 v39, 2, v35")
    a.e("v_and_b32 v40, 1, v36")
    a.e("v_lshl_add_u32 v40, v40, 2, v39")
    a.e("v_lshl_add_u32 v41, v36, 3, v39")
    a.e("v_and_b32 v42, 3, v35")
    a.e("v_lshlrev_b32 v42, 3, v42")
    a.e("v_lshl_add_u32 v41, v41, 8, v42")
    a.e(f"v_add_u32 v41, {RING}, v41")
    a.e("v_lshlrev_b32 v42, 1, v33")
    a.e("v_xor_b32 v42, v42, v40")
    a.e(f"v_lshl_add_u32 v{vA}, v42, 5, v41")
    a.e("v_xor_b32 v42, 1, v42")
    a.e(f"v_lshl_add_u32 v{vA+1}, v42, 5, v41")
    a.e("v_lshrrev_b32 v39, 1, v36")
    a.e("v_lshl_add_u32 v39, v39, 8, v38")
    a.e("v_and_b32 v40, 1, v36")
    a.e("v_lshl_add_u32 v39, v40, 3, v39")
    a.e(f"v_lshl_add_u32 v{vQW}, v33, 10, v39")
    a.e(f"v_add_u32 v{vSR}, {RING + 49152}, v38")
    a.e(f"v_lshl_add_u32 v{vST}, v33, 2, v{vSR}")
    a.e("s_lshl_b32 s50, s46, 12")
    a.e("s_add_u32 s50, s50, 24576")
    for n in range(4):
        a.e(f"v_add_u32 v39, {4*n}, v36")
        a.e("v_xor_b32 v42, v39, v35")
        a.e(f"v_lshl_add_u32 v{vB+n}, v42, 4, v43")
        a.e(f"v_add_u32 v{vKR+n}, s50, v{vB+n}")
    a.e(f"s_mov_b32 s{sG}, 0")
    a.e("s_waitcnt lgkmcnt(0)")
    a.stamp()
    srd(a, SWS, 18, 268435456)
    a.e("s_barrier")
    a.stamp()
    a.lab("K1_GEMM")
    a.e(f"s_mov_b32 s{sN}, 0")
    def rdB(buf, k):
        return [f"ds_read_b128 {R('v', BF(buf,t))}, v{vB+k} offset:{t*4096}" for t in range(6)]
    def rdA(k, off):
        return [f"ds_read_b64_tr_b16 {R('v', AF(k,jt)+2*hh, 2)}, v{vA+jt} offset:{off + hh*1024}" for jt in range(2) for hh in range(2)]
    for x in rdA(0, 0) + rdB(0, 0): a.e(x)
    for i in range(48): a.e(f"v_mov_b32 v{i}, 0")
    a.lab("K1_LOOP")
    for hs in range(2):
        a.e("s_waitcnt lgkmcnt(0)")
        a.e("s_barrier")
        for k in range(2):
            if k == 0:
                nxt = rdA(1, hs*16384 + 8192) + rdB(1, 2*hs + 1)
            else:
                if hs == 1:
                    a.e(f"v_add_u32 v{vB}, 24576, v{vB}")
                    a.e(f"v_xor_b32 v{vA}, 0x38000, v{vA}")
                    a.e(f"v_xor_b32 v{vA+1}, 0x38000, v{vA+1}")
                nxt = rdA(0, 16384*(1 - hs)) + rdB(0, (2*hs + 2) % 4)
                a.e("s_waitcnt lgkmcnt(0)")
            for t in range(6):
                for jt in range(2):
                    a.e(f"v_mfma_f32_16x16x32_bf16 {R('v', ACC(t,jt))}, {R('v', AF(k,jt))}, {R('v', BF(k,t))}, {R('v', ACC(t,jt))}")
                    for _ in range(2):
                        if nxt and t < 3: a.e(nxt.pop(0))
    for k in range(1, 4): a.e(f"v_add_u32 v{vB+k}, 24576, v{vB+k}")
    a.e(f"s_add_u32 s{sN}, s{sN}, 2")
    a.e(f"s_cmp_lt_u32 s{sN}, 8")
    a.e("s_cbranch_scc1 K1_LOOP")
    a.e("s_waitcnt lgkmcnt(0)")
    a.lg = []
    a.stamp()
    a.e("s_barrier")
    for t in range(6):
        for jt in range(2):
            b = ACC(t, jt)
            a.e(f"v_cvt_pk_bf16_f32 v{b}, v{b}, v{b+1}")
            a.e(f"v_cvt_pk_bf16_f32 v{b+1}, v{b+2}, v{b+3}")
            a.ds(f"ds_write_b64 v{vQW}, {R('v', b, 2)} offset:{t*4096 + jt*512}", "qw")
    for n in range(4):
        a.e(f"v_add_u32 v{vB+n}, {RING - 24576}, v{vKR+n}")
    a.wait_lg0()
    SB = lambda kt, t: ((kt % 2)*4 + kt//2)*24 + 4*t
    KF = lambda x, u: 192 + 16*x + 4*u
    QF = lambda u: 224 + 4*u
    def kslot(kt):
        return RING + 16384*(kt % 7) if kt < 3 or kt == 7 else 24576 + 16384*(kt - 3)
    def QB(G, t, u):
        if t % 2 == 0 or (G == 3 and t == 5): return QF(u)
        return SB(6 + u % 2, 4 + u // 2)
    def rdQ(G, t, u):
        a.ds(f"ds_read_b128 {R('v', QB(G,t,u))}, v{vL16} offset:{(t*4+u)*1024}", f"q{t}_{u}")
    for G in range(4):
        a.e("s_barrier")
        if G == 0:
            a.stamp()
            for u in range(4): rdQ(0, 0, u)
        for u in range(4):
            for x in range(2):
                kt = 2*G + x
                if kslot(kt) >= RING: a.ds(f"ds_read_b128 {R('v', KF(x,u))}, v{vB+u} offset:{kslot(kt)-RING}", f"kr{u}")
                else: a.ds(f"ds_read_b128 {R('v', KF(x,u))}, v{vKR+u} offset:{kslot(kt)-24576}", f"kr{u}")
        for t in range(6):
            late = (G == 3 and t == 4)
            if not late and not (G == 3 and t == 5):
                for u in range(4): rdQ(G + (t+1)//6, (t+1) % 6, u)
            for u in range(4):
                a.wait_lg(f"kr{u}" if t == 0 else f"q{t}_{u}")
                for x in range(2):
                    kt = 2*G + x
                    cin = "0" if u == 0 else R('v', SB(kt, t))
                    a.e(f"v_mfma_f32_16x16x32_bf16 {R('v', SB(kt,t))}, {R('v', KF(x,u))}, {R('v', QB(G,t,u))}, {cin}")
                if late: rdQ(3, 5, u)
    a.nop(8)
    a.stamp()
    cs = math.log2(math.e) / math.sqrt(128.0)
    a.e(f"s_mov_b32 s50, 0x{f32bits(cs):08x}")
    a.e(f"s_mov_b32 s51, 0x{f32bits(cs):08x}")
    vM = 224
    for t in range(6):
        vals = [SB(kt, t) + r for kt in range(8) for r in range(4)]
        m = vM + 2*t
        a.e(f"v_max3_f32 v{m}, v{vals[0]}, v{vals[1]}, v{vals[2]}")
        a.e(f"v_max3_f32 v{m+1}, v{vals[3]}, v{vals[4]}, v{vals[5]}")
        for i in range(6, 30, 4):
            a.e(f"v_max3_f32 v{m}, v{m}, v{vals[i]}, v{vals[i+1]}")
            a.e(f"v_max3_f32 v{m+1}, v{m+1}, v{vals[i+2]}, v{vals[i+3]}")
        a.e(f"v_max3_f32 v{m}, v{m}, v{vals[30]}, v{vals[31]}")
        a.e(f"v_max_f32 v{m}, v{m}, v{m+1}")
        a.e(f"v_mov_b32 v{m+1}, v{m}")
    for op in ("v_permlane32_swap_b32", "v_permlane16_swap_b32"):
        a.nop(2)
        for t in range(6): a.e(f"{op} v{vM+2*t}, v{vM+2*t+1}")
        for t in range(6): a.e(f"v_max_f32 v{vM+2*t}, v{vM+2*t}, v{vM+2*t+1}")
        if "32" in op[:13]:
            for t in range(6): a.e(f"v_mov_b32 v{vM+2*t+1}, v{vM+2*t}")
    for t in range(6):
        a.ds(f"ds_write_b32 v{vST}, v{vM+2*t} offset:{t*256}", "mw")
    a.e("s_mul_i32 s59, s46, 24576")
    a.e(f"v_add_u32 v{vQW}, s59, v{vL16}")
    MR = [236, 238, 240, 244, 246, 248]
    a.e(f"v_add_u32 v237, 49152, v{vL16}")
    a.e(f"v_and_b32 v{vB+1}, 0xf0, v{vL16}")
    a.e(f"v_lshlrev_b32 v{vB+1}, 1, v{vB+1}")
    a.e(f"v_add_u32 v239, s59, v{vB+1}")
    a.e(f"v_add_u32 v{vB+3}, 49152, v{vB+1}")
    a.wait_lg0()
    a.stamp()
    a.e("s_barrier")
    a.stamp()
    for t in range(6):
        a.ds(f"ds_read_b128 {R('v', 196+4*t)}, v{vSR} offset:{t*256}", f"g{t}")
    for t in range(6):
        b = 196 + 4*t
        a.wait_lg(f"g{t}")
        a.e(f"v_max3_f32 v{b}, v{b}, v{b+1}, v{b+2}")
        a.e(f"v_max_f32 v{b}, v{b}, v{b+3}")
        a.e(f"v_mul_f32 v{MR[t]}, s50, v{b}")
    for r in range(4):
        a.e(f"v_mov_b32 v{192+r}, 0x3f803f80")
    PB = lambda t, p: 24*p + 4*t
    SUM = lambda t: 196 + 4*t
    def E(p):
        out = []; pend = None
        for t in range(6):
            e0, e1 = SB(2*p, t), SB(2*p+1, t)
            osel = "op_sel_hi:[1,1,0]"
            for x in (e0, e0+2, e1, e1+2):
                out.append(f"v_pk_fma_f32 {R('v',x,2)}, {R('v',x,2)}, s[50:51], {R('v',MR[t],2)} {osel} neg_lo:[0,0,1] neg_hi:[0,0,1]")
            if pend: out.append(pend)
            for x in list(range(e0, e0+4)) + list(range(e1, e1+4)):
                out.append(f"v_exp_f32 v{x}, v{x}")
            out.append(f"v_cvt_pk_bf16_f32 v{e0}, v{e0}, v{e0+1}")
            out.append(f"v_cvt_pk_bf16_f32 v{e0+1}, v{e0+2}, v{e0+3}")
            out.append(f"v_cvt_pk_bf16_f32 v{e0+2}, v{e1}, v{e1+1}")
            out.append(f"v_cvt_pk_bf16_f32 v{e0+3}, v{e1+2}, v{e1+3}")
            out.append(f"ds_write_b128 v{vQW}, {R('v', e0)} offset:{t*4096 + p*1024}")
            cin = "0" if p == 0 else R('v', SUM(t))
            pend = f"v_mfma_f32_16x16x32_bf16 {R('v', SUM(t))}, v[192:195], {R('v', e0)}, {cin}"
        out += ["s_nop 1", pend]
        return out
    AC2 = lambda t, jt: (8*t if t < 3 else 96 + 8*(t-3)) + 4*jt
    BF2 = lambda buf, t: (24 if buf == 0 else 120) + 4*t
    AF2 = lambda buf, jt: 220 + 8*buf + 4*jt
    def rd2(p, kb):
        buf = kb % 2
        off = ((2*p + kb//2) % 4)*16384 + (kb % 2)*8192
        o = [f"ds_read_b64_tr_b16 {R('v', AF2(buf,jt)+2*hh, 2)}, v{vA+jt} offset:{off + hh*1024}" for jt in range(2) for hh in range(2)]
        o += [f"ds_read_b128 {R('v', BF2(buf,t))}, v{vL16 if kb < 2 else 237} offset:{(kb%2)*24576 + t*4096 + p*1024}" for t in range(6)]
        return o
    for x in E(0) + E(1): a.e(x)
    a.stamp()
    for p in range(4):
        ev = E(p + 2) if p < 2 else []
        a.e("s_waitcnt lgkmcnt(0)")
        a.e("s_barrier")
        if p == 2:
            for t in range(6):
                a.e(f"ds_write_b32 v239, v{SUM(t)} offset:{4*t}")
        for x in rd2(p, 0): a.e(x)
        if p == 3:
            for wv in range(4):
                ad = f"v{vB+1 if wv < 2 else vB+3}"
                a.e(f"ds_read_b128 {R('v', 48+8*wv)}, {ad} offset:{(wv%2)*24576}")
                a.e(f"ds_read_b64 {R('v', 52+8*wv, 2)}, {ad} offset:{(wv%2)*24576 + 16}")
        for _ in range(14):
            if ev: a.e(ev.pop(0))
        per = -(-len(ev) // 44)
        for kb in range(4):
            nxt = rd2(p, kb+1) if kb < 3 else []
            a.e("s_waitcnt lgkmcnt(0)")
            for t in range(6):
                for jt in range(2):
                    cin = "0" if (p == 0 and kb == 0) else R('v', AC2(t,jt))
                    a.e(f"v_mfma_f32_16x16x32_bf16 {R('v', AC2(t,jt))}, {R('v', AF2(kb%2,jt))}, {R('v', BF2(kb%2,t))}, {cin}")
                    for _ in range(2):
                        if nxt and t < 3: a.e(nxt.pop(0))
                    for _ in range(per):
                        if ev: a.e(ev.pop(0))
            if p == 3 and kb == 1:
                for t in range(0, 6, 2):
                    a.e(f"v_pk_add_f32 {R('v',48+t,2)}, {R('v',48+t,2)}, {R('v',56+t,2)}")
                    a.e(f"v_pk_add_f32 {R('v',64+t,2)}, {R('v',64+t,2)}, {R('v',72+t,2)}")
                    a.e(f"v_pk_add_f32 {R('v',48+t,2)}, {R('v',48+t,2)}, {R('v',64+t,2)}")
                for t in range(6): a.e(f"v_rcp_f32 v{80+2*t}, v{48+t}")
        assert not ev
        if p == 1: a.nop(8)
    a.stamp()
    a.e("s_lshl_b32 s50, s44, 6")
    a.e("s_add_u32 s50, s50, s45")
    a.e("s_lshl_b32 s50, s50, 2")
    a.e("s_add_u32 s50, s50, s46")
    a.e("s_mul_i32 s50, s50, 3072")
    a.e("s_add_u32 s51, s50, 393216")
    a.nop(4)
    for t in range(6):
        b = AC2(t, 0)
        osel = "op_sel_hi:[1,0]"
        for r in range(0, 8, 2):
            a.e(f"v_pk_mul_f32 {R('v',b+r,2)}, {R('v',b+r,2)}, {R('v',80+2*t,2)} {osel}")
        for z in range(4):
            a.e(f"v_cvt_pk_bf16_f32 v{144+4*t+z}, v{b+2*z}, v{b+2*z+1}")
        a.e(f"buffer_store_dwordx4 {R('v', 144+4*t)}, v{vL16}, s[{SWS}:{SWS+3}], s{50 + t//3} offen offset:{1024*(t%3)}{STF}")
    a.stamp()
    a.dump_stamps(SWS, 46)
    a.e("s_endpgm")
    a.lab("K1_LOADER")
    if os.environ.get("PRIO"): a.e(f"s_setprio {os.environ['PRIO']}")
    a.vm = []; a.vmB = []; a.lg = []
    for n in range(4):
        a.e(f"v_lshl_add_u32 v39, v33, 1, {n}")
        a.e("v_and_b32 v39, 3, v39")
        a.e("v_lshl_add_u32 v39, v39, 2, v36")
        a.e("v_xor_b32 v42, v39, v35")
        a.e("v_lshlrev_b32 v42, 4, v42")
        a.e(f"v_lshl_add_u32 v{vXD+n}, v36, 10, v42")
    a.e("s_mul_i32 s57, s44, 98304")
    a.e("s_mul_i32 s51, s46, 24576")
    a.e("s_add_u32 s57, s57, s51")
    a.e("s_mul_i32 s62, s46, 6144")
    a.e("s_waitcnt lgkmcnt(0)")
    srd(a, SX, 4, 786432)
    NE = int(os.environ.get("NE", "0"))
    a.e(os.environ.get("GRPI", "s_and_b32 s63, s44, 1"))
    srd(a, SV, 8, 33554432)
    a.e("v_and_b32 v39, 1, v33")
    a.e("v_lshl_add_u32 v39, v39, 2, v36")
    a.e("v_lshlrev_b32 v39, 1, v39")
    a.e("v_xor_b32 v39, v39, v35")
    a.e("v_lshlrev_b32 v39, 4, v39")
    a.e(f"v_lshl_add_u32 v{vAD}, v36, 13, v39")
    a.e(f"v_lshl_add_u32 v{vVD}, v36, 8, v39")
    a.e("s_lshl_b32 s61, s44, 5")
    a.e("s_add_u32 s61, s61, s45")
    a.e("s_lshl_b32 s61, s61, 17")
    a.e("s_lshl_b32 s59, s46, 15")
    a.e("s_add_u32 s60, s61, s59")
    a.e("s_lshl_b32 s59, s46, 11")
    a.e("s_add_u32 s61, s61, s59")
    a.e("s_lshl_b32 s59, s46, 12")
    VR = lambda n, x: 64 + 16*n + 4*x
    Vqs = [[(n, x) for n in range(8) for x in range(4)] for _ in range(2)]
    def Vld1(q, cnt):
        for _ in range(cnt):
            if not q: return
            n, x = q.pop(0)
            a.e(f"s_add_u32 s50, s61, {(2*(n%2) + x//2)*32768 + (n//2)*8192}")
            a.vmem(f"buffer_load_dwordx4 {R('v', VR(n,x))}, v{vVD}, s[{SV}:{SV+3}], s50 offen offset:{1024*(x%2)}{NT}", f"v{n}")
    def Vld(cnt):
        if NE == 0:
            Vld1(Vqs[0], cnt); return
        for g_ in range(2):
            if Vqs[g_] and cnt: a.only(g_, lambda: Vld1(Vqs[g_], cnt))
    KE = int(os.environ.get("KE", "5"))
    KET = list(range(7 - KE, 7))
    VB1 = [int(x) for x in os.environ.get("VB1", "2,2,4,4,4,6").split(",")]
    srd(a, SK, 6, 33554432)
    for n in range(4):
        a.e(f"v_add_u32 v39, {4*n}, v36")
        a.e("v_xor_b32 v42, v39, v35")
        a.e("v_lshlrev_b32 v42, 4, v42")
        a.e(f"v_add_u32 v39, {8*n}, v36")
        a.e(f"v_lshl_add_u32 v{vKD+n}, v39, 8, v42")
    a.e(f"v_add_u32 v227, s59, v{vL16}")
    a.e(f"v_add_u32 v228, {RING}, v227")
    a.e(f"v_add_u32 v227, 24576, v227")
    def Kearly():
        for kt in KET:
            a.e(f"s_add_u32 s50, s60, {8192*(kt//2) + 1024*(kt%2)}")
            for n in range(4):
                a.vmem(f"buffer_load_dwordx4 {R('v', VR(kt,n))}, v{vKD+n}, s[{SK}:{SK+3}], s50 offen{NT}", f"k{kt}")
    def Kwr(kt):
        for n in range(4):
            if kslot(kt) >= RING: a.ds(f"ds_write_b128 v228, {R('v', VR(kt,n))} offset:{kslot(kt) - RING + 1024*n}", "kw")
            else: a.ds(f"ds_write_b128 v227, {R('v', VR(kt,n))} offset:{kslot(kt) - 24576 + 1024*n}", "kw")
    if KE: a.only(1, Kearly)
    def Xdma(kb):
        for m in range(6):
            a.e(f"s_add_u32 m0, s62, {kb*24576 + m*1024}")
            a.e(f"s_add_u32 s50, s57, {m*4096 + kb*256}")
            a.vmem(f"buffer_load_dwordx4 v{vXD + m%4}, s[{SX}:{SX+3}], s50 offen lds", f"x{kb}")
    Xdma(0)
    a.e(f"s_lshl_b32 s{sAO}, s46, 16")
    a.e("s_lshl_b32 s50, s45, 8")
    a.e(f"s_add_u32 s{sAO}, s{sAO}, s50")
    a.e(f"s_lshl_b32 s58, s46, 11")
    a.e(f"s_add_u32 s58, s58, {RING}")
    srd(a, SA, 10, 4194304)
    def Adma(n):
        for blk in range(2):
            for hh in range(2):
                a.e(f"s_add_u32 m0, s58, {(n%4)*16384 + blk*8192 + hh*1024}")
                a.e("s_nop 0")
                a.vmem(f"buffer_load_dwordx4 v{vAD}, s[{SA}:{SA+3}], s{sAO} offen lds", f"A{n}")
                a.e(f"s_add_u32 s{sAO}, s{sAO}, {32768 if hh == 0 else 32768*7}")
    Adma(0); Adma(1); Xdma(1); Adma(2)
    srd(a, SWO, 12, 4194304)
    srd(a, SWS, 18, 268435456)
    a.e(f"s_mov_b32 s{selLo}, 0x05040100")
    a.e(f"s_mov_b32 s{selHi}, 0x07060302")
    a.e(f"v_add_u32 v{vRW}, s58, v{vL16}")
    a.e("v_lshlrev_b32 v39, 15, v36")
    a.e(f"v_lshl_add_u32 v{vWO}, v35, 3, v39")
    a.e("v_lshrrev_b32 v39, 3, v35")
    a.e("v_lshlrev_b32 v39, 18, v39")
    a.e("v_lshl_add_u32 v39, v36, 11, v39")
    a.e("v_and_b32 v42, 1, v35")
    a.e("v_lshl_add_u32 v39, v42, 10, v39")
    a.e("v_bfe_u32 v42, v35, 1, 2")
    a.e(f"v_lshl_add_u32 v{vWS}, v42, 6, v39")
    def Kdma(kt):
        a.e(f"s_add_u32 m0, s59, {kslot(kt)}")
        a.e(f"s_add_u32 s50, s60, {8192*(kt//2) + 1024*(kt%2)}")
        for n in range(4):
            a.vmem(f"buffer_load_dwordx4 v{vKD+n}, s[{SK}:{SK+3}], s50 offen{NT} lds", f"k{kt}")
            if n < 3:
                a.e("s_add_u32 m0, m0, 1024")
                a.e("s_nop 0")
    Kdma0 = Kdma
    def Kdma(kt):
        if kt not in KET: Kdma0(kt); return
        a.only(0, lambda: Kdma0(kt))
        a.only(1, lambda: Kwr(kt))
    def Vld(cnt, cnt1=0):
        if not KE: Vld1(Vqs[0], cnt); return
        if Vqs[0] and cnt: a.only(0, lambda: Vld1(Vqs[0], cnt))
        if Vqs[1] and cnt1: a.only(1, lambda: Vld1(Vqs[1], cnt1))
    def Vwr(n):
        a.wait_vm(f"v{n}")
        for x in range(4):
            a.ds(f"ds_write_b128 v{vRW}, {R('v', VR(n,x))} offset:{(n%4)*16384 + (x//2)*8192 + (x%2)*1024}", "vw")
    def wo_loads():
        a.e("s_lshl_b32 s50, s45, 17")
        a.e("s_add_u32 s50, s50, s59")
        a.e("s_lshl_b32 s51, s44, 7")
        a.e("s_add_u32 s50, s50, s51")
        a.e("s_add_u32 s51, s50, 16384")
        for i in range(8):
            so = 50 if i < 4 else 51
            a.vmem(f"buffer_load_dwordx2 {R('v', 192+2*i, 2)}, v{vWO}, s[{SWO}:{SWO+3}], s{so} offen offset:{(i%4)*1024}", "wo")
    def wo_job():
        a.e("s_lshl_b32 s50, s44, 6")
        a.e("s_add_u32 s50, s50, s45")
        a.e("s_lshl_b32 s50, s50, 13")
        a.e("s_lshl_b32 s51, s46, 8")
        a.e("s_add_u32 s50, s50, s51")
        a.e(f"s_add_u32 s50, s50, {WS_W}")
        a.wait_vm("wo")
        for e in range(4):
            for z in range(4):
                sel = selLo if e % 2 == 0 else selHi
                a.e(f"v_perm_b32 v{208+4*e+z}, v{192+2*(2*z+1)+e//2}, v{192+2*(2*z)+e//2}, s{sel}")
        for e in range(4):
            a.vmem(f"buffer_store_dwordx4 {R('v', 208+4*e)}, v{vWS}, s[{SWS}:{SWS+3}], s50 offen offset:{16*e}{STW}", "wst")
    a.wait_vm("A0")
    a.e("s_barrier")
    for n in range(8):
        a.wait_vm(f"A{min(n+1, 7)}")
        a.e("s_barrier")
        if n in (1, 3): Xdma(2 + n//2)
        if n < 5: Adma(n + 3)
        if n == 4: wo_loads()
        if n < 5: pass
        else: Kdma(n - 5)
    a.e("s_barrier")
    Kdma(3); Kdma(4)
    Vld(0, VB1[0])
    a.wait_vm("k0"); a.wait_vm("k1"); a.e("s_barrier")
    Kdma(5); Kdma(6)
    wo_job()
    if os.environ.get("PFC", "0") == "1":
        a.e("s_getpc_b64 s[64:65]")
        a.lab("K1_PC")
        a.e(f"s_add_u32 s64, s64, {K2}-K1_PC")
        a.e("s_addc_u32 s65, s65, 0")
        for x in range(2):
            a.vmem(f"global_load_dwordx4 v[192:195], v{vL16}, s[64:65] offset:{1024*x}", "pf")
    Vld(0, VB1[1])
    a.wait_vm("k2"); a.wait_vm("k3"); a.e("s_barrier")
    Kdma(7)
    Vld(VB[0], VB1[2])
    a.wait_vm("k4"); a.wait_vm("k5"); a.e("s_barrier")
    Vld(VB[1], VB1[3])
    a.wait_vm("k6"); a.wait_vm("k7"); a.e("s_barrier")
    Vld(VB[2], VB1[4])
    a.e("s_barrier")
    Vld(VB[3], VB1[5])
    for n in range(2): Vwr(n)
    a.wait_lg0()
    a.e("s_barrier")
    for n in range(3):
        Vwr(2*n + 2); Vwr(2*n + 3)
        if n == 0: Vld(6, 6)
        if n == 1: Vld(99, 99)
        a.wait_lg0()
        a.e("s_barrier")
    a.lab("K1_END")
    a.e("s_endpgm")
    return a

K2NW = 4
TM = int(os.environ.get("TM", "3")); TN = int(os.environ.get("TN", "1"))
K2G = (48 // TM) * (16 // TN)
K2LDS = 4 * TM * TN * 2048
def kernel2():
    D = 4
    NK = 32
    a = Asm()
    SWS, SO = 20, 24
    SL = 4*(TM + 2*TN)
    NU = TM*TN*2
    AC = SL*D
    vL, vO, vW, vR = AC+4*NU, AC+4*NU+1, AC+4*NU+2, AC+4*NU+3
    per = K2G // 8
    ncol = 8 // TN
    a.e(f"s_cmp_ge_u32 s2, {K2G}")
    a.e("s_cbranch_scc1 K2_END")
    a.e("s_load_dwordx2 s[4:5], s[0:1], 40")
    a.e("s_load_dwordx2 s[6:7], s[0:1], 56")
    a.e("v_lshrrev_b32 v1, 6, v0")
    a.e("v_and_b32 v2, 63, v0")
    a.e("v_readfirstlane_b32 s46, v1")
    a.e(f"v_lshlrev_b32 v{vL}, 4, v2")
    a.e("s_and_b32 s50, s2, 7")
    a.e("s_lshr_b32 s51, s2, 3")
    a.e("s_lshr_b32 s44, s50, 1")
    a.e("s_mul_i32 s44, s44, 12")
    a.e(f"s_lshr_b32 s52, s51, {ncol.bit_length()-1}")
    a.e(f"s_mul_i32 s52, s52, {TM}")
    a.e("s_add_u32 s44, s44, s52")
    a.e("s_and_b32 s45, s50, 1")
    a.e("s_lshl_b32 s45, s45, 3")
    a.e(f"s_and_b32 s52, s51, {ncol-1}")
    a.e(f"s_mul_i32 s52, s52, {TN}")
    a.e("s_add_u32 s45, s45, s52")
    a.e("s_mul_i32 s52, s46, 98304")
    for x in range(TM):
        a.e(f"s_add_u32 s53, s44, {x}")
        a.e("s_mul_hi_u32 s54, s53, 0x55555556")
        a.e("s_mul_i32 s55, s54, 3")
        a.e("s_sub_u32 s55, s53, s55")
        a.e("s_mul_i32 s54, s54, 393216")
        a.e("s_lshl_b32 s55, s55, 10")
        a.e("s_add_u32 s54, s54, s55")
        a.e(f"s_add_u32 s{60+x}, s54, s52")
    a.e("s_lshl_b32 s54, s45, 18")
    a.e("s_lshl_b32 s55, s46, 16")
    a.e("s_add_u32 s54, s54, s55")
    for y in range(TN):
        a.e(f"s_add_u32 s{64+y}, s54, {WS_W + 262144*y}")
    a.e("v_and_b32 v3, 15, v2")
    a.e("v_lshrrev_b32 v4, 4, v2")
    a.e("v_lshlrev_b32 v4, 4, v4")
    a.e(f"v_lshl_add_u32 v{vO}, v3, 10, v4")
    a.e(f"s_mul_i32 s52, s46, {NU*1024}")
    a.e(f"v_add_u32 v{vW}, s52, v{vL}")
    a.e(f"s_mul_i32 s52, s46, {TN*2048}")
    a.e(f"v_add_u32 v{vR}, s52, v{vL}")
    a.e("s_waitcnt lgkmcnt(0)")
    srd(a, SWS, 6, 268435456)
    def ld(sl):
        b = SL*sl
        for y in range(TN):
            for x in range(2):
                a.e(f"buffer_load_dwordx4 {R('v', b+8*y+4*x)}, v{vL}, s[{SWS}:{SWS+3}], s{64+y} offen offset:{1024*x}")
            a.e(f"s_add_u32 s{64+y}, s{64+y}, 2048")
        for x in range(TM):
            a.e(f"buffer_load_dwordx4 {R('v', b+8*TN+4*x)}, v{vL}, s[{SWS}:{SWS+3}], s{60+x} offen")
            a.e(f"s_add_u32 s{60+x}, s{60+x}, 3072")
    NL = TM + 2*TN
    for sl in range(D): ld(sl)
    srd(a, SO, 4, 786432)
    for i in range(4*NU): a.e(f"v_mov_b32 v{AC+i}, 0")
    a.e(f"s_mov_b32 s58, {NK//D - 1}")
    def mm(sl):
        b = SL*sl
        for tt in range(TM):
            for x in range(2*TN):
                acc = R('v', AC + 4*(tt*2*TN + x))
                a.e(f"v_mfma_f32_16x16x32_bf16 {acc}, {R('v', b+4*x)}, {R('v', b+8*TN+4*tt)}, {acc}")
    a.lab("K2_LOOP")
    for sl in range(D):
        a.e(f"s_waitcnt vmcnt({NL*(D-1)})")
        mm(sl); ld(sl)
    a.e("s_sub_u32 s58, s58, 1")
    a.e("s_cmp_lg_u32 s58, 0")
    a.e("s_cbranch_scc1 K2_LOOP")
    for sl in range(D):
        a.e(f"s_waitcnt vmcnt({NL*(D-1-sl)})")
        mm(sl)
    a.e("s_add_u32 s52, s44, s46")
    a.e("s_lshl_b32 s52, s52, 14")
    a.e("s_lshl_b32 s53, s45, 6")
    a.e("s_add_u32 s52, s52, s53")
    a.nop(8)
    for u in range(NU):
        a.e(f"ds_write_b128 v{vW}, {R('v', AC+4*u)} offset:{1024*u}")
    a.wait_lg0()
    a.e("s_barrier")
    a.e(f"s_cmp_ge_u32 s46, {TM}")
    a.e("s_cbranch_scc1 K2_END")
    W8 = 8*TN
    for s_ in range(4):
        for x in range(2*TN):
            a.e(f"ds_read_b128 {R('v', W8*s_+4*x)}, v{vR} offset:{NU*1024*s_ + 1024*x}")
    a.wait_lg0()
    for n in (2, 1):
        for s_ in range(n):
            for i in range(0, W8, 2):
                a.e(f"v_pk_add_f32 {R('v',W8*s_+i,2)}, {R('v',W8*s_+i,2)}, {R('v',W8*(s_+n)+i,2)}")
    for i in range(4*TN):
        a.e(f"v_cvt_pk_bf16_f32 v{W8+i}, v{2*i}, v{2*i+1}")
    for y in range(TN):
        a.e(f"buffer_store_dwordx4 {R('v', W8+4*y)}, v{vO}, s[{SO}:{SO+3}], s52 offen offset:{64*y}")
    a.lab("K2_END")
    a.e("s_endpgm")
    return a

def desc(name, nfv, acc):
    return f""".amdhsa_kernel {name}
  .amdhsa_next_free_vgpr {nfv}
  .amdhsa_next_free_sgpr 102
  .amdhsa_accum_offset {acc}
  .amdhsa_group_segment_fixed_size 0
  .amdhsa_kernarg_size 64
  .amdhsa_user_sgpr_count 2
  .amdhsa_user_sgpr_kernarg_segment_ptr 1
  .amdhsa_system_sgpr_workgroup_id_x 1
.end_amdhsa_kernel"""

def main():
    hdr = open("cdna_kernels/" + NAME + ".s.ref").read().split("\n")
    top = [l for l in hdr if l.startswith(";") and "@launch" not in l and "Override" not in l and "grid=ceil" not in l]
    out = list(top)
    out.append(f"; @launch kernel={K1} grid=(256,1,1) block=(512,1,1) lds=163840")
    out.append(f"; @launch kernel={K2} grid=({K2G},1,1) block=(256,1,1) lds={K2LDS}")
    out.append('.amdgcn_target "amdgcn-amd-amdhsa--gfx950"')
    out.append(".text")
    for name, k in ((K1, kernel1()), (K2, kernel2())):
        out += [f".globl {name}", ".p2align 8", f".type {name},@function", f"{name}:"]
        out += k.L
    out += ['.section .rodata,"a"', ".p2align 6", desc(K1, 256, 256), ".p2align 6", desc(K2, 256, 256)]
    path = sys.argv[1] if len(sys.argv) > 1 else "cdna_kernels/" + NAME + ".s"
    open(path, "w").write("\n".join(out) + "\n")

main()
```

```python
import sys, math, struct

NAME = "standalone__gqa_block_cached__near_ridge"
K1 = NAME + "_kernel"
K2 = "oproj_kernel"
import os
STAMP = bool(os.environ.get("STAMP"))
STAMP_OFF = 0
STF = os.environ.get('STF', ' sc1')
STW = os.environ.get('STW', '')
WS_W = 8 * 1024 * 1024

def f32bits(x):
    return struct.unpack("<I", struct.pack("<f", x))[0]

class Asm:
    def __init__(self):
        self.L = []
        self.vm = []
        self.lg = []
        self.ns = 0
        self.vmB = []
        self.cur = None
        self.nl = 0
    def e(self, s):
        self.L.append("    " + s)
    def lab(self, s):
        self.L.append(s + ":")
    def c(self, s):
        self.L.append("    ; " + s)
    def vmem(self, s, tag):
        self.e(s)
        if self.cur in (None, 0): self.vm.append(tag)
        if self.cur in (None, 1): self.vmB.append(tag)
    def only(self, g, fn):
        self.nl += 1
        L = f"K1_G{self.nl}"
        self.e(f"s_cmp_lg_u32 s63, {g}")
        self.e(f"s_cbranch_scc1 {L}")
        self.cur = g
        lg = list(self.lg)
        fn()
        self.e("s_waitcnt lgkmcnt(0)") if self.lg != lg else None
        self.lg = lg
        self.cur = None
        self.lab(L)
    def ds(self, s, tag):
        self.e(s); self.lg.append(tag)
    def wait_vm(self, tag):
        def cnt(l):
            idx = max(i for i, t in enumerate(l) if t == tag)
            return min(len(l) - 1 - idx, 63)
        if self.cur is not None:
            self.e(f"s_waitcnt vmcnt({cnt(self.vm if self.cur == 0 else self.vmB)})"); return
        nA, nB = cnt(self.vm), cnt(self.vmB)
        if nA != nB:
            g = 0 if nA < nB else 1
            self.nl += 1
            L = f"K1_G{self.nl}"
            self.e(f"s_cmp_lg_u32 s63, {g}")
            self.e(f"s_cbranch_scc1 {L}")
            self.e(f"s_waitcnt vmcnt({min(nA,nB)})")
            self.lab(L)
        self.e(f"s_waitcnt vmcnt({max(nA,nB)})")
    def wait_lg(self, tag):
        idx = max(i for i, t in enumerate(self.lg) if t == tag)
        n = min(len(self.lg) - 1 - idx, 15)
        self.e(f"s_waitcnt lgkmcnt({n})")
    def wait_lg0(self):
        self.e("s_waitcnt lgkmcnt(0)")
    def stamp(self):
        if not STAMP: return
        k = self.ns; self.ns += 1
        self.e(f"s_memtime s[{64+2*k}:{65+2*k}]")
        self.e("s_waitcnt lgkmcnt(0)")
    def dump_stamps(self, srd_, wave_s):
        if not STAMP: return
        self.e("s_lshl_b32 s50, s2, 2")
        self.e(f"s_add_u32 s50, s50, s{wave_s}")
        self.e("s_lshl_b32 s50, s50, 7")
        self.e(f"s_add_u32 s50, s50, {16*1024*1024 + STAMP_OFF}")
        self.e("v_mov_b32 v1, 0")
        for k in range(self.ns):
            self.e(f"v_mov_b32 v2, s{64+2*k}")
            self.e(f"buffer_store_dword v2, v1, s[{srd_}:{srd_+3}], s50 offen offset:{4*k}")
            self.e("s_nop 1")
    def nop(self, n):
        while n > 0:
            k = min(n, 16)
            self.e(f"s_nop {k-1}")
            n -= k

def R(kind, b, n=4):
    return f"{kind}[{b}:{b+n-1}]" if n > 1 else f"{kind}{b}"

def srd(a, d, p, nbytes):
    a.e(f"s_mov_b32 s{d}, s{p}")
    a.e(f"s_and_b32 s{d+1}, s{p+1}, 0xffff")
    a.e(f"s_mov_b32 s{d+2}, {nbytes}")
    a.e(f"s_mov_b32 s{d+3}, 0x00020000")

def interleave(a, mf, va, maxper=2, lastfree=2):
    va = list(va)
    n = len(mf)
    slots = max(n - lastfree, 1)
    per = -(-len(va) // slots) if va else 0
    for i, m in enumerate(mf):
        a.e(m)
        if i < slots:
            for _ in range(per):
                if va: a.e(va.pop(0))
    assert not va

def interleave2(a, mf, va, ld, lastfree=2):
    va = list(va); ld = list(ld)
    n = len(mf)
    slots = max(n - lastfree, 1)
    per = -(-len(va) // slots) if va else 0
    nl = len(ld)
    done = 0
    for i, m in enumerate(mf):
        if callable(m): m()
        else: a.e(m)
        if i < slots:
            for _ in range(per):
                if va: a.e(va.pop(0))
        while done < nl and (done + 0.5) * n <= (i + 1) * nl:
            ld[done](); done += 1
    while done < nl:
        ld[done](); done += 1
    assert not va

def kernel1():
    a = Asm()
    SX, SK, SV, SA, SWO, SWS = 20, 24, 28, 32, 36, 40
    selLo, selHi = 48, 49
    NT = " nt" if os.environ.get("NT", "1") == "1" else ""
    RING = 98304
    vL16, vST, vSR, vQW = 255, 254, 253, 252
    vKR, vB, vA = 248, 244, 242
    vAD, vVD, vKD, vXD, vWO, vWS, vRW = 240, 241, 236, 232, 230, 231, 229
    ACC = lambda t, jt: (t*2 + jt)*4
    BF = lambda buf, t: 48 + 24*buf + 4*t
    AF = lambda k, jt: 96 + 8*k + 4*jt
    sN, sG, sAO, sAP, sM = 52, 53, 54, 55, 56
    VB = [int(x) for x in os.environ.get("VB", "4,6,4,6").split(",")]
    a.e("s_cmp_ge_u32 s2, 256")
    a.e("s_cbranch_scc1 K1_END")
    a.e("s_load_dwordx16 s[4:19], s[0:1], 0")
    a.e("v_lshrrev_b32 v32, 6, v0")
    a.e("v_and_b32 v34, 63, v0")
    a.e("v_and_b32 v33, 3, v32")
    a.e("v_readfirstlane_b32 s47, v32")
    a.e("v_readfirstlane_b32 s46, v33")
    a.e("v_and_b32 v35, 15, v34")
    a.e("v_lshrrev_b32 v36, 4, v34")
    a.e("s_lshr_b32 s44, s2, 5")
    a.e("s_and_b32 s50, s2, 7")
    a.e("s_lshl_b32 s50, s50, 2")
    a.e("s_lshr_b32 s51, s2, 3")
    a.e("s_and_b32 s51, s51, 3")
    a.e("s_add_u32 s45, s50, s51")
    a.e(f"v_lshlrev_b32 v{vL16}, 4, v34")
    a.e("v_lshlrev_b32 v38, 4, v35")
    a.e("v_lshlrev_b32 v43, 8, v35")
    a.e("s_cmp_ge_u32 s47, 4")
    a.e("s_cbranch_scc1 K1_LOADER")
    a.e("v_lshrrev_b32 v39, 2, v35")
    a.e("v_and_b32 v40, 1, v36")
    a.e("v_lshl_add_u32 v40, v40, 2, v39")
    a.e("v_lshl_add_u32 v41, v36, 3, v39")
    a.e("v_and_b32 v42, 3, v35")
    a.e("v_lshlrev_b32 v42, 3, v42")
    a.e("v_lshl_add_u32 v41, v41, 8, v42")
    a.e(f"v_add_u32 v41, {RING}, v41")
    a.e("v_lshlrev_b32 v42, 1, v33")
    a.e("v_xor_b32 v42, v42, v40")
    a.e(f"v_lshl_add_u32 v{vA}, v42, 5, v41")
    a.e("v_xor_b32 v42, 1, v42")
    a.e(f"v_lshl_add_u32 v{vA+1}, v42, 5, v41")
    a.e("v_lshrrev_b32 v39, 1, v36")
    a.e("v_lshl_add_u32 v39, v39, 8, v38")
    a.e("v_and_b32 v40, 1, v36")
    a.e("v_lshl_add_u32 v39, v40, 3, v39")
    a.e(f"v_lshl_add_u32 v{vQW}, v33, 10, v39")
    a.e(f"v_add_u32 v{vSR}, {RING + 49152}, v38")
    a.e(f"v_lshl_add_u32 v{vST}, v33, 2, v{vSR}")
    a.e("s_lshl_b32 s50, s46, 12")
    a.e("s_add_u32 s50, s50, 24576")
    for n in range(4):
        a.e(f"v_add_u32 v39, {4*n}, v36")
        a.e("v_xor_b32 v42, v39, v35")
        a.e(f"v_lshl_add_u32 v{vB+n}, v42, 4, v43")
        a.e(f"v_add_u32 v{vKR+n}, s50, v{vB+n}")
    a.e(f"s_mov_b32 s{sG}, 0")
    a.e("s_waitcnt lgkmcnt(0)")
    a.stamp()
    srd(a, SWS, 18, 268435456)
    a.e("s_barrier")
    a.stamp()
    a.lab("K1_GEMM")
    a.e(f"s_mov_b32 s{sN}, 0")
    def rdB(buf, k):
        return [f"ds_read_b128 {R('v', BF(buf,t))}, v{vB+k} offset:{t*4096}" for t in range(6)]
    def rdA(k, off):
        return [f"ds_read_b64_tr_b16 {R('v', AF(k,jt)+2*hh, 2)}, v{vA+jt} offset:{off + hh*1024}" for jt in range(2) for hh in range(2)]
    for x in rdA(0, 0) + rdB(0, 0): a.e(x)
    for i in range(48): a.e(f"v_mov_b32 v{i}, 0")
    a.lab("K1_LOOP")
    for hs in range(2):
        a.e("s_waitcnt lgkmcnt(0)")
        a.e("s_barrier")
        for k in range(2):
            if k == 0:
                nxt = rdA(1, hs*16384 + 8192) + rdB(1, 2*hs + 1)
            else:
                if hs == 1:
                    a.e(f"v_add_u32 v{vB}, 24576, v{vB}")
                    a.e(f"v_xor_b32 v{vA}, 0x38000, v{vA}")
                    a.e(f"v_xor_b32 v{vA+1}, 0x38000, v{vA+1}")
                nxt = rdA(0, 16384*(1 - hs)) + rdB(0, (2*hs + 2) % 4)
                a.e("s_waitcnt lgkmcnt(0)")
            for t in range(6):
                for jt in range(2):
                    a.e(f"v_mfma_f32_16x16x32_bf16 {R('v', ACC(t,jt))}, {R('v', AF(k,jt))}, {R('v', BF(k,t))}, {R('v', ACC(t,jt))}")
                    for _ in range(2):
                        if nxt and t < 3: a.e(nxt.pop(0))
    for k in range(1, 4): a.e(f"v_add_u32 v{vB+k}, 24576, v{vB+k}")
    a.e(f"s_add_u32 s{sN}, s{sN}, 2")
    a.e(f"s_cmp_lt_u32 s{sN}, 8")
    a.e("s_cbranch_scc1 K1_LOOP")
    a.e("s_waitcnt lgkmcnt(0)")
    a.lg = []
    a.stamp()
    a.e("s_barrier")
    for t in range(6):
        for jt in range(2):
            b = ACC(t, jt)
            a.e(f"v_cvt_pk_bf16_f32 v{b}, v{b}, v{b+1}")
            a.e(f"v_cvt_pk_bf16_f32 v{b+1}, v{b+2}, v{b+3}")
            a.ds(f"ds_write_b64 v{vQW}, {R('v', b, 2)} offset:{t*4096 + jt*512}", "qw")
    for n in range(4):
        a.e(f"v_add_u32 v{vB+n}, {RING - 24576}, v{vKR+n}")
    a.wait_lg0()
    SB = lambda kt, t: ((kt % 2)*4 + kt//2)*24 + 4*t
    KF = lambda x, u: 192 + 16*x + 4*u
    QF = lambda u: 224 + 4*u
    def kslot(kt):
        return RING + 16384*(kt % 7) if kt < 3 or kt == 7 else 24576 + 16384*(kt - 3)
    def QB(G, t, u):
        if t % 2 == 0 or (G == 3 and t == 5): return QF(u)
        return SB(6 + u % 2, 4 + u // 2)
    def rdQ(G, t, u):
        a.ds(f"ds_read_b128 {R('v', QB(G,t,u))}, v{vL16} offset:{(t*4+u)*1024}", f"q{t}_{u}")
    for G in range(4):
        a.e("s_barrier")
        if G == 0:
            a.stamp()
            for u in range(4): rdQ(0, 0, u)
        for u in range(4):
            for x in range(2):
                kt = 2*G + x
                if kslot(kt) >= RING: a.ds(f"ds_read_b128 {R('v', KF(x,u))}, v{vB+u} offset:{kslot(kt)-RING}", f"kr{u}")
                else: a.ds(f"ds_read_b128 {R('v', KF(x,u))}, v{vKR+u} offset:{kslot(kt)-24576}", f"kr{u}")
        for t in range(6):
            late = (G == 3 and t == 4)
            if not late and not (G == 3 and t == 5):
                for u in range(4): rdQ(G + (t+1)//6, (t+1) % 6, u)
            for u in range(4):
                a.wait_lg(f"kr{u}" if t == 0 else f"q{t}_{u}")
                for x in range(2):
                    kt = 2*G + x
                    cin = "0" if u == 0 else R('v', SB(kt, t))
                    a.e(f"v_mfma_f32_16x16x32_bf16 {R('v', SB(kt,t))}, {R('v', KF(x,u))}, {R('v', QB(G,t,u))}, {cin}")
                if late: rdQ(3, 5, u)
    a.nop(8)
    a.stamp()
    cs = math.log2(math.e) / math.sqrt(128.0)
    a.e(f"s_mov_b32 s50, 0x{f32bits(cs):08x}")
    a.e(f"s_mov_b32 s51, 0x{f32bits(cs):08x}")
    vM = 224
    for t in range(6):
        vals = [SB(kt, t) + r for kt in range(8) for r in range(4)]
        m = vM + 2*t
        a.e(f"v_max3_f32 v{m}, v{vals[0]}, v{vals[1]}, v{vals[2]}")
        a.e(f"v_max3_f32 v{m+1}, v{vals[3]}, v{vals[4]}, v{vals[5]}")
        for i in range(6, 30, 4):
            a.e(f"v_max3_f32 v{m}, v{m}, v{vals[i]}, v{vals[i+1]}")
            a.e(f"v_max3_f32 v{m+1}, v{m+1}, v{vals[i+2]}, v{vals[i+3]}")
        a.e(f"v_max3_f32 v{m}, v{m}, v{vals[30]}, v{vals[31]}")
        a.e(f"v_max_f32 v{m}, v{m}, v{m+1}")
        a.e(f"v_mov_b32 v{m+1}, v{m}")
    for op in ("v_permlane32_swap_b32", "v_permlane16_swap_b32"):
        a.nop(2)
        for t in range(6): a.e(f"{op} v{vM+2*t}, v{vM+2*t+1}")
        for t in range(6): a.e(f"v_max_f32 v{vM+2*t}, v{vM+2*t}, v{vM+2*t+1}")
        if "32" in op[:13]:
            for t in range(6): a.e(f"v_mov_b32 v{vM+2*t+1}, v{vM+2*t}")
    for t in range(6):
        a.ds(f"ds_write_b32 v{vST}, v{vM+2*t} offset:{t*256}", "mw")
    a.e("s_mul_i32 s59, s46, 24576")
    a.e(f"v_add_u32 v{vQW}, s59, v{vL16}")
    MR = [236, 238, 240, 244, 246, 248]
    a.e(f"v_add_u32 v237, 49152, v{vL16}")
    a.e(f"v_and_b32 v{vB+1}, 0xf0, v{vL16}")
    a.e(f"v_lshlrev_b32 v{vB+1}, 1, v{vB+1}")
    a.e(f"v_add_u32 v239, s59, v{vB+1}")
    a.e(f"v_add_u32 v{vB+3}, 49152, v{vB+1}")
    a.wait_lg0()
    a.stamp()
    a.e("s_barrier")
    a.stamp()
    for t in range(6):
        a.ds(f"ds_read_b128 {R('v', 196+4*t)}, v{vSR} offset:{t*256}", f"g{t}")
    for t in range(6):
        b = 196 + 4*t
        a.wait_lg(f"g{t}")
        a.e(f"v_max3_f32 v{b}, v{b}, v{b+1}, v{b+2}")
        a.e(f"v_max_f32 v{b}, v{b}, v{b+3}")
        a.e(f"v_mul_f32 v{MR[t]}, s50, v{b}")
    for r in range(4):
        a.e(f"v_mov_b32 v{192+r}, 0x3f803f80")
    PB = lambda t, p: 24*p + 4*t
    SUM = lambda t: 196 + 4*t
    def E(p):
        out = []; pend = None
        for t in range(6):
            e0, e1 = SB(2*p, t), SB(2*p+1, t)
            osel = "op_sel_hi:[1,1,0]"
            for x in (e0, e0+2, e1, e1+2):
                out.append(f"v_pk_fma_f32 {R('v',x,2)}, {R('v',x,2)}, s[50:51], {R('v',MR[t],2)} {osel} neg_lo:[0,0,1] neg_hi:[0,0,1]")
            if pend: out.append(pend)
            for x in list(range(e0, e0+4)) + list(range(e1, e1+4)):
                out.append(f"v_exp_f32 v{x}, v{x}")
            out.append(f"v_cvt_pk_bf16_f32 v{e0}, v{e0}, v{e0+1}")
            out.append(f"v_cvt_pk_bf16_f32 v{e0+1}, v{e0+2}, v{e0+3}")
            out.append(f"v_cvt_pk_bf16_f32 v{e0+2}, v{e1}, v{e1+1}")
            out.append(f"v_cvt_pk_bf16_f32 v{e0+3}, v{e1+2}, v{e1+3}")
            out.append(f"ds_write_b128 v{vQW}, {R('v', e0)} offset:{t*4096 + p*1024}")
            cin = "0" if p == 0 else R('v', SUM(t))
            pend = f"v_mfma_f32_16x16x32_bf16 {R('v', SUM(t))}, v[192:195], {R('v', e0)}, {cin}"
        out += ["s_nop 1", pend]
        return out
    AC2 = lambda t, jt: (8*t if t < 3 else 96 + 8*(t-3)) + 4*jt
    BF2 = lambda buf, t: (24 if buf == 0 else 120) + 4*t
    AF2 = lambda buf, jt: 220 + 8*buf + 4*jt
    def rd2(p, kb):
        buf = kb % 2
        off = ((2*p + kb//2) % 4)*16384 + (kb % 2)*8192
        o = [f"ds_read_b64_tr_b16 {R('v', AF2(buf,jt)+2*hh, 2)}, v{vA+jt} offset:{off + hh*1024}" for jt in range(2) for hh in range(2)]
        o += [f"ds_read_b128 {R('v', BF2(buf,t))}, v{vL16 if kb < 2 else 237} offset:{(kb%2)*24576 + t*4096 + p*1024}" for t in range(6)]
        return o
    for x in E(0) + E(1): a.e(x)
    a.stamp()
    for p in range(4):
        ev = E(p + 2) if p < 2 else []
        a.e("s_waitcnt lgkmcnt(0)")
        a.e("s_barrier")
        if p == 2:
            for t in range(6):
                a.e(f"ds_write_b32 v239, v{SUM(t)} offset:{4*t}")
        for x in rd2(p, 0): a.e(x)
        if p == 3:
            for wv in range(4):
                ad = f"v{vB+1 if wv < 2 else vB+3}"
                a.e(f"ds_read_b128 {R('v', 48+8*wv)}, {ad} offset:{(wv%2)*24576}")
                a.e(f"ds_read_b64 {R('v', 52+8*wv, 2)}, {ad} offset:{(wv%2)*24576 + 16}")
        for _ in range(14):
            if ev: a.e(ev.pop(0))
        per = -(-len(ev) // 44)
        for kb in range(4):
            nxt = rd2(p, kb+1) if kb < 3 else []
            a.e("s_waitcnt lgkmcnt(0)")
            for t in range(6):
                for jt in range(2):
                    cin = "0" if (p == 0 and kb == 0) else R('v', AC2(t,jt))
                    a.e(f"v_mfma_f32_16x16x32_bf16 {R('v', AC2(t,jt))}, {R('v', AF2(kb%2,jt))}, {R('v', BF2(kb%2,t))}, {cin}")
                    for _ in range(2):
                        if nxt and t < 3: a.e(nxt.pop(0))
                    for _ in range(per):
                        if ev: a.e(ev.pop(0))
            if p == 3 and kb == 1:
                for t in range(0, 6, 2):
                    a.e(f"v_pk_add_f32 {R('v',48+t,2)}, {R('v',48+t,2)}, {R('v',56+t,2)}")
                    a.e(f"v_pk_add_f32 {R('v',64+t,2)}, {R('v',64+t,2)}, {R('v',72+t,2)}")
                    a.e(f"v_pk_add_f32 {R('v',48+t,2)}, {R('v',48+t,2)}, {R('v',64+t,2)}")
                for t in range(6): a.e(f"v_rcp_f32 v{80+2*t}, v{48+t}")
        assert not ev
        if p == 1: a.nop(8)
    a.stamp()
    a.e("s_lshl_b32 s50, s44, 6")
    a.e("s_add_u32 s50, s50, s45")
    a.e("s_lshl_b32 s50, s50, 2")
    a.e("s_add_u32 s50, s50, s46")
    a.e("s_mul_i32 s50, s50, 3072")
    a.e("s_add_u32 s51, s50, 393216")
    a.nop(4)
    for t in range(6):
        b = AC2(t, 0)
        osel = "op_sel_hi:[1,0]"
        for r in range(0, 8, 2):
            a.e(f"v_pk_mul_f32 {R('v',b+r,2)}, {R('v',b+r,2)}, {R('v',80+2*t,2)} {osel}")
        for z in range(4):
            a.e(f"v_cvt_pk_bf16_f32 v{144+4*t+z}, v{b+2*z}, v{b+2*z+1}")
        a.e(f"buffer_store_dwordx4 {R('v', 144+4*t)}, v{vL16}, s[{SWS}:{SWS+3}], s{50 + t//3} offen offset:{1024*(t%3)}{STF}")
    a.stamp()
    a.dump_stamps(SWS, 46)
    a.e("s_endpgm")
    a.lab("K1_LOADER")
    if os.environ.get("PRIO"): a.e(f"s_setprio {os.environ['PRIO']}")
    a.vm = []; a.vmB = []; a.lg = []
    for n in range(4):
        a.e(f"v_lshl_add_u32 v39, v33, 1, {n}")
        a.e("v_and_b32 v39, 3, v39")
        a.e("v_lshl_add_u32 v39, v39, 2, v36")
        a.e("v_xor_b32 v42, v39, v35")
        a.e("v_lshlrev_b32 v42, 4, v42")
        a.e(f"v_lshl_add_u32 v{vXD+n}, v36, 10, v42")
    a.e("s_mul_i32 s57, s44, 98304")
    a.e("s_mul_i32 s51, s46, 24576")
    a.e("s_add_u32 s57, s57, s51")
    a.e("s_mul_i32 s62, s46, 6144")
    a.e("s_waitcnt lgkmcnt(0)")
    srd(a, SX, 4, 786432)
    NE = int(os.environ.get("NE", "0"))
    a.e(os.environ.get("GRPI", "s_and_b32 s63, s44, 1"))
    srd(a, SV, 8, 33554432)
    a.e("v_and_b32 v39, 1, v33")
    a.e("v_lshl_add_u32 v39, v39, 2, v36")
    a.e("v_lshlrev_b32 v39, 1, v39")
    a.e("v_xor_b32 v39, v39, v35")
    a.e("v_lshlrev_b32 v39, 4, v39")
    a.e(f"v_lshl_add_u32 v{vAD}, v36, 13, v39")
    a.e(f"v_lshl_add_u32 v{vVD}, v36, 8, v39")
    a.e("s_lshl_b32 s61, s44, 5")
    a.e("s_add_u32 s61, s61, s45")
    a.e("s_lshl_b32 s61, s61, 17")
    a.e("s_lshl_b32 s59, s46, 15")
    a.e("s_add_u32 s60, s61, s59")
    a.e("s_lshl_b32 s59, s46, 11")
    a.e("s_add_u32 s61, s61, s59")
    a.e("s_lshl_b32 s59, s46, 12")
    VR = lambda n, x: 64 + 16*n + 4*x
    Vqs = [[(n, x) for n in range(8) for x in range(4)] for _ in range(2)]
    def Vld1(q, cnt):
        for _ in range(cnt):
            if not q: return
            n, x = q.pop(0)
            a.e(f"s_add_u32 s50, s61, {(2*(n%2) + x//2)*32768 + (n//2)*8192}")
            a.vmem(f"buffer_load_dwordx4 {R('v', VR(n,x))}, v{vVD}, s[{SV}:{SV+3}], s50 offen offset:{1024*(x%2)}{NT}", f"v{n}")
    def Vld(cnt):
        if NE == 0:
            Vld1(Vqs[0], cnt); return
        for g_ in range(2):
            if Vqs[g_] and cnt: a.only(g_, lambda: Vld1(Vqs[g_], cnt))
    KE = int(os.environ.get("KE", "7"))
    KET = list(range(7 - KE, 7)) if KE < 8 else list(range(8))
    VE = int(os.environ.get('VE', '4'))
    VB1 = [int(x) for x in os.environ.get("VB1", "2,2,4,4,4,6").split(",")]
    srd(a, SK, 6, 33554432)
    for n in range(4):
        a.e(f"v_add_u32 v39, {4*n}, v36")
        a.e("v_xor_b32 v42, v39, v35")
        a.e("v_lshlrev_b32 v42, 4, v42")
        a.e(f"v_add_u32 v39, {8*n}, v36")
        a.e(f"v_lshl_add_u32 v{vKD+n}, v39, 8, v42")
    a.e(f"v_add_u32 v227, s59, v{vL16}")
    a.e(f"v_add_u32 v228, {RING}, v227")
    a.e(f"v_add_u32 v227, 24576, v227")
    def Kearly():
        for kt in KET:
            a.e(f"s_add_u32 s50, s60, {8192*(kt//2) + 1024*(kt%2)}")
            for n in range(4):
                a.vmem(f"buffer_load_dwordx4 {R('v', VR(kt,n))}, v{vKD+n}, s[{SK}:{SK+3}], s50 offen{NT}", f"k{kt}")
    def Kwr(kt):
        for n in range(4):
            if kslot(kt) >= RING: a.ds(f"ds_write_b128 v228, {R('v', VR(kt,n))} offset:{kslot(kt) - RING + 1024*n}", "kw")
            else: a.ds(f"ds_write_b128 v227, {R('v', VR(kt,n))} offset:{kslot(kt) - 24576 + 1024*n}", "kw")
    if KE: a.only(1, Kearly)
    def Xdma(kb):
        for m in range(6):
            a.e(f"s_add_u32 m0, s62, {kb*24576 + m*1024}")
            a.e(f"s_add_u32 s50, s57, {m*4096 + kb*256}")
            a.vmem(f"buffer_load_dwordx4 v{vXD + m%4}, s[{SX}:{SX+3}], s50 offen lds", f"x{kb}")
    Xdma(0)
    a.e(f"s_lshl_b32 s{sAO}, s46, 16")
    a.e("s_lshl_b32 s50, s45, 8")
    a.e(f"s_add_u32 s{sAO}, s{sAO}, s50")
    a.e(f"s_lshl_b32 s58, s46, 11")
    a.e(f"s_add_u32 s58, s58, {RING}")
    srd(a, SA, 10, 4194304)
    def Adma(n):
        for blk in range(2):
            for hh in range(2):
                a.e(f"s_add_u32 m0, s58, {(n%4)*16384 + blk*8192 + hh*1024}")
                a.e("s_nop 0")
                a.vmem(f"buffer_load_dwordx4 v{vAD}, s[{SA}:{SA+3}], s{sAO} offen lds", f"A{n}")
                a.e(f"s_add_u32 s{sAO}, s{sAO}, {32768 if hh == 0 else 32768*7}")
    Adma(0); Adma(1); Xdma(1); Adma(2)
    srd(a, SWO, 12, 4194304)
    srd(a, SWS, 18, 268435456)
    a.e(f"s_mov_b32 s{selLo}, 0x05040100")
    a.e(f"s_mov_b32 s{selHi}, 0x07060302")
    a.e(f"v_add_u32 v{vRW}, s58, v{vL16}")
    a.e("v_lshlrev_b32 v39, 15, v36")
    a.e(f"v_lshl_add_u32 v{vWO}, v35, 3, v39")
    a.e("v_lshrrev_b32 v39, 3, v35")
    a.e("v_lshlrev_b32 v39, 18, v39")
    a.e("v_lshl_add_u32 v39, v36, 11, v39")
    a.e("v_and_b32 v42, 1, v35")
    a.e("v_lshl_add_u32 v39, v42, 10, v39")
    a.e("v_bfe_u32 v42, v35, 1, 2")
    a.e(f"v_lshl_add_u32 v{vWS}, v42, 6, v39")
    def Kdma(kt):
        a.e(f"s_add_u32 m0, s59, {kslot(kt)}")
        a.e(f"s_add_u32 s50, s60, {8192*(kt//2) + 1024*(kt%2)}")
        for n in range(4):
            a.vmem(f"buffer_load_dwordx4 v{vKD+n}, s[{SK}:{SK+3}], s50 offen{NT} lds", f"k{kt}")
            if n < 3:
                a.e("s_add_u32 m0, m0, 1024")
                a.e("s_nop 0")
    Kdma0 = Kdma
    def Kdma(kt):
        if kt not in KET: Kdma0(kt); return
        a.only(0, lambda: Kdma0(kt))
        a.only(1, lambda: Kwr(kt))
    def Vld(cnt, cnt1=0):
        if not KE: Vld1(Vqs[0], cnt); return
        if Vqs[0] and cnt: a.only(0, lambda: Vld1(Vqs[0], cnt))
        if Vqs[1] and cnt1: a.only(1, lambda: Vld1(Vqs[1], cnt1))
    def Vwr(n):
        a.wait_vm(f"v{n}")
        for x in range(4):
            a.ds(f"ds_write_b128 v{vRW}, {R('v', VR(n,x))} offset:{(n%4)*16384 + (x//2)*8192 + (x%2)*1024}", "vw")
    def wo_loads():
        a.e("s_lshl_b32 s50, s45, 17")
        a.e("s_add_u32 s50, s50, s59")
        a.e("s_lshl_b32 s51, s44, 7")
        a.e("s_add_u32 s50, s50, s51")
        a.e("s_add_u32 s51, s50, 16384")
        for i in range(8):
            so = 50 if i < 4 else 51
            a.vmem(f"buffer_load_dwordx2 {R('v', 192+2*i, 2)}, v{vWO}, s[{SWO}:{SWO+3}], s{so} offen offset:{(i%4)*1024}", "wo")
    def wo_job():
        a.e("s_lshl_b32 s50, s44, 6")
        a.e("s_add_u32 s50, s50, s45")
        a.e("s_lshl_b32 s50, s50, 13")
        a.e("s_lshl_b32 s51, s46, 8")
        a.e("s_add_u32 s50, s50, s51")
        a.e(f"s_add_u32 s50, s50, {WS_W}")
        a.wait_vm("wo")
        for e in range(4):
            for z in range(4):
                sel = selLo if e % 2 == 0 else selHi
                a.e(f"v_perm_b32 v{208+4*e+z}, v{192+2*(2*z+1)+e//2}, v{192+2*(2*z)+e//2}, s{sel}")
        for e in range(4):
            a.vmem(f"buffer_store_dwordx4 {R('v', 208+4*e)}, v{vWS}, s[{SWS}:{SWS+3}], s50 offen offset:{16*e}{STW}", "wst")
    a.wait_vm("A0")
    a.e("s_barrier")
    for n in range(8):
        a.wait_vm(f"A{min(n+1, 7)}")
        a.e("s_barrier")
        if n in (1, 3): Xdma(2 + n//2)
        if n < 5: Adma(n + 3)
        if n == 4: wo_loads()
        if n < 5: pass
        else:
            Kdma(n - 5)
            if KE >= 7: Vld(0, VE)
    a.e("s_barrier")
    Kdma(3); Kdma(4)
    Vld(0, VB1[0])
    a.wait_vm("k0"); a.wait_vm("k1"); a.e("s_barrier")
    Kdma(5); Kdma(6)
    if os.environ.get("PFC", "0") == "1":
        a.e("s_getpc_b64 s[64:65]")
        a.lab("K1_PC")
        a.e(f"s_add_u32 s64, s64, {K2}-K1_PC")
        a.e("s_addc_u32 s65, s65, 0")
        for x in range(2):
            a.vmem(f"global_load_dwordx4 v[192:195], v{vL16}, s[64:65] offset:{1024*x}", "pf")
    Vld(0, VB1[1])
    a.wait_vm("k2"); a.wait_vm("k3"); a.e("s_barrier")
    Kdma(7)
    Vld(VB[0], VB1[2])
    a.wait_vm("k4"); a.wait_vm("k5"); a.e("s_barrier")
    Vld(VB[1], VB1[3])
    a.wait_vm("k6"); a.wait_vm("k7"); a.e("s_barrier")
    Vld(VB[2], VB1[4])
    a.e("s_barrier")
    Vld(VB[3], VB1[5])
    for n in range(2): Vwr(n)
    a.wait_lg0()
    a.e("s_barrier")
    for n in range(3):
        Vwr(2*n + 2); Vwr(2*n + 3)
        if n == 0: Vld(6, 6)
        if n == 1: Vld(99, 99)
        a.wait_lg0()
        a.e("s_barrier")
    wo_job()
    a.lab("K1_END")
    a.e("s_endpgm")
    return a

K2NW = 4
TM = int(os.environ.get("TM", "3")); TN = int(os.environ.get("TN", "1"))
K2G = (48 // TM) * (16 // TN)
K2LDS = 4 * TM * TN * 2048
def kernel2():
    D = 4
    NK = 32
    a = Asm()
    SWS, SO = 20, 24
    SL = 4*(TM + 2*TN)
    NU = TM*TN*2
    AC = SL*D
    vL, vO, vW, vR = AC+4*NU, AC+4*NU+1, AC+4*NU+2, AC+4*NU+3
    per = K2G // 8
    ncol = 8 // TN
    a.e(f"s_cmp_ge_u32 s2, {K2G}")
    a.e("s_cbranch_scc1 K2_END")
    a.e("s_load_dwordx2 s[4:5], s[0:1], 40")
    a.e("s_load_dwordx2 s[6:7], s[0:1], 56")
    a.e("v_lshrrev_b32 v1, 6, v0")
    a.e("v_and_b32 v2, 63, v0")
    a.e("v_readfirstlane_b32 s46, v1")
    a.e(f"v_lshlrev_b32 v{vL}, 4, v2")
    a.e("s_and_b32 s50, s2, 7")
    a.e("s_lshr_b32 s51, s2, 3")
    a.e("s_lshr_b32 s44, s50, 1")
    a.e("s_mul_i32 s44, s44, 12")
    a.e(f"s_lshr_b32 s52, s51, {ncol.bit_length()-1}")
    a.e(f"s_mul_i32 s52, s52, {TM}")
    a.e("s_add_u32 s44, s44, s52")
    a.e("s_and_b32 s45, s50, 1")
    a.e("s_lshl_b32 s45, s45, 3")
    a.e(f"s_and_b32 s52, s51, {ncol-1}")
    a.e(f"s_mul_i32 s52, s52, {TN}")
    a.e("s_add_u32 s45, s45, s52")
    a.e("s_mul_i32 s52, s46, 98304")
    for x in range(TM):
        a.e(f"s_add_u32 s53, s44, {x}")
        a.e("s_mul_hi_u32 s54, s53, 0x55555556")
        a.e("s_mul_i32 s55, s54, 3")
        a.e("s_sub_u32 s55, s53, s55")
        a.e("s_mul_i32 s54, s54, 393216")
        a.e("s_lshl_b32 s55, s55, 10")
        a.e("s_add_u32 s54, s54, s55")
        a.e(f"s_add_u32 s{60+x}, s54, s52")
    a.e("s_lshl_b32 s54, s45, 18")
    a.e("s_lshl_b32 s55, s46, 16")
    a.e("s_add_u32 s54, s54, s55")
    for y in range(TN):
        a.e(f"s_add_u32 s{64+y}, s54, {WS_W + 262144*y}")
    a.e("v_and_b32 v3, 15, v2")
    a.e("v_lshrrev_b32 v4, 4, v2")
    a.e("v_lshlrev_b32 v4, 4, v4")
    a.e(f"v_lshl_add_u32 v{vO}, v3, 10, v4")
    a.e(f"s_mul_i32 s52, s46, {NU*1024}")
    a.e(f"v_add_u32 v{vW}, s52, v{vL}")
    a.e(f"s_mul_i32 s52, s46, {TN*2048}")
    a.e(f"v_add_u32 v{vR}, s52, v{vL}")
    a.e("s_waitcnt lgkmcnt(0)")
    srd(a, SWS, 6, 268435456)
    def ld(sl):
        b = SL*sl
        for y in range(TN):
            for x in range(2):
                a.e(f"buffer_load_dwordx4 {R('v', b+8*y+4*x)}, v{vL}, s[{SWS}:{SWS+3}], s{64+y} offen offset:{1024*x}")
            a.e(f"s_add_u32 s{64+y}, s{64+y}, 2048")
        for x in range(TM):
            a.e(f"buffer_load_dwordx4 {R('v', b+8*TN+4*x)}, v{vL}, s[{SWS}:{SWS+3}], s{60+x} offen")
            a.e(f"s_add_u32 s{60+x}, s{60+x}, 3072")
    NL = TM + 2*TN
    for sl in range(D): ld(sl)
    srd(a, SO, 4, 786432)
    for i in range(4*NU): a.e(f"v_mov_b32 v{AC+i}, 0")
    a.e(f"s_mov_b32 s58, {NK//D - 1}")
    def mm(sl):
        b = SL*sl
        for tt in range(TM):
            for x in range(2*TN):
                acc = R('v', AC + 4*(tt*2*TN + x))
                a.e(f"v_mfma_f32_16x16x32_bf16 {acc}, {R('v', b+4*x)}, {R('v', b+8*TN+4*tt)}, {acc}")
    a.lab("K2_LOOP")
    for sl in range(D):
        a.e(f"s_waitcnt vmcnt({NL*(D-1)})")
        mm(sl); ld(sl)
    a.e("s_sub_u32 s58, s58, 1")
    a.e("s_cmp_lg_u32 s58, 0")
    a.e("s_cbranch_scc1 K2_LOOP")
    for sl in range(D):
        a.e(f"s_waitcnt vmcnt({NL*(D-1-sl)})")
        mm(sl)
    a.e("s_add_u32 s52, s44, s46")
    a.e("s_lshl_b32 s52, s52, 14")
    a.e("s_lshl_b32 s53, s45, 6")
    a.e("s_add_u32 s52, s52, s53")
    a.nop(8)
    for u in range(NU):
        a.e(f"ds_write_b128 v{vW}, {R('v', AC+4*u)} offset:{1024*u}")
    a.wait_lg0()
    a.e("s_barrier")
    a.e(f"s_cmp_ge_u32 s46, {TM}")
    a.e("s_cbranch_scc1 K2_END")
    W8 = 8*TN
    for s_ in range(4):
        for x in range(2*TN):
            a.e(f"ds_read_b128 {R('v', W8*s_+4*x)}, v{vR} offset:{NU*1024*s_ + 1024*x}")
    a.wait_lg0()
    for n in (2, 1):
        for s_ in range(n):
            for i in range(0, W8, 2):
                a.e(f"v_pk_add_f32 {R('v',W8*s_+i,2)}, {R('v',W8*s_+i,2)}, {R('v',W8*(s_+n)+i,2)}")
    for i in range(4*TN):
        a.e(f"v_cvt_pk_bf16_f32 v{W8+i}, v{2*i}, v{2*i+1}")
    for y in range(TN):
        a.e(f"buffer_store_dwordx4 {R('v', W8+4*y)}, v{vO}, s[{SO}:{SO+3}], s52 offen offset:{64*y}")
    a.lab("K2_END")
    a.e("s_endpgm")
    return a

def desc(name, nfv, acc):
    return f""".amdhsa_kernel {name}
  .amdhsa_next_free_vgpr {nfv}
  .amdhsa_next_free_sgpr 102
  .amdhsa_accum_offset {acc}
  .amdhsa_group_segment_fixed_size 0
  .amdhsa_kernarg_size 64
  .amdhsa_user_sgpr_count 2
  .amdhsa_user_sgpr_kernarg_segment_ptr 1
  .amdhsa_system_sgpr_workgroup_id_x 1
.end_amdhsa_kernel"""

def main():
    hdr = open("cdna_kernels/" + NAME + ".s.ref").read().split("\n")
    top = [l for l in hdr if l.startswith(";") and "@launch" not in l and "Override" not in l and "grid=ceil" not in l]
    out = list(top)
    out.append(f"; @launch kernel={K1} grid=(256,1,1) block=(512,1,1) lds=163840")
    out.append(f"; @launch kernel={K2} grid=({K2G},1,1) block=(256,1,1) lds={K2LDS}")
    out.append('.amdgcn_target "amdgcn-amd-amdhsa--gfx950"')
    out.append(".text")
    for name, k in ((K1, kernel1()), (K2, kernel2())):
        out += [f".globl {name}", ".p2align 8", f".type {name},@function", f"{name}:"]
        out += k.L
    out += ['.section .rodata,"a"', ".p2align 6", desc(K1, 256, 256), ".p2align 6", desc(K2, 256, 256)]
    path = sys.argv[1] if len(sys.argv) > 1 else "cdna_kernels/" + NAME + ".s"
    open(path, "w").write("\n".join(out) + "\n")

main()
```
